```python
import torch

def _softmax(x, axis=-1):
    return torch.softmax(x, dim=axis)

def _gelu(x):
    return torch.nn.functional.gelu(x, approximate='tanh')

def _silu(x):
    return torch.nn.functional.silu(x)

def _sigmoid(x):
    return torch.sigmoid(x)

def _layernorm(x, axis=-1, eps=1e-05):
    m = x.mean(dim=axis, keepdim=True)
    v = x.var(dim=axis, keepdim=True, unbiased=False)
    return (x - m) / torch.sqrt(v + eps)

def _scatter_add(tgt, idx, src, axis=0):
    return tgt.clone().index_add_(axis, idx, src)

def _segment_sum(src, seg, n):
    out = torch.zeros((n,) + src.shape[1:], dtype=src.dtype)
    return out.index_add_(0, seg, src)

def _pad(x, pw):
    flat = tuple((v for pair in reversed(pw) for v in pair))
    return torch.nn.functional.pad(x, flat)
kernel_name = 'adaLN_cond__sliding_local_dilated__glu_gated_glu__prompt'

def setup_inputs():

    _w = lambda a: (lambda t: t.to(torch.bfloat16) if t.is_floating_point() else t)(torch.as_tensor(a))

    def _A_setup():
        B, S, D = (1, 2048, 1024)
        return {'x': _w((lambda *s: torch.randn(*s, dtype=torch.bfloat16) * 0.05)(B, S, D)), 'wqkv': _w((lambda *s: torch.randn(*s, dtype=torch.bfloat16) * 0.05)(D, 3 * D)), 'wo': _w((lambda *s: torch.randn(*s, dtype=torch.bfloat16) * 0.05)(D, D))}
    _A_in = _A_setup()

    def _B_setup():
        B, S, D, F = (1, 2048, 1024, 3584)
        return {'x': _w((lambda *s: torch.randn(*s, dtype=torch.bfloat16) * 0.05)(B, S, D)), 'w_gate': _w((lambda *s: torch.randn(*s, dtype=torch.bfloat16) * 0.05)(D, F)), 'w_up': _w((lambda *s: torch.randn(*s, dtype=torch.bfloat16) * 0.05)(D, F)), 'w_down': _w((lambda *s: torch.randn(*s, dtype=torch.bfloat16) * 0.05)(F, D))}
    _B_in = _B_setup()
    return {'A_x': _A_in['x'], 'A_wqkv': _A_in['wqkv'], 'A_wo': _A_in['wo'], 'B_x': _B_in['x'], 'B_w_gate': _B_in['w_gate'], 'B_w_up': _B_in['w_up'], 'B_w_down': _B_in['w_down'], 'c': _w((lambda *s: torch.randn(*s, dtype=torch.bfloat16) * 0.1)(1, 1024) * 8.0), 'w_mod': _w((lambda *s: torch.randn(*s, dtype=torch.bfloat16) * 0.1)(1024, 6 * 1024) * 1024 ** (-0.5) * 8.0)}

def reference(A_x, A_wqkv, A_wo, B_x, B_w_gate, B_w_up, B_w_down, c, w_mod):

    def _A_ref(x, wqkv, wo):
        B, S, D = x.shape
        H = 32
        Dh = D // H
        W, dil = (8, 2)
        qkv = (lambda x, *d: x.permute(*d))((x @ wqkv).reshape(B, S, 3, H, Dh), 2, 0, 3, 1, 4)
        q, k, v = (qkv[0], qkv[1], qkv[2])
        scale = Dh ** (-0.5)
        pos = torch.arange(S)
        off = torch.arange(W) * dil
        idx = pos[:, None] - off[None, :]
        mask = idx >= 0
        idx_c = torch.where(mask, idx, 0).reshape(-1)
        kg = k[:, :, idx_c, :].reshape(B, H, S, W, Dh)
        vg = v[:, :, idx_c, :].reshape(B, H, S, W, Dh)
        logits = torch.einsum('bhsd,bhswd->bhsw', q, kg) * scale
        logits = torch.where(mask[None, None, :, :], logits, -1000000000.0)
        attn = _softmax(logits, axis=-1)
        o = torch.einsum('bhsw,bhswd->bhsd', attn, vg)
        return (lambda x, *d: x.permute(*d))(o, 0, 2, 1, 3).reshape(B, S, D) @ wo

    def _B_ref(x, w_gate, w_up, w_down):
        g = torch.einsum('bsd,df->bsf', x, w_gate)
        u = torch.einsum('bsd,df->bsf', x, w_up)
        h = _sigmoid(g) * u
        return torch.einsum('bsf,fd->bsd', h, w_down)
    x = A_x
    mod = (_silu(c) @ w_mod).reshape(c.shape[0], 6, 1, -1)
    sa, ca, ga, sb, cb, gb = (mod[:, 0].clone(), mod[:, 1].clone(), mod[:, 2].clone(), mod[:, 3].clone(), mod[:, 4].clone(), mod[:, 5].clone())
    h = _layernorm(x, axis=-1) * (1 + ca) + sa
    x = x + ga * _A_ref(h, A_wqkv, A_wo)
    h = _layernorm(x, axis=-1) * (1 + cb) + sb
    x = x + gb * _B_ref(h, B_w_gate, B_w_up, B_w_down)
    return x
```

```python
class Asm:
    def __init__(self):
        self.lines = []
        self.kernels = []
        self.launches = []
        self._uid = 0

    def __call__(self, s):
        for l in s.split("\n"):
            l = l.strip()
            if l:
                self.lines.append("  " + l)

    def label(self, name):
        self.lines.append(name + ":")

    def uid(self, base):
        self._uid += 1
        return "L_%s_%d" % (base, self._uid)

    def comment(self, s):
        self.lines.append("  ; " + s)

    def begin_kernel(self, name):
        self.lines.append(".globl %s" % name)
        self.lines.append(".p2align 8")
        self.lines.append(".type %s,@function" % name)
        self.lines.append(name + ":")

    def end_kernel(self, name, nv, na=0, ns=102):
        self.kernels.append((name, nv, na, ns))

    def launch(self, name, grid, block, lds):
        self.launches.append((name, grid, block, lds))

    def text(self, header=""):
        out = []
        out.append(header.rstrip("\n")) if header else None
        for n, g, b, l in self.launches:
            out.append("; @launch kernel=%s grid=(%d,1,1) block=(%d,1,1) lds=%d" % (n, g, b, l))
        out.append('.amdgcn_target "amdgcn-amd-amdhsa--gfx950"')
        out.append(".text")
        out += self.lines
        out.append('.section .rodata,"a"')
        for n, nv, na, ns in self.kernels:
            acc = (nv + 3) // 4 * 4
            if acc < 4:
                acc = 4
            tot = acc + na if na else nv
            out.append(".p2align 6")
            out.append(".amdhsa_kernel %s" % n)
            out.append("  .amdhsa_next_free_vgpr %d" % tot)
            out.append("  .amdhsa_next_free_sgpr %d" % ns)
            out.append("  .amdhsa_accum_offset %d" % acc)
            out.append("  .amdhsa_group_segment_fixed_size 0")
            out.append("  .amdhsa_kernarg_size 96")
            out.append("  .amdhsa_user_sgpr_count 2")
            out.append("  .amdhsa_user_sgpr_kernarg_segment_ptr 1")
            out.append("  .amdhsa_system_sgpr_workgroup_id_x 1")
            out.append("  .amdhsa_float_denorm_mode_32 3")
            out.append(".end_amdhsa_kernel")
        return "\n".join(out) + "\n"


def vr(b, n=1):
    return "v%d" % b if n == 1 else "v[%d:%d]" % (b, b + n - 1)

def ar(b, n=1):
    return "a%d" % b if n == 1 else "a[%d:%d]" % (b, b + n - 1)

def sr(b, n=1):
    return "s%d" % b if n == 1 else "s[%d:%d]" % (b, b + n - 1)


def interleave(main, fillers):
    fl = sorted(enumerate(fillers), key=lambda t: (int(t[1][0]), t[0]))
    out = []
    fi = 0
    for i, m in enumerate(main + [None]):
        while fi < len(fl) and int(fl[fi][1][0]) <= i:
            out += fl[fi][1][1]
            fi += 1
        if m is not None:
            out.append(m)
    return out

KA_X, KA_WQKV, KA_WO, KA_BX, KA_WG, KA_WU, KA_WD, KA_C, KA_WMOD, KA_OUT, KA_DBG, KA_WS = [8 * i for i in range(12)]
```

```python
from asmlib import *

NAME = "adaLN_cond__sliding_local_dilated__glu_gated_glu__prompt"

WS_MOD = 0x0
MODP = 6144 * 4
WS_STAT = 0x40000
WS_FLAG = 0x80000
WS_H1 = 0x100000
WS_O = 0x500000
WS_HH = 0x100000
WS_X1 = 0xF00000
WS_H2 = 0x1300000
WS_XN = 0x1300000
WS_XCH = 0x1800000
WS_STAMP = 0x3000000
ACT_BYTES = 2048 * 1024 * 2
HH_BYTES = 2048 * 3584 * 2
WF_BYTES = 1024 * 3584 * 2
KBS = 0x20000
NLOG2E = 0xbfb8aa3b
SPIN = 0x40000

STAMPS = False
ZC = True
FS = 6
NX = 8
HYB_PS, HYB_FB = 3, 2
GV_AT = 24
FLAGA_AT, POLLA_AT, CHECKA_AT = (1, 2), (2, 3), (3, 3)
GENB = (0, 3, 5)
GENC = (0, 6, 11, 13)
POLLPOS = 16
DBGX1 = False
OUTF = "sc1"
OUTFULL = False
OUTPF = False
TAIL6 = True
INPOS = 20
PW = 0
STPRI = 0
SETUP_LN = "mid"
PFM = "ln2"
PFROWS = 1024
NQ1 = 1
HS = "gu"
NVT = 2
NRND = 25
PROBE = 0
VAL1 = False
V1POS = 4
RCP2 = False
GILV = 0
GSP = 3
SELF0 = 0
GV2 = "role"
SNONCE = False
WQPF = True
PFDELAY = True
MERGE0 = 2
WEARLY = "late"
STM0 = ""
PF6 = 3
HMODE = "gu"
HROWS = 2
GU_AT = 32
NF1 = 2
NA1 = 8
A2POS = 8
P5POS = 0
SLP = [0, 0, 0, 0]
COMPACT = True
EARLY_AT = "pub"
XBF = True
LD5 = "sc1"
LD6 = "sc1"
R6 = 4
R5_TS = (4, 1)
FILL = 0
TAILPK = False
STM = "p3"
TLB2 = 0
TLBW = 0
HPRIO = 0
K0W2 = True
SELFPF = 16
K0PF = "early"
POISON_AT = "k2"


def f32bits(x):
    import struct
    return struct.unpack("<I", struct.pack("<f", x))[0]


def srd(a, d, base, nbytes, off=0):
    if off:
        a("s_add_u32 s%d, s%d, 0x%x" % (d, base, off))
        a("s_addc_u32 s%d, s%d, 0" % (d + 1, base + 1))
    else:
        a("s_mov_b32 s%d, s%d" % (d, base))
        a("s_mov_b32 s%d, s%d" % (d + 1, base + 1))
    a("s_mov_b32 s%d, 0x%x" % (d + 2, nbytes))
    a("s_mov_b32 s%d, 0x20000" % (d + 3))


def stamp(a, idx):
    if STAMPS:
        a("s_memtime s[%d:%d]" % (70 + 2 * idx, 71 + 2 * idx))
        a("s_memrealtime s[%d:%d]" % (80 + 2 * idx, 81 + 2 * idx))
        a("s_waitcnt lgkmcnt(0)")


def stamp_store(a, n, vt, wsbase, kidx):
    if not STAMPS:
        return
    a("s_waitcnt vmcnt(0)")
    stamp(a, n - 1)
    srd(a, 64, wsbase, 0x1000000, WS_STAMP + kidx * 0x10000)
    a("s_mov_b64 exec, -1")
    a("s_lshl_b32 s68, s2, 8")
    a("s_lshl_b32 s69, s3, 6")
    a("s_add_u32 s68, s68, s69")
    a("v_mov_b32 v%d, 0" % (vt + 1))
    for i, r in [(i, 70 + 2 * i) for i in range(n)] + [(8 + i, 80 + 2 * i) for i in range(n)] + [(14, 80), (15, 80 + 2 * (n - 1))]:
        a("v_mov_b32 v%d, s%d" % (vt, r))
        a("s_nop 1")
        a("buffer_store_dword v%d, v%d, s[64:67], s68 offen offset:%d" % (vt, vt + 1, 4 * i))
        a("s_nop 1")


def flat(g):
    return [i for grp in g for i in grp]


def emit(a, lst):
    for i in lst:
        a(i)


def xsum(a, regs, tmp, steps):
    return xred(a, regs, tmp, steps, "v_add_f32")


def xred(a, regs, tmp, steps, op):
    for st in steps:
        if st == 8:
            a("s_nop 1")
            for r in regs:
                a("%s_dpp v%d, v%d, v%d row_ror:8 row_mask:0xf bank_mask:0xf" % (op, r, r, r))
        else:
            for r, t in zip(regs, tmp):
                a("v_mov_b32 v%d, v%d" % (t, r))
            a("s_nop 1")
            for r, t in zip(regs, tmp):
                a("v_permlane%d_swap_b32 v%d, v%d" % (st, t, r))
            a("s_nop 1")
            for r, t in zip(regs, tmp):
                a("%s v%d, v%d, v%d" % (op, r, r, t))


def wave_lane(a, vlane, vt):
    a("v_lshrrev_b32 v%d, 6, v0" % vt)
    a("v_and_b32 v%d, 63, v0" % vlane)
    a("s_nop 0")
    a("v_readfirstlane_b32 s3, v%d" % vt)


def round_bf16_pair(a, r0, r1, t):
    a("v_cvt_pk_bf16_f32 v%d, v%d, v%d" % (t, r0, r1))
    a("v_lshlrev_b32 v%d, 16, v%d" % (r0, t))
    a("v_and_b32 v%d, 0xffff0000, v%d" % (r1, t))


def ln_finish(a, MD):
    round_bf16_pair(a, MD, MD + 4, MD + 8)
    a("v_add_f32 v%d, 0x%x, v%d" % (MD + 4, f32bits(1e-5), MD + 4))
    round_bf16_pair(a, MD + 4, MD + 5, MD + 8)
    a("v_sqrt_f32 v%d, v%d" % (MD + 4, MD + 4))
    a("s_nop 0")
    round_bf16_pair(a, MD + 4, MD + 5, MD + 8)
    a("v_rcp_f32 v%d, v%d" % (MD + 4, MD + 4))
    a("v_mov_b32 v%d, v%d" % (MD + 1, MD))
    a("s_nop 0")
    a("v_mov_b32 v%d, v%d" % (MD + 5, MD + 4))


def is_vmem(ins):
    return ins.startswith("buffer_") or ins.startswith("global_")


def gemm_loop(a, nsteps, R, mfmas, ds_reads, vm_w, vm_a, pro, P=3, Q=4, vm_span=1.0, LG=10,
              pro_extra=None, extra=None, tail_extra=None, abl=(), first=None, a_lead=0, pre_loop=None, aux=None,
              queue0=None, stepaware=False, need_extra=None, stamps=(1, 2), midstamps={}, bystep=False, hold={}, skip=()):
    fifo = []
    for t in range(nsteps):
        fifo.append(("W", t))
        fifo.append(("A", t))
    fifo = [g for g in fifo if g not in skip]
    earliest = lambda g: g[1] - R + 1
    if stepaware == 2:
        groups = lambda g: vm_w(g[1] % R, g[1]) if g[0] == "W" else vm_a(g[1] % R, g[1])
    elif stepaware:
        groups = lambda g: vm_w(g[1] % R, g[1]) if g[0] == "W" else vm_a(g[1] % R)
    else:
        groups = lambda g: vm_w(g[1] % R) if g[0] == "W" else vm_a(g[1] % R)
    queue = []
    if queue0 is not None:
        queue = list(queue0)
        fifo = [g for g in fifo if g not in queue]
    dsq = []
    st = {"done": -1}

    def note(tag, inss):
        for ins in inss:
            if is_vmem(ins):
                queue.append(tag)

    def wait_n(tags):
        last = -1
        for i, t in enumerate(queue):
            if t in tags:
                last = i
        return min(63, len(queue) - 1 - last) if last >= 0 else 63

    def ds_wait(tags):
        last = max(i for i, t in enumerate(dsq) if t in tags)
        if last <= st["done"]:
            return None
        n = min(len(dsq) - 1 - last, LG)
        st["done"] = len(dsq) - 1 - n
        return "s_waitcnt lgkmcnt(%d)" % n

    if first:
        ins = first()
        emit(a, ins)
        note(("F",), ins)
    for _ in range(P):
        g = fifo.pop(0)
        assert earliest(g) < 0
        ins = flat(groups(g))
        emit(a, ins)
        note(g, ins)
    if pro_extra:
        ins = pro_extra()
        emit(a, ins)
        note(("X",), ins)
    if first:
        pro(wait_n)
    else:
        pro()
    a("s_waitcnt vmcnt(%d)" % wait_n({("W", 0)}))
    a("s_barrier")
    order = []
    for ins, fr in mfmas(0):
        for f in fr:
            if f not in order:
                order.append(f)
    d0 = ds_reads(0)
    for f in order:
        for ins in d0[f]:
            a(ins)
            dsq.append((f, 0))
    if pre_loop:
        for tag in pre_loop(wait_n):
            dsq.append(tag)
    if stamps[0] is not None:
        stamp(a, stamps[0])
    texts = []
    for s in range(nsteps):
        t = []
        need = {("A", s), ("A", s + (a_lead(s) if callable(a_lead) else a_lead)), ("W", s + 1)}
        need -= set(skip)
        for g in need:
            assert g[1] >= nsteps or g in queue, (s, g)
        if need_extra:
            need |= need_extra(s)
        t.append("s_waitcnt vmcnt(%d) lgkmcnt(%d)" % (wait_n(need), LG))
        st["done"] = len(dsq) - 1 - LG
        t.append("s_barrier")
        if STAMPS and s in midstamps:
            b = Asm()
            stamp(b, midstamps[s])
            t += [l.strip() for l in b.lines]
        mf = mfmas(s if bystep else s % R)
        if s == 0 and ZC:
            seen = set()
            m2 = []
            for ins, fr in mf:
                ops = ins.split(", ")
                if ops[-1] not in seen:
                    seen.add(ops[-1])
                    ins = ", ".join(ops[:-1] + ["0"])
                m2.append((ins, fr))
            mf = m2
        n = len(mf)
        slots = [[] for _ in range(n + 1)]
        if s + 1 < nsteps:
            dr = ds_reads(s + 1 if bystep else (s + 1) % R)
            lastuse = {}
            for i, (ins, fr) in enumerate(mf):
                for f in fr:
                    lastuse[f] = i
            for f, i in sorted(lastuse.items(), key=lambda kv: kv[1]):
                for k, ins in enumerate(dr[f]):
                    slots[min(i + 1 + k, n)].append(("ds", (f, s + 1), [ins]))
        if aux:
            for pos, kind, tag, inss in aux(s):
                slots[min(pos, n)].append((kind, tag, inss))
        vm = []
        cnt = 0
        while cnt < Q:
            cand = [g for k, g in enumerate(fifo) if max(earliest(g), hold.get(g, -9)) <= s
                    and not any(h[0] == g[0] for h in fifo[:k])][:1]
            if not cand:
                break
            g = cand[0]
            fifo.remove(g)
            vm += [(g, grp) for grp in groups(g)]
            cnt += 1
        if extra:
            vm += [(("X", s), grp) for grp in extra(s)]
        if tail_extra and not fifo:
            vm += [(("X",), grp) for grp in tail_extra()]
            tail_extra = None
        for i, (g, grp) in enumerate(vm):
            slots[int(0.5 + i * (n - 1) * vm_span / len(vm))].append(("vm", g, grp))
        for i in range(n + 1):
            for kind, tag, inss in slots[i]:
                if kind == "valu" and tag:
                    w = ds_wait(tag)
                    if w:
                        t.append(w)
                if kind == "wait":
                    t.append("s_waitcnt vmcnt(%d)" % wait_n(tag))
                t += inss
                if kind == "ds":
                    dsq.append(tag)
                elif kind == "vm":
                    note(tag, inss)
            if i < n:
                w = ds_wait({(f, s) for f in mf[i][1]})
                if w:
                    t.append(w)
                t.append(mf[i][0])
        if s < 4 or s >= nsteps - 6:
            pass
        elif "ds2" in abl:
            t = [i for i in t if not i.startswith("ds_read")]
        if 4 <= s < nsteps - 6:
            if "act2" in abl:
                t = [i for i in t if not (i.startswith("buffer_load_dwordx4") and not i.endswith("lds"))]
            if "dma2" in abl:
                t = [i for i in t if not (is_vmem(i) and i.endswith("lds"))]
            if "dsh" in abl:
                k_, t2 = 0, []
                for i in t:
                    if i.startswith("ds_read"):
                        k_ += 1
                        if (k_ // 2) % 2:
                            continue
                    t2.append(i)
                t = t2
            if "vmx" in abl:
                t2 = []
                for i in t:
                    t2.append(i)
                    if is_vmem(i) and i.startswith("buffer_load_dwordx4") and not i.endswith("lds"):
                        t2.append(i)
                t = t2
            if "bar2" in abl:
                t = [i for i in t if i != "s_barrier"]
            if "noadvA" in abl:
                t = [i for i in t if not i.startswith("s_add_u32 s16,")]
            if "noadvW" in abl:
                t = [i for i in t if not i.startswith("s_add_u32 s17,")]
            if "wsc1" in abl:
                t = [i.replace(" lds", " sc1 lds") if (is_vmem(i) and i.endswith("lds")) else i for i in t]
            if "notouch" in abl:
                t = [i for i in t if not i.startswith("buffer_load_dword v251")]
            for x_ in abl:
                if x_.startswith("nop"):
                    k_ = t.index("s_barrier")
                    t = t[:k_ + 1] + ["s_nop 15"] * int(x_[3:]) + t[k_ + 1:]
        if "ds" in abl:
            t = [i for i in t if not i.startswith("ds_read")]
        if "vm" in abl:
            t = [i for i in t if not is_vmem(i)]
        if "dma" in abl:
            t = [i for i in t if not (is_vmem(i) and i.endswith("lds"))]
        if "bar" in abl:
            t = [i for i in t if i != "s_barrier"]
        if "mfma" in abl:
            t = [i if not i.startswith("v_mfma") else "s_nop 0" for i in t]
        texts.append(t)
    n = len(texts)
    best = (0, 0)
    for s0 in range(n):
        e = s0
        while e + R < n and texts[e] == texts[e + R]:
            e += 1
        iters = (e - s0) // R + 1
        if s0 + iters * R <= n and iters > best[1]:
            best = (s0, iters)
    s0, iters = best
    if iters < 2:
        s0, iters = n, 0
    for s in range(s0):
        emit(a, texts[s])
    if iters:
        a("s_mov_b32 s18, %d" % iters)
        loop = a.uid("loop")
        a(".p2align 6")
        a.label(loop)
        for s in range(s0, s0 + R):
            emit(a, texts[s])
        a("s_sub_u32 s18, s18, 1")
        a("s_cmp_lg_u32 s18, 0")
        a("s_cbranch_scc1 %s" % loop)
        for s in range(s0 + iters * R, n):
            emit(a, texts[s])
    a.comment("pipeline: straight %d, loop %d x %d, straight %d" % (s0, iters, R, n - s0 - iters * R))
    if stamps[1] is not None:
        stamp(a, stamps[1])
    a("s_nop 7")
    a("s_nop 1")
    return queue


def mfma(d, x, y, c=None):
    return "v_mfma_f32_16x16x32_bf16 %s, %s, %s, %s" % (d, x, y, c if c is not None else d)


def touch(vd, vo, s, so):
    return "buffer_load_dword v%d, v%d, s[%d:%d], %s offen" % (vd, vo, s, s + 3, so)


def code_touch(a, first, last, sp, st, vo, vd, vlane, chunk=None):
    lab = a.uid("pc")
    r = ["s_getpc_b64 s[%d:%d]" % (sp, sp + 1), lab + ":",
         "s_add_u32 s%d, s%d, %s-%s" % (sp, sp, first, lab), "s_addc_u32 s%d, s%d, 0" % (sp + 1, sp + 1)]
    if chunk is None:
        r += ["s_lshr_b32 s%d, s2, 3" % st, "s_lshl_b32 s%d, s%d, 2" % (st, st), "s_add_u32 s%d, s%d, s3" % (st, st),
              "s_lshl_b32 s%d, s%d, 13" % (st, st)]
    else:
        r += ["s_lshl_b32 s%d, s%d, 13" % (st, chunk)]
    r += ["v_lshlrev_b32 v%d, 7, v%d" % (vo, vlane), "v_add_u32 v%d, s%d, v%d" % (vo, st, vo),
          "v_min_u32 v%d, %s-%s-4, v%d" % (vo, last, first, vo),
          "v_mov_b32 v%d, s%d" % (vo + 1, sp + 1),
          "v_add_co_u32 v%d, vcc, s%d, v%d" % (vo, sp, vo), "s_nop 1",
          "v_addc_co_u32 v%d, vcc, 0, v%d, vcc" % (vo + 1, vo + 1),
          "global_load_dword v%d, v[%d:%d], off" % (vd, vo, vo + 1)]
    return r


def paced(a, n, body):
    lp = a.uid("hl")
    a("s_mov_b32 s18, %d" % n)
    a.label(lp)
    emit(a, body)
    a("s_barrier")
    a("s_sub_u32 s18, s18, 1")
    a("s_cmp_lg_u32 s18, 0")
    a("s_cbranch_scc1 %s" % lp)


def lines(b):
    return [l.strip() for l in b.lines]


def silu_bf16(a, SV, n, TMP, sneg):
    for i in range(n):
        a("v_mul_f32 v%d, s%d, v%d" % (TMP + i, sneg, SV + i))
    for i in range(n):
        a("v_exp_f32 v%d, v%d" % (TMP + i, TMP + i))
    a("s_nop 0")
    for i in range(n):
        a("v_add_f32 v%d, 1.0, v%d" % (TMP + i, TMP + i))
    for i in range(n):
        a("v_rcp_f32 v%d, v%d" % (TMP + i, TMP + i))
    a("s_nop 0")
    for i in range(n):
        a("v_mul_f32 v%d, v%d, v%d" % (SV + i, SV + i, TMP + i))
    for i in range(n // 2):
        round_bf16_pair(a, SV + 2 * i, SV + 2 * i + 1, TMP + i)


def gemv_rows(a, nr, WD, SV, ACC, TMP, younger=0):
    for i in range(nr):
        a("s_waitcnt vmcnt(%d)" % (nr - 1 - i + younger))
        for j in range(4):
            a("v_lshlrev_b32 v%d, 16, v%d" % (TMP + 2 * j, WD + 4 * i + j))
            a("v_and_b32 v%d, 0xffff0000, v%d" % (TMP + 2 * j + 1, WD + 4 * i + j))
        for j in range(8):
            if i == 0:
                a("v_mul_f32 v%d, v%d, v%d" % (ACC + j, TMP + j, SV + i))
            else:
                a("v_fmac_f32 v%d, v%d, v%d" % (ACC + j, TMP + j, SV + i))


def spin(a, l_slow, l_back, poll, vp, sc, want="1"):
    lp = a.uid("spin")
    a.label(l_slow)
    a("s_mov_b32 s%d, %d" % (sc, SPIN))
    a.label(lp)
    a(poll)
    a("s_waitcnt vmcnt(0)")
    a("v_cmp_ne_u32 vcc, %s, v%d" % (want, vp))
    a("s_nop 1")
    a("s_cmp_eq_u64 vcc, 0")
    a("s_cbranch_scc1 %s" % l_back)
    a("s_sub_u32 s%d, s%d, 1" % (sc, sc))
    a("s_cmp_lg_u32 s%d, 0" % sc)
    a("s_cbranch_scc1 %s" % lp)
    a("s_branch %s" % l_back)


def gen_k0(a, name="k0_kernel"):
    a.begin_kernel(name)
    end = a.uid("end")
    lnrole = a.uid("lnrole")
    a("s_cmp_ge_u32 s2, 512")
    a("s_cbranch_scc1 %s" % end)
    a("s_load_dwordx4 s[24:27], s[0:1], %d" % KA_C)
    a("s_load_dwordx2 s[22:23], s[0:1], %d" % KA_WS)
    a("s_load_dwordx4 s[56:59], s[0:1], %d" % KA_X)
    stamp(a, 0)
    VL, VO, VC, VDUM, VT = 1, 2, 3, 6, 8
    wave_lane(a, VL, VT)
    a("s_lshr_b32 s28, s2, 4")
    a("s_lshl_b32 s28, s28, 3")
    a("s_and_b32 s29, s2, 7")
    a("s_add_u32 s28, s28, s29")

    work = a.uid("work")
    a("s_cmp_lt_u32 s2, 256")
    a("s_cbranch_scc1 %s" % work)
    a("s_sub_u32 s2, s2, 256")
    VP = 10
    a("v_lshrrev_b32 v%d, 4, v%d" % (VP, VL))
    a("s_movk_i32 s47, 6144")
    a("v_mul_u32_u24 v%d, s47, v%d" % (VP, VP))
    a("v_and_b32 v%d, 15, v%d" % (VP + 1, VL))
    a("v_min_u32 v%d, 11, v%d" % (VP + 1, VP + 1))
    a("v_and_b32 v%d, 3, v%d" % (VP + 2, VP + 1))
    a("v_lshl_add_u32 v%d, v%d, 7, v%d" % (VP, VP + 2, VP))
    a("v_lshrrev_b32 v%d, 2, v%d" % (VP + 1, VP + 1))
    a("v_lshl_add_u32 v%d, v%d, 11, v%d" % (VP, VP + 1, VP))
    a("s_lshr_b32 s54, s2, 3")
    a("s_lshl_b32 s53, s3, 5")
    a("s_add_u32 s54, s54, s53")
    a("s_mul_i32 s52, s54, %d" % (4 * 6144))
    a("s_bfe_u32 s53, s2, 0x20001")
    a("s_lshl_b32 s53, s53, 9")
    a("s_add_u32 s52, s52, s53")
    a("v_min_u32 v%d, 255, v0" % (VP + 2))
    a("v_min_u32 v%d, 19, v%d" % (VP + 3, VP + 2))
    a("v_lshlrev_b32 v%d, %d, v%d" % (VP + 3, FS, VP + 3))
    a("v_lshlrev_b32 v%d, 2, v%d" % (VP + 2, VP + 2))
    a("v_mov_b32 v%d, -1" % (VP + 4))
    a("s_lshl_b32 s36, s2, 10")
    a("s_mul_i32 s37, s2, %d" % (20 << FS))
    a("s_waitcnt lgkmcnt(0)")
    srd(a, 48, 58, 1024 * 3072 * 2)
    srd(a, 4, 22, 0x40000, WS_STAT)
    srd(a, 8, 22, 5120 << FS, WS_FLAG)
    if not K0W2:
        a("s_mov_b32 s50, %d" % (512 * 6144))
    emit(a, code_touch(a, "k2_kernel", "L_code_end", 60, 62, 16, VDUM, VL, chunk=54))
    a(touch(VDUM, VP, 48, "s52"))
    a("buffer_store_dword v%d, v%d, s[4:7], s36 offen sc1" % (VP + 4, VP + 2))
    a("buffer_store_dword v%d, v%d, s[8:11], s37 offen sc1" % (VP + 4, VP + 3))
    if POISON_AT == "k0":
        srd(a, 4, 22, 0x800000, WS_XCH)
        a("v_lshlrev_b32 v%d, 4, v%d" % (VP + 2, VL))
        for i in range(4):
            a("v_mov_b32 v%d, -1" % (20 + i))
        a("s_lshl_b32 s36, s2, 15")
        a("s_lshr_b32 s37, s3, 1")
        a("s_lshl_b32 s37, s37, 13")
        a("s_add_u32 s36, s36, s37")
        a("s_and_b32 s37, s3, 1")
        a("s_lshl_b32 s37, s37, 11")
        a("s_add_u32 s36, s36, s37")
        for i in range(2):
            a("buffer_store_dwordx4 v[20:23], v%d, s[4:7], s36 offen offset:%d sc1" % (VP + 2, i * 1024))
    if TLBW:
        skip = a.uid("skip")
        a("s_cmp_ge_u32 s2, 8")
        a("s_cbranch_scc1 %s" % skip)
        a("s_cmp_lg_u32 s3, 7")
        a("s_cbranch_scc1 %s" % skip)
        a("s_load_dwordx8 s[32:39], s[0:1], %d" % KA_WQKV)
        a("s_load_dwordx4 s[40:43], s[0:1], %d" % KA_WU)
        a("s_load_dwordx2 s[44:45], s[0:1], %d" % KA_OUT)
        a("s_mov_b32 s31, %d" % TLBW)
        a("v_mul_lo_u32 v%d, s31, v%d" % (VP, VL))
        a("s_waitcnt lgkmcnt(0)")
        for ptr, nb in ((34, 1024 * 1024 * 2), (38, WF_BYTES), (40, WF_BYTES), (42, WF_BYTES), (44, ACT_BYTES), (22, 0x2000000), (26, 1024 * 6144 * 2)):
            srd(a, 16, ptr, nb)
            a(touch(VDUM, VP, 16, "0"))
        a.label(skip)
    a("s_endpgm")
    a.label(work)
    a("s_bitcmp1_b32 s2, 3")
    a("s_cbranch_scc1 %s" % lnrole)
    CD, SV, ACC, TMP, WD = 16, 20, 24, 32, 40
    a("s_lshr_b32 s30, s28, 2")
    a("s_and_b32 s29, s28, 3")
    a("v_lshrrev_b32 v%d, 3, v0" % VT)
    a("v_lshlrev_b32 v%d, 2, v%d" % (VT, VT))
    a("s_lshl_b32 s31, s29, 8")
    a("v_add_u32 v%d, s31, v%d" % (VT, VT))
    a("v_lshlrev_b32 v%d, 1, v%d" % (VC, VT))
    a("s_movk_i32 s31, 12288")
    a("v_mul_u32_u24 v%d, s31, v%d" % (VO, VT))
    a("v_and_b32 v%d, 7, v0" % VT)
    a("v_lshl_add_u32 v%d, v%d, 4, v%d" % (VO, VT, VO))
    a("s_lshl_b32 s40, s30, 7")
    a("s_waitcnt lgkmcnt(0)")
    srd(a, 4, 24, 2048)
    srd(a, 8, 26, 1024 * 6144 * 2)
    a("buffer_load_dwordx2 %s, v%d, s[4:7], 0 offen" % (vr(CD, 2), VC))
    for i in range(4):
        a("buffer_load_dwordx4 %s, v%d, s[8:11], s40 offen nt" % (vr(WD + 4 * i, 4), VO))
        a("s_add_u32 s40, s40, 12288")
    srd(a, 12, 22, 4 * MODP, WS_MOD)
    a("s_mov_b32 s32, 0x%x" % NLOG2E)
    a("s_waitcnt vmcnt(4)")
    for i in range(2):
        a("v_lshlrev_b32 v%d, 16, v%d" % (SV + 2 * i, CD + i))
        a("v_and_b32 v%d, 0xffff0000, v%d" % (SV + 2 * i + 1, CD + i))
    silu_bf16(a, SV, 4, TMP, 32)
    stamp(a, 1)
    gemv_rows(a, 4, WD, SV, ACC, TMP, 0)
    stamp(a, 2)
    xsum(a, list(range(ACC, ACC + 8)), list(range(TMP, TMP + 8)), (8, 16))
    a("v_and_b32 v%d, 7, v0" % VT)
    a("v_lshlrev_b32 v%d, 5, v%d" % (VT, VT))
    a("v_lshrrev_b32 v%d, 5, v0" % (VT + 1))
    a("v_lshl_add_u32 v%d, v%d, 8, v%d" % (VT, VT + 1, VT))
    a("ds_write_b128 v%d, %s" % (VT, vr(ACC, 4)))
    a("ds_write_b128 v%d, %s offset:16" % (VT, vr(ACC + 4, 4)))
    a("s_waitcnt lgkmcnt(0)")
    a("s_barrier")
    fin = a.uid("fin")
    a("s_cmp_lg_u32 s3, 0")
    a("s_cbranch_scc1 %s" % fin)
    a("v_lshlrev_b32 v%d, 2, v%d" % (VT, VL))
    for w in range(8):
        a("ds_read2st64_b32 %s, v%d offset0:%d offset1:%d" % (vr(WD + 2 * w, 2), VT, 2 * w, 2 * w + 1))
    a("s_mul_i32 s33, s29, %d" % MODP)
    a("s_lshl_b32 s34, s30, 8")
    a("s_add_u32 s33, s33, s34")
    a("s_waitcnt lgkmcnt(0)")
    for st in (8, 4, 2):
        for i in range(0, st, 2):
            a("v_pk_add_f32 %s, %s, %s" % (vr(WD + i, 2), vr(WD + i, 2), vr(WD + st + i, 2)))
    a("v_add_f32 v%d, v%d, v%d" % (WD, WD, WD + 1))
    a("buffer_store_dword v%d, v%d, s[12:15], s33 offen sc1" % (WD, VT))
    a.label(fin)
    if STAMPS:
        a("s_cmp_ge_u32 s3, 4")
        a("s_cbranch_scc1 %s" % end)
    stamp(a, 3)
    stamp_store(a, 5, VT, 22, 0)
    a("s_endpgm")

    a.label(lnrole)
    VI, VF = 4, 5
    XD, XF, MD = 16, 32, 64
    a("v_and_b32 v%d, 15, v%d" % (VT, VL))
    a("v_lshlrev_b32 v%d, 11, v%d" % (VI, VT))
    a("v_bfe_u32 v%d, v%d, 4, 1" % (VT + 1, VL))
    a("v_lshl_add_u32 v%d, v%d, 5, v%d" % (VI, VT + 1, VI))
    a("v_lshrrev_b32 v%d, 5, v%d" % (VT + 1, VL))
    a("v_lshl_add_u32 v%d, v%d, 4, v%d" % (VI, VT + 1, VI))
    a("s_lshl_b32 s35, s28, 15")
    a("s_lshl_b32 s30, s3, 8")
    a("s_add_u32 s35, s35, s30")
    a("s_waitcnt lgkmcnt(0)")
    srd(a, 16, 56, ACT_BYTES)
    for i in range(4):
        a("buffer_load_dwordx4 %s, v%d, s[16:19], s35 offen offset:%d" % (vr(XD + 4 * i, 4), VI, i * 64))
    srd(a, 16, 22, ACT_BYTES, WS_XN)
    a("v_lshlrev_b32 v%d, 4, v%d" % (VF, VL))
    a("s_lshl_b32 s40, s3, 19")
    a("s_lshl_b32 s30, s28, 10")
    a("s_add_u32 s40, s40, s30")
    for i in range(1, 4):
        a("s_add_u32 s%d, s40, %d" % (40 + i, i * KBS))
    a("s_waitcnt vmcnt(0)")
    stamp(a, 1)
    for i in range(16):
        a("v_lshlrev_b32 v%d, 16, v%d" % (XF + 2 * i, XD + i))
        a("v_and_b32 v%d, 0xffff0000, v%d" % (XF + 2 * i + 1, XD + i))
    a("v_pk_add_f32 %s, %s, %s" % (vr(VT, 2), vr(XF, 2), vr(XF + 2, 2)))
    a("v_pk_add_f32 %s, %s, %s" % (vr(VT + 2, 2), vr(XF + 4, 2), vr(XF + 6, 2)))
    for i in range(2, 8):
        a("v_pk_add_f32 %s, %s, %s" % (vr(VT, 2), vr(VT, 2), vr(XF + 4 * i, 2)))
        a("v_pk_add_f32 %s, %s, %s" % (vr(VT + 2, 2), vr(VT + 2, 2), vr(XF + 4 * i + 2, 2)))
    a("v_pk_add_f32 %s, %s, %s" % (vr(VT, 2), vr(VT, 2), vr(VT + 2, 2)))
    a("v_add_f32 v%d, v%d, v%d" % (VT, VT, VT + 1))
    xsum(a, [VT], [VT + 1], (16, 32))
    a("v_mul_f32 v%d, 0x%x, v%d" % (MD, f32bits(1.0 / 128), VT))
    a("v_mov_b32 v%d, v%d" % (MD + 1, MD))
    for i in range(16):
        t = VT + 2 * (i & 1)
        d = vr(MD + 4 + 2 * (i & 1), 2)
        a("v_pk_add_f32 %s, %s, %s neg_lo:[0,1] neg_hi:[0,1]" % (d, vr(XF + 2 * i, 2), vr(MD, 2)))
        if i < 2:
            a("v_pk_mul_f32 %s, %s, %s" % (vr(t, 2), d, d))
        else:
            a("v_pk_fma_f32 %s, %s, %s, %s" % (vr(t, 2), d, d, vr(t, 2)))
    a("v_pk_add_f32 %s, %s, %s" % (vr(VT, 2), vr(VT, 2), vr(VT + 2, 2)))
    a("v_add_f32 v%d, v%d, v%d" % (MD + 1, VT, VT + 1))
    xsum(a, [MD + 1], [VT + 1], (16, 32))
    a("v_and_b32 v%d, 15, v%d" % (VT + 4, VL))
    a("v_mul_u32_u24 v%d, 80, v%d" % (VT + 4, VT + 4))
    a("s_lshl_b32 s30, s3, 3")
    a("v_add_u32 v%d, s30, v%d" % (VT + 5, VT + 4))
    a("ds_write_b64 v%d, %s" % (VT + 5, vr(MD, 2)))
    a("s_waitcnt lgkmcnt(0)")
    a("s_barrier")
    G = 76
    for q in range(4):
        a("ds_read_b128 %s, v%d offset:%d" % (vr(G + 4 * q, 4), VT + 4, 16 * q))
    a("s_waitcnt lgkmcnt(0)")
    a("v_pk_add_f32 %s, %s, %s" % (vr(VT, 2), vr(G, 2), vr(G + 2, 2)))
    a("v_pk_add_f32 %s, %s, %s" % (vr(VT + 2, 2), vr(G + 4, 2), vr(G + 6, 2)))
    for q in (8, 12):
        a("v_pk_add_f32 %s, %s, %s" % (vr(VT, 2), vr(VT, 2), vr(G + q, 2)))
        a("v_pk_add_f32 %s, %s, %s" % (vr(VT + 2, 2), vr(VT + 2, 2), vr(G + q + 2, 2)))
    a("v_pk_add_f32 %s, %s, %s" % (vr(VT, 2), vr(VT, 2), vr(VT + 2, 2)))
    a("v_mul_f32 v%d, 0x3e000000, v%d" % (MD, VT))
    for q in range(8):
        a("v_sub_f32 v%d, v%d, v%d" % (G + 2 * q, G + 2 * q, MD))
    a("v_mul_f32 v%d, v%d, v%d" % (VT + 2, G, G))
    for q in range(1, 8):
        a("v_fmac_f32 v%d, v%d, v%d" % (VT + 2, G + 2 * q, G + 2 * q))
    a("v_mul_f32 v%d, 0x%x, v%d" % (MD + 4, f32bits(1.0 / 1024), VT + 1))
    a("v_fmac_f32 v%d, 0x3e000000, v%d" % (MD + 4, VT + 2))
    ln_finish(a, MD)
    stamp(a, 2)
    for i in range(4):
        for q in range(4):
            e = 8 * i + 2 * q
            a("v_pk_add_f32 %s, %s, %s neg_lo:[0,1] neg_hi:[0,1]" % (vr(XF + e, 2), vr(XF + e, 2), vr(MD, 2)))
        for q in range(4):
            e = 8 * i + 2 * q
            a("v_pk_mul_f32 %s, %s, %s" % (vr(XF + e, 2), vr(XF + e, 2), vr(MD + 4, 2)))
        for q in range(4):
            e = 8 * i + 2 * q
            a("v_cvt_pk_f16_f32 v%d, v%d, v%d" % (XD + 4 * i + q, XF + e, XF + e + 1))
        a("s_nop 1")
        a("v_permlane16_swap_b32 v%d, v%d" % (XD + 4 * i, XD + 4 * i + 2))
        a("v_permlane16_swap_b32 v%d, v%d" % (XD + 4 * i + 1, XD + 4 * i + 3))
        a("s_nop 1")
        a("buffer_store_dwordx4 %s, v%d, s[16:19], s%d offen sc1" % (vr(XD + 4 * i, 4), VF, 40 + i))
    if STAMPS:
        a("s_cmp_ge_u32 s3, 4")
        a("s_cbranch_scc1 %s" % end)
    stamp(a, 3)
    stamp_store(a, 5, VT, 22, 1)
    a.label(end)
    a("s_endpgm")
    a.end_kernel(name, 96, 0, 102)
    a.launch(name, 512, 512, 65536)


def mod_stage_loads(b, dst, v, srd_, so):
    b("buffer_load_dwordx4 %s, v%d, s[%d:%d], %s offen" % (vr(dst, 4), v, srd_, srd_ + 3, so))


def mod_lane_off(b, v, vl, t, st):
    b("v_lshrrev_b32 v%d, 4, v%d" % (v, vl))
    b("s_movk_i32 s%d, %d" % (st, MODP))
    b("v_mul_u32_u24 v%d, s%d, v%d" % (v, st, v))
    b("v_and_b32 v%d, 15, v%d" % (t, vl))
    b("v_lshl_add_u32 v%d, v%d, 4, v%d" % (v, t, v))


def gen_k12(a, name="k2_kernel", R=4, **opts):
    SLOT = 13312
    XCH = 0
    ACC = 0
    VL, VA, VH, VW, VT = 104, 105, 106, 107, 110
    VDS = 114
    VHA = VDS + 5
    WF = 132
    SP = 192
    TT = 208
    VS = 126
    ACT = 212
    TBL = R * SLOT
    RED = TBL + 4096
    MDL = 132
    assert R == 4 and NX <= 8
    a.begin_kernel(name)
    end = a.uid("end")
    helper = a.uid("helper")
    a("s_cmp_ge_u32 s2, 256")
    a("s_cbranch_scc1 %s" % end)
    stamp(a, 0)
    a("s_load_dwordx2 s[20:21], s[0:1], %d" % KA_WS)
    a("s_load_dwordx4 s[24:27], s[0:1], %d" % KA_WQKV)
    a("s_load_dwordx4 s[60:63], s[0:1], %d" % KA_WG)
    a("s_load_dwordx4 s[92:95], s[0:1], %d" % KA_C)
    wave_lane(a, VL, VT)
    a("s_and_b32 s28, s2, 7")
    a("s_lshr_b32 s29, s2, 3")
    a("s_and_b32 s30, s28, 1")
    a("s_lshl_b32 s30, s30, 3")
    a("s_and_b32 s31, s29, 7")
    a("s_add_u32 s30, s30, s31")
    a("s_lshr_b32 s31, s28, 1")
    a("s_lshl_b32 s31, s31, 2")
    a("s_lshr_b32 s29, s29, 3")
    a("s_add_u32 s31, s31, s29")
    mod_lane_off(a, MDL + 8, VL, VT, 33)
    a("s_cmp_ge_u32 s3, 4")
    a("s_cselect_b32 s34, s31, s3")
    a("s_lshl_b32 s34, s34, 8")
    a("s_add_u32 s35, s34, 4096")
    a("v_lshlrev_b32 v%d, 4, v%d" % (VHA, VL))

    def stage_loads(b):
        srd(b, 12, 20, 4 * MODP, WS_MOD)
        mod_stage_loads(b, MDL, MDL + 8, 12, "s34")
        mod_stage_loads(b, MDL + 4, MDL + 8, 12, "s35")

    def stage_write():
        a("v_bfe_u32 v%d, v%d, 3, 1" % (MDL + 8, VL))
        a("v_lshlrev_b32 v%d, 8, v%d" % (MDL + 8, MDL + 8))
        a("v_and_b32 v%d, 3, v%d" % (MDL + 9, VL))
        a("v_lshl_add_u32 v%d, v%d, 6, v%d" % (MDL + 8, MDL + 9, MDL + 8))
        a("v_bfe_u32 v%d, v%d, 2, 1" % (MDL + 9, VL))
        a("v_lshl_add_u32 v%d, v%d, 4, v%d" % (MDL + 8, MDL + 9, MDL + 8))
        a("s_lshl_b32 s33, s3, 9")
        a("v_add_u32 v%d, s33, v%d" % (MDL + 8, MDL + 8))
        xsum(a, list(range(MDL, MDL + 8)), list(range(MDL + 10, MDL + 18)), (16, 32))
        for j in range(4):
            round_bf16_pair(a, MDL + 2 * j, MDL + 2 * j + 1, MDL + 10 + j)
        for j in range(4):
            a("v_add_f32 v%d, 1.0, v%d" % (MDL + 4 + j, MDL + 4 + j))
        round_bf16_pair(a, MDL + 4, MDL + 5, MDL + 10)
        round_bf16_pair(a, MDL + 6, MDL + 7, MDL + 11)
        a("ds_write_b128 v%d, %s offset:%d" % (MDL + 8, vr(MDL + 4, 4), TBL))
        a("ds_write_b128 v%d, %s offset:%d" % (MDL + 8, vr(MDL, 4), TBL + 32))

    a("s_cmp_ge_u32 s3, 4")
    a("s_cbranch_scc1 %s" % helper)
    a("s_lshl_b32 s32, s30, 13")
    a("s_lshl_b32 s33, s3, 11")
    a("s_add_u32 s32, s32, s33")
    a("v_add_u32 v%d, s32, v%d" % (VA, VHA))
    a("s_lshl_b32 s32, s30, 3")
    a("s_max_u32 s32, s32, 1")
    a("s_sub_u32 s32, s32, 1")
    a("s_lshl_b32 s32, s32, 10")
    a("s_lshl_b32 s33, s3, 8")
    a("s_add_u32 s32, s32, s33")
    a("v_lshlrev_b32 v%d, 2, v%d" % (VH, VL))
    a("v_add_u32 v%d, s32, v%d" % (VH, VH))
    a("v_lshrrev_b32 v%d, 3, v%d" % (VT, VL))
    a("v_and_b32 v%d, 6, v%d" % (VT + 1, VT))
    a("v_and_b32 v%d, 7, v%d" % (VT + 2, VL))
    a("v_xor_b32 v%d, v%d, v%d" % (VT + 1, VT + 1, VT + 2))
    a("s_movk_i32 s33, 6144")
    a("v_mul_u32_u24 v%d, s33, v%d" % (VT, VT))
    a("v_lshl_add_u32 v%d, v%d, 4, v%d" % (VT, VT + 1, VT))
    a("s_mul_i32 s32, s3, %d" % (8 * 6144))
    a("s_lshl_b32 s33, s31, 7")
    a("s_add_u32 s32, s32, s33")
    a("v_add_u32 v%d, s32, v%d" % (VW, VT))
    a("v_add_u32 v%d, 1024, v%d" % (VW + 1, VW))
    a("v_add_u32 v%d, 2048, v%d" % (VW + 2, VW))
    a("s_mul_i32 s38, s3, 3072")
    a("s_lshl_b32 s39, s3, 8")
    a("s_add_u32 s39, s39, 12288")
    XD_ = WS_XN - WS_H1
    a("s_mov_b32 s16, %d" % XD_)
    a("s_mov_b32 s17, 0")
    a("s_mov_b32 s19, %d" % XD_)
    a("s_waitcnt lgkmcnt(0)")
    srd(a, 8, 24, 1024 * 3072 * 2)
    srd(a, 4, 20, ACT_BYTES + XD_, WS_H1)

    def adv(sr_, t):
        if t == NX - 1:
            return "s_sub_u32 s%d, s%d, %d" % (sr_, sr_, XD_ - KBS)
        return "s_add_u32 s%d, s%d, %d" % (sr_, sr_, KBS)

    def vm_w(slot, t):
        return [["s_add_u32 m0, s38, %d" % (slot * SLOT), "s_nop 0",
                 "buffer_load_dwordx4 v%d, s[8:11], s17 offen lds" % VW],
                ["buffer_load_dwordx4 v%d, s[8:11], s17 offen offset:1024 lds" % (VW + 1)],
                ["buffer_load_dwordx4 v%d, s[8:11], s17 offen offset:2048 lds" % (VW + 2),
                 "s_add_u32 s17, s17, %d" % (32 * 6144)],
                ["s_add_u32 m0, s39, %d" % (slot * SLOT), "s_nop 0",
                 "buffer_load_dword v%d, s[4:7], s19 offen sc1 lds" % VH, adv(19, t)]]

    def vm_a(buf, t):
        return [["buffer_load_dwordx4 %s, v%d, s[4:7], s16 offen sc1" % (vr(ACT + buf * 8, 4), VA)],
                ["buffer_load_dwordx4 %s, v%d, s[4:7], s16 offen offset:1024 sc1" % (vr(ACT + buf * 8 + 4, 4), VA),
                 adv(16, t)]]

    def ds_reads(slot):
        d = {}
        b = VDS
        so = slot * SLOT
        for seg in range(3):
            for jj in range(4):
                f = seg * 4 + jj
                d[f] = ["ds_read_b64_tr_b16 %s, v%d offset:%d" % (vr(WF + f * 4 + hf * 2, 2), b + jj, so + hf * 6144 + seg * 1024)
                        for hf in range(2)]
        d[14] = ["ds_read_b128 %s, v%d offset:%d" % (vr(WF + 56, 4), b + 5, so + 12288)]
        for seg in (1, 2):
            f = 11 + seg
            d[f] = ["ds_read_b64_tr_b16 %s, v%d offset:%d" % (vr(WF + f * 4 + hf * 2, 2), b + 4, so + hf * 6144 + seg * 1024)
                    for hf in range(2)]
        return d

    def accr(tb, seg, jj):
        return ACC + (tb * 12 + seg * 4 + jj) * 4

    def mfmas(u):
        h = vr(WF + 56, 4)
        m = [(mfma(vr(96, 4), vr(WF + 48, 4), h), [12, 14]), (mfma(vr(100, 4), h, vr(WF + 52, 4)), [13, 14])]
        for seg in range(3):
            for jj in range(4):
                for tb in range(2):
                    f = seg * 4 + jj
                    w = vr(WF + f * 4, 4)
                    x = vr(ACT + u * 8 + tb * 4, 4)
                    d = vr(accr(tb, seg, jj), 4)
                    m.append((mfma(d, w, x) if seg < 2 else mfma(d, x, w), [f]))
        return m

    def xform(r):
        g = []
        for d in range(4):
            t = TT + 2 * (d & 1)
            g.append(["v_fma_mix_f32 v%d, v%d, v%d, v%d op_sel_hi:[1,0,0]" % (t, r + d, SP + 2 * d, SP + 8 + 2 * d),
                      "v_fma_mix_f32 v%d, v%d, v%d, v%d op_sel:[1,0,0] op_sel_hi:[1,0,0]" % (t + 1, r + d, SP + 2 * d + 1, SP + 9 + 2 * d),
                      "v_cvt_pk_bf16_f32 v%d, v%d, v%d" % (r + d, t, t + 1)])
        return g

    def s_reads():
        return ["ds_read_b128 %s, v%d offset:%d" % (vr(SP + 4 * q, 4), VS, q * 16) for q in range(4)]

    VFL, VP = 129, 130
    CS = NX - R + 1
    POLL = "buffer_load_dword v%d, v%d, s[64:67], 0 offen sc1" % (VP, VFL)
    l_slow, l_back = a.uid("slow"), a.uid("back")

    def aux(s):
        r = []
        if s == HYB_PS:
            r.append((12, "vm", ("P",), [POLL]))
        if s == CS:
            r.append((0, "valu", None, ["v_cmp_ne_u32 vcc, 1, v%d" % VP, "s_nop 1", "s_cmp_lg_u64 vcc, 0",
                                        "s_cbranch_scc1 %s" % l_slow, l_back + ":"]))
        if s + 1 < NX:
            u = (s + 1) % R
            ins = flat(xform(ACT + u * 8) + xform(ACT + u * 8 + 4))
            for i, x in enumerate(ins):
                r.append((i * 15 // 24, "valu", {("S", s + 1)}, [x]))
            for i, x in enumerate(flat(xform(WF + 56))):
                r.append((15 + i * 8 // 12, "valu", {("S", s + 1), (14, s + 1)}, [x]))
        if s + 2 < NX:
            for i, x in enumerate(s_reads()):
                r.append((23 + i, "ds", ("S", s + 2), [x] if i < 3 else [x, "v_add_u32 v%d, 256, v%d" % (VS, VS)]))
        return r

    def first():
        b = Asm()
        stage_loads(b)
        return lines(b)

    def pre_loop(wait_n):
        emit(a, s_reads())
        a("v_add_u32 v%d, 256, v%d" % (VS, VS))
        a("s_waitcnt vmcnt(%d) lgkmcnt(0)" % wait_n({("A", 0)}))
        emit(a, flat(xform(WF + 56) + xform(ACT) + xform(ACT + 4)))
        emit(a, s_reads())
        a("v_add_u32 v%d, 256, v%d" % (VS, VS))
        return [("S", 1)] * 4

    NEG = f32bits(-1e30)

    def pro(wait_n=None):
        a("v_lshrrev_b32 v%d, 5, v%d" % (VT, VL))
        a("v_mul_u32_u24 v%d, 3072, v%d" % (VT, VT))
        a("v_bfe_u32 v%d, v%d, 2, 3" % (VT + 1, VL))
        a("v_lshl_add_u32 v%d, v%d, 7, v%d" % (VT, VT + 1, VT))
        a("v_bfe_u32 v%d, v%d, 3, 2" % (VT + 1, VL))
        a("v_lshl_add_u32 v%d, v%d, 5, v%d" % (VT, VT + 1, VT))
        a("v_and_b32 v%d, 3, v%d" % (VT + 1, VL))
        a("v_lshl_add_u32 v%d, v%d, 3, v%d" % (VDS, VT + 1, VT))
        for jj in range(1, 4):
            a("v_xor_b32 v%d, %d, v%d" % (VDS + jj, jj << 5, VDS))
        a("s_lshl_b32 s33, s3, 5")
        a("v_xor_b32 v%d, s33, v%d" % (VDS + 4, VDS))
        a("v_and_b32 v%d, 15, v%d" % (VT, VL))
        a("v_lshrrev_b32 v%d, 4, v%d" % (VT + 1, VL))
        a("v_lshlrev_b32 v%d, 2, v%d" % (VT + 1, VT + 1))
        a("v_sub_u32 v%d, v%d, v%d" % (VT, VT, VT + 1))
        a("s_brev_b32 s33, 1")
        for i in range(4):
            a("v_subrev_u32 v%d, %d, v%d" % (VT + 1, i, VT))
            a("v_and_b32 v%d, 0x80000001, v%d" % (VT + 2, VT + 1))
            a("v_cmp_eq_u32 s[%d:%d], 0, v%d" % (44 + 2 * i, 45 + 2 * i, VT + 2))
            a("v_cmp_eq_u32 s[%d:%d], s33, v%d" % (52 + 2 * i, 53 + 2 * i, VT + 2))
        srd(a, 64, 20, 1024 << FS, WS_FLAG + (4096 << FS))
        a("s_lshl_b32 s33, s30, 2")
        a("s_add_u32 s34, s33, s3")
        a("s_lshl_b32 s34, s34, %d" % (4 + FS))
        a("s_max_u32 s33, s33, 1")
        a("s_sub_u32 s33, s33, 1")
        a("s_lshl_b32 s33, s33, %d" % (4 + FS))
        a("v_mov_b32 v%d, s34" % VFL)
        a("v_mov_b32 v%d, s33" % VP)
        a("v_and_b32 v%d, 16, v%d" % (VT, VL))
        a("v_cmp_ne_u32 vcc, 0, v%d" % VT)
        a("v_and_b32 v%d, 15, v%d" % (VT, VL))
        a("s_nop 0")
        a("v_cndmask_b32 v%d, v%d, v%d, vcc" % (VFL, VFL, VP))
        a("v_lshl_add_u32 v%d, v%d, %d, v%d" % (VFL, VT, FS, VFL))
        a("v_lshrrev_b32 v%d, 4, v%d" % (VS, VL))
        a("v_lshlrev_b32 v%d, 6, v%d" % (VS, VS))
        a("v_add_u32 v%d, %d, v%d" % (VS, TBL, VS))
        a("s_waitcnt vmcnt(%d)" % wait_n({("F",)}))
        stage_write()
        a("s_waitcnt lgkmcnt(0)")

    def tail_extra():
        P0, P1, PD = 127, 128, 113
        b = Asm()
        srd(b, 8, 26, 1024 * 1024 * 2)
        b("v_lshrrev_b32 v%d, 3, v%d" % (P0, VL))
        b("v_lshlrev_b32 v%d, 11, v%d" % (P0, P0))
        b("v_and_b32 v%d, 7, v%d" % (P1, VL))
        b("v_lshl_add_u32 v%d, v%d, 8, v%d" % (P0, P1, P0))
        b("s_lshr_b32 s34, s2, 3")
        b("s_lshl_b32 s34, s34, 2")
        b("s_add_u32 s34, s34, s3")
        b("s_lshl_b32 s34, s34, 14")
        b("s_and_b32 s35, s2, 1")
        b("s_lshl_b32 s35, s35, 7")
        b("s_add_u32 s34, s34, s35")
        b(touch(PD, P0, 8, "s34"))
        return [lines(b), code_touch(a, "k5_kernel", "L_k56_seam", 8, 34, 128, PD, VL)]

    o = dict(P=4)
    o.update(opts)
    gemm_loop(a, 32, R, mfmas, ds_reads, vm_w, vm_a, pro, tail_extra=tail_extra, first=first,
              a_lead=lambda s: 1 if s + 1 < NX else 0, pre_loop=pre_loop, aux=aux, stepaware=2,
              need_extra=lambda s: {("P",)} if s == CS else set(), **o)
    srd(a, 12, 20, ACT_BYTES, WS_O)

    BP, BC, BP0 = 120, 124, 128
    QP = 132
    KP = 148
    VV = 172
    HK = 196
    S = 200
    T = 232

    def pk(dst, src):
        a("v_cvt_pk_bf16_f32 v%d, v%d, v%d" % (dst, src, src + 1))
        a("v_cvt_pk_bf16_f32 v%d, v%d, v%d" % (dst + 1, src + 2, src + 3))

    a("s_lshl_b32 s33, s3, 12")
    a("v_add_u32 v%d, s33, v%d" % (VT, VHA))
    a("s_lshr_b32 s33, s3, 1")
    a("s_lshl_b32 s33, s33, 10")
    a("s_and_b32 s34, s3, 1")
    a("s_lshl_b32 s34, s34, 3")
    a("s_add_u32 s33, s33, s34")
    a("v_add_u32 v%d, s33, v%d" % (VT + 1, VHA))
    for q in range(2):
        pk(HK + 2 * q, 96 + 4 * q)
    for hd in range(2):
        for fb in range(2):
            pk(KP + (4 + hd) * 4 + fb * 2, accr(1, 1, hd * 2 + fb))
            pk(VV + (hd * 2 + fb) * 6 + 4, accr(1, 2, hd * 2 + fb))
    a("ds_write_b64 v%d, %s offset:%d" % (VT + 1, vr(HK, 2), XCH))
    a("ds_write_b64 v%d, %s offset:%d" % (VT + 1, vr(HK + 2, 2), XCH + 2048))
    for hd in range(2):
        a("ds_write_b128 v%d, %s offset:%d" % (VT, vr(KP + (4 + hd) * 4, 4), XCH + 4096 + hd * 1024))
        for db in range(2):
            a("ds_write_b64 v%d, %s offset:%d" % (VT, vr(VV + (hd * 2 + db) * 6 + 4, 2), XCH + 4096 + 2048 + hd * 1024 + db * 8))
    for hd in range(2):
        for fb in range(2):
            for tb in range(2):
                pk(QP + (tb * 2 + hd) * 4 + fb * 2, accr(tb, 0, hd * 2 + fb))
            pk(KP + (2 + hd) * 4 + fb * 2, accr(0, 1, hd * 2 + fb))
            pk(VV + (hd * 2 + fb) * 6 + 2, accr(0, 2, hd * 2 + fb))
    a("s_waitcnt lgkmcnt(0)")
    a("s_barrier")
    for hd in range(2):
        a("ds_read_b128 %s, v%d offset:%d" % (vr(KP + hd * 4, 4), VT, XCH + hd * 1024))
        for db in range(2):
            a("ds_read_b64 %s, v%d offset:%d" % (vr(VV + (hd * 2 + db) * 6, 2), VT, XCH + 2048 + hd * 1024 + db * 8))
    units = [(1, 0), (1, 1), (0, 0), (0, 1)]
    for ui, (tb, hd) in enumerate(units):
        if ui == 2:
            a("v_mov_b32 v%d, 0x%x" % (T, NEG))
            for i in range(4):
                a("v_cndmask_b32_e64 v%d, v%d, 0, s[%d:%d]" % (BC + i, T, 44 + 2 * i, 45 + 2 * i))
                a("v_cndmask_b32_e64 v%d, v%d, 0, s[%d:%d]" % (BP + i, T, 52 + 2 * i, 53 + 2 * i))
            a("s_or_b32 s33, s30, s3")
            a("s_cmp_eq_u32 s33, 0")
            a("s_cselect_b32 s33, 0x%x, 0" % NEG)
            for i in range(4):
                a("v_min_f32 v%d, s33, v%d" % (BP0 + i, BP + i))
            a("s_waitcnt lgkmcnt(0)")
        q = vr(QP + (tb * 2 + hd) * 4, 4)
        a(mfma(vr(S + ui * 8, 4), vr(KP + (tb * 2 + hd) * 4, 4), q, "0"))
        a(mfma(vr(S + ui * 8 + 4, 4), vr(KP + ((tb + 1) * 2 + hd) * 4, 4), q, "0"))
    a("s_mov_b32 s40, 0x%x" % f32bits(32 ** -0.5 * 1.4426950408889634))
    for ui, (tb, hd) in enumerate(units):
        bp = BP if tb == 1 else BP0
        for i in range(4):
            a("v_fma_f32 v%d, v%d, s40, v%d" % (S + ui * 8 + i, S + ui * 8 + i, bp + i))
            a("v_fma_f32 v%d, v%d, s40, v%d" % (S + ui * 8 + 4 + i, S + ui * 8 + 4 + i, BC + i))
    for ui in range(4):
        b = S + ui * 8
        a("v_max3_f32 v%d, v%d, v%d, v%d" % (T + ui, b, b + 1, b + 2))
        a("v_max3_f32 v%d, v%d, v%d, v%d" % (T + 4 + ui, b + 3, b + 4, b + 5))
    for ui in range(4):
        b = S + ui * 8
        a("v_max3_f32 v%d, v%d, v%d, v%d" % (T + ui, T + ui, b + 6, b + 7))
    for ui in range(4):
        a("v_max_f32 v%d, v%d, v%d" % (T + ui, T + ui, T + 4 + ui))
    xred(a, [T + i for i in range(4)], [T + 4 + i for i in range(4)], (16, 32), "v_max_f32")
    for ui in range(4):
        for i in range(8):
            a("v_sub_f32 v%d, v%d, v%d" % (S + ui * 8 + i, S + ui * 8 + i, T + ui))
    for ui in range(4):
        for i in range(8):
            a("v_exp_f32 v%d, v%d" % (S + ui * 8 + i, S + ui * 8 + i))
    a("s_nop 0")
    for ui in range(4):
        b = S + ui * 8
        a("v_add_f32 v%d, v%d, v%d" % (T + ui, b, b + 1))
        a("v_add_f32 v%d, v%d, v%d" % (T + 4 + ui, b + 2, b + 3))
        a("v_add_f32 v%d, v%d, v%d" % (T + 8 + ui, b + 4, b + 5))
        a("v_add_f32 v%d, v%d, v%d" % (T + 12 + ui, b + 6, b + 7))
    for ui in range(4):
        a("v_add_f32 v%d, v%d, v%d" % (T + ui, T + ui, T + 4 + ui))
        a("v_add_f32 v%d, v%d, v%d" % (T + 8 + ui, T + 8 + ui, T + 12 + ui))
    for ui in range(4):
        a("v_add_f32 v%d, v%d, v%d" % (T + ui, T + ui, T + 8 + ui))
    xred(a, [T + i for i in range(4)], [T + 4 + i for i in range(4)], (16, 32), "v_add_f32")
    for ui in range(4):
        a("v_rcp_f32 v%d, v%d" % (T + ui, T + ui))
    a("s_nop 0")
    for ui in range(4):
        for i in range(8):
            a("v_mul_f32 v%d, v%d, v%d" % (S + ui * 8 + i, S + ui * 8 + i, T + ui))
    for ui in range(4):
        for i in range(4):
            a("v_cvt_pk_bf16_f32 v%d, v%d, v%d" % (QP + ui * 4 + i, S + ui * 8 + 2 * i, S + ui * 8 + 2 * i + 1))
    a("s_nop 1")
    for ui, (tb, hd) in enumerate(units):
        for db in range(2):
            a(mfma(vr(S + ui * 8 + db * 4, 4), vr(VV + (hd * 2 + db) * 6 + tb * 2, 4), vr(QP + ui * 4, 4), "0"))
    a("s_lshl_b32 s41, s31, 18")
    a("s_add_u32 s42, s41, %d" % KBS)
    a("s_nop 1")
    for ui, (tb, hd) in enumerate(units):
        if ui == 3:
            a("s_nop 0")
        for i in range(4):
            a("v_cvt_pk_bf16_f32 v%d, v%d, v%d" % (KP + ui * 4 + i, S + ui * 8 + 2 * i, S + ui * 8 + 2 * i + 1))
        a("buffer_store_dwordx4 %s, v%d, s[12:15], s%d offen offset:%d %s" % (vr(KP + ui * 4, 4), VA, 41 + hd, tb * 1024, "sc1"))
    if "midstamps" not in opts:
        stamp(a, 3)
    stamp_store(a, 5, VT, 20, 2)
    a("s_endpgm")
    spin(a, l_slow, l_back, POLL, VP, 33)

    a.label(helper)
    if HPRIO:
        a("s_setprio %d" % HPRIO)
    a("s_and_b32 s39, s3, 3")
    a("s_lshl_b32 s32, s30, 13")
    a("s_lshl_b32 s33, s39, 11")
    a("s_add_u32 s32, s32, s33")
    a("s_lshl_b32 s33, s31, 18")
    a("s_add_u32 s40, s32, s33")
    a("s_add_u32 s41, s40, %d" % KBS)
    a("s_add_u32 s36, s40, %d" % XD_)
    a("s_add_u32 s37, s41, %d" % XD_)
    a("s_waitcnt lgkmcnt(0)")
    stage_loads(a)
    srd(a, 16, 20, ACT_BYTES + XD_, WS_H1)
    for kk in range(2):
        for tb in range(2):
            a("buffer_load_dwordx4 %s, v%d, s[16:19], s%d offen offset:%d" % (vr(ACT + (kk * 2 + tb) * 4, 4), VHA, 36 + kk, tb * 1024))
    GO, GC, CD, SV, GA, GT, GW = 1, 2, 4, 8, 16, 24, 32
    a("v_and_b32 v3, 255, v0")
    a("v_and_b32 v%d, 0xf8, v3" % GC)
    a("s_and_b32 s42, s2, 3")
    a("s_lshl_b32 s33, s42, 8")
    a("v_add_u32 v%d, s33, v%d" % (GC, GC))
    a("s_movk_i32 s33, 12288")
    a("v_mul_u32_u24 v%d, s33, v%d" % (GO, GC))
    a("v_lshlrev_b32 v%d, 1, v%d" % (GC, GC))
    a("v_and_b32 v3, 7, v3")
    a("v_lshl_add_u32 v%d, v3, 4, v%d" % (GO, GO))
    srd(a, 44, 92, 2048)
    a("buffer_load_dwordx4 %s, v%d, s[44:47], 0 offen" % (vr(CD, 4), GC))
    a("v_lshrrev_b32 v%d, 4, v%d" % (VS, VL))
    a("v_lshlrev_b32 v%d, 6, v%d" % (VS, VS))
    a("s_lshl_b32 s34, s3, 9")
    a("s_add_u32 s34, s34, %d" % TBL)
    a("v_add_u32 v%d, s34, v%d" % (VS, VS))
    srd(a, 64, 20, 1024 << FS, WS_FLAG + (4096 << FS))
    a("s_lshl_b32 s34, s30, 2")
    a("s_add_u32 s34, s34, s39")
    a("s_lshl_b32 s34, s34, 4")
    a("s_add_u32 s34, s34, s31")
    a("s_lshl_b32 s34, s34, %d" % FS)
    a("v_mov_b32 v100, 0")
    a("v_mov_b32 v101, 1")
    a("v_mov_b32 v102, %d" % (RED + 1024))
    a("ds_write_b32 v102, v100")
    a("s_waitcnt vmcnt(5)")
    stage_write()
    a("s_waitcnt lgkmcnt(0)")
    emit(a, s_reads())
    a("v_add_u32 v%d, 256, v%d" % (VS, VS))
    a("s_barrier")
    for kk in range(2):
        if kk:
            emit(a, s_reads())
        a("s_waitcnt vmcnt(3) lgkmcnt(0)")
        for tb in range(2):
            emit(a, flat(xform(ACT + (kk * 2 + tb) * 4)))
            a("buffer_store_dwordx4 %s, v%d, s[16:19], s%d offen offset:%d sc1" % (vr(ACT + (kk * 2 + tb) * 4, 4), VHA, 40 + kk, tb * 1024))
    for i in range(HYB_FB):
        a("s_barrier")
    a("s_waitcnt vmcnt(0)")
    a("s_mov_b64 exec, 1")
    a("buffer_store_dword v101, v100, s[64:67], s34 offen sc1")
    a("s_mov_b64 exec, -1")
    a("s_barrier")
    for i in range(4):
        a("v_lshlrev_b32 v%d, 16, v%d" % (SV + 2 * i, CD + i))
        a("v_and_b32 v%d, 0xffff0000, v%d" % (SV + 2 * i + 1, CD + i))
    a("s_mov_b32 s33, 0x%x" % NLOG2E)
    silu_bf16(a, SV, 8, GT, 33)
    if TLB2:
        a("s_load_dwordx2 s[52:53], s[0:1], %d" % KA_WD)
        a("s_load_dwordx2 s[54:55], s[0:1], %d" % KA_OUT)
        a("s_lshr_b32 s6, s2, 3")
        a("s_lshl_b32 s6, s6, 2")
        a("s_add_u32 s6, s6, s39")
        a("s_mul_i32 s6, s6, %d" % TLB2)
        a("s_waitcnt lgkmcnt(0)")
        for k, (ptr, nb) in enumerate(((20, 0x2000000), (26, 1024 * 1024 * 2), (60, WF_BYTES), (62, WF_BYTES), (52, WF_BYTES), (54, ACT_BYTES),
                                       (94, 1024 * 6144 * 2))):
            a("s_min_u32 s7, s6, %d" % (nb - 64))
            a("s_load_dword s%d, s[%d:%d], s7" % (48 + k % 4, ptr, ptr + 1))
    nb = HYB_FB + 2
    a("s_lshr_b32 s43, s2, 2")
    if HMODE == "gu":
        a("s_bitcmp1_b32 s3, 0")
        a("s_cselect_b32 s4, s62, s60")
        a("s_cselect_b32 s5, s63, s61")
        a("s_lshl_b32 s6, s2, 1")
        a("s_bfe_u32 s7, s3, 0x10001")
        a("s_add_u32 s6, s6, s7")
        a("s_lshl_b32 s6, s6, 8")
        a("s_add_u32 s4, s4, s6")
        a("s_addc_u32 s5, s5, 0")
        body = ["s_load_dword s%d, s[4:5], %d" % (48 + i, i * 64) for i in range(4)]
        body += ["s_add_u32 s4, s4, %d" % (512 * 256), "s_addc_u32 s5, s5, 0"]
        rounds = 28
    else:
        a("s_lshl_b32 s6, s42, 8")
        a("s_lshl_b32 s7, s39, 6")
        a("s_add_u32 s6, s6, s7")
        a("s_mul_i32 s6, s6, 12288")
        a("s_lshl_b32 s7, s43, 7")
        a("s_add_u32 s6, s6, s7")
        a("s_add_u32 s6, s6, 4096")
        a("s_add_u32 s4, s94, s6")
        a("s_addc_u32 s5, s95, 0")
        body = ["s_load_dword s%d, s[4:5], %d" % (48 + i % 4, (i // 2) * 12288 + (i & 1) * 64) for i in range(2 * HROWS)]
        body += ["s_add_u32 s4, s4, %d" % (HROWS * 12288), "s_addc_u32 s5, s5, 0"]
        rounds = min(64 // HROWS, GV_AT - nb)
    srd(a, 56, 20, 0x800000, WS_XCH)
    a("s_lshl_b32 s36, s2, 2")
    a("s_add_u32 s36, s36, s39")
    a("s_lshl_b32 s36, s36, 13")
    for i in range(4):
        a("v_mov_b32 v%d, -1" % (96 + i))
    paced(a, 4, body + ["s_barrier"] + body + ["s_barrier"] + body + ["s_barrier"] + body + [
        "buffer_store_dwordx4 v[96:99], v%d, s[56:59], s36 offen sc1" % VHA, "s_add_u32 s36, s36, 1024"])
    n2 = min(rounds, GV_AT - nb) - 16
    paced(a, n2, body)
    for i in range(GV_AT - nb - 16 - n2):
        a("s_barrier")
    srd(a, 44, 94, 1024 * 6144 * 2)
    a("s_lshl_b32 s33, s43, 7")
    a("s_add_u32 s33, s33, 4096")
    for i in range(8):
        a("buffer_load_dwordx4 %s, v%d, s[44:47], s33 offen %s" % (vr(GW + 4 * i, 4), GO, "nt" if HMODE == "gu" else ""))
        a("s_add_u32 s33, s33, 12288")
    yng = 0
    for i in range(34 - GV_AT):
        if GV_AT - nb + i < rounds:
            emit(a, body)
        if HMODE != "gu" and GV_AT + i == GU_AT:
            emit(a, ["s_bitcmp1_b32 s3, 0", "s_cselect_b32 s56, s62, s60", "s_cselect_b32 s57, s63, s61",
                     "s_mov_b32 s58, %d" % WF_BYTES, "s_lshl_b32 s6, s2, 1", "s_bfe_u32 s7, s3, 0x10001", "s_add_u32 s6, s6, s7",
                     "s_mul_i32 s6, s6, 7168", "v_min_u32 v96, 55, v%d" % VL, "v_lshlrev_b32 v96, 7, v96", touch(97, 96, 56, "s6")])
            yng = 1
        a("s_barrier")
    gemv_rows(a, 8, GW, SV, GA, GT, yng)
    xsum(a, list(range(GA, GA + 8)), list(range(GT, GT + 8)), (8, 16, 32))
    a("v_lshlrev_b32 v3, 5, v3")
    a("s_lshl_b32 s33, s39, 8")
    a("v_add_u32 v3, s33, v3")
    a("s_waitcnt lgkmcnt(0)")
    a("ds_write_b128 v3, %s offset:%d" % (vr(GA, 4), RED))
    a("ds_write_b128 v3, %s offset:%d" % (vr(GA + 4, 4), RED + 16))
    a("s_waitcnt lgkmcnt(0)")
    a("s_mov_b64 exec, 1")
    a("ds_add_rtn_u32 v103, v102, v101")
    a("s_waitcnt lgkmcnt(0)")
    a("v_readfirstlane_b32 s33, v103")
    a("s_mov_b64 exec, -1")
    a("s_cmp_lg_u32 s33, 3")
    a("s_cbranch_scc1 %s" % end)
    a("v_lshlrev_b32 v3, 2, v%d" % VL)
    a("v_add_u32 v4, %d, v3" % RED)
    a("ds_read2st64_b32 v[8:9], v4 offset0:0 offset1:1")
    a("ds_read2st64_b32 v[10:11], v4 offset0:2 offset1:3")
    a("s_mul_i32 s33, s42, %d" % MODP)
    a("s_lshl_b32 s34, s43, 8")
    a("s_add_u32 s33, s33, s34")
    a("s_add_u32 s33, s33, 8192")
    a("s_waitcnt lgkmcnt(0)")
    a("v_pk_add_f32 v[8:9], v[8:9], v[10:11]")
    a("v_add_f32 v8, v8, v9")
    a("buffer_store_dword v8, v3, s[12:15], s33 offen sc1")
    a.label(end)
    a("s_endpgm")
    a.end_kernel(name, 256, 0, 102)
    a.launch(name, 256, 512, 82944)


def gen_k012(a, name="k2_kernel", R=4, **opts):
    SLOT = 13312
    XCH = 0
    ACC = 0
    VL, VA, VH, VW, VT = 104, 105, 106, 107, 110
    VDS = 114
    VHA = VDS + 5
    WF = 132
    ACT = 212
    TBL = R * SLOT
    SIL = TBL + 8192
    STS = SIL + 1024
    CNT = STS + 256
    RED = CNT + 64
    VFL, VP, VF1 = 129, 130, 131
    CS = 8 - R + 1
    a.begin_kernel(name)
    end = a.uid("end")
    helper = a.uid("helper")
    if SELF0:
        sk, lab = a.uid("sk"), a.uid("pc")
        a("s_getpc_b64 s[4:5]")
        a.label(lab)
        a("s_cmp_ge_u32 s2, %d" % SELF0)
        a("s_cbranch_scc1 %s" % sk)
        a("v_lshlrev_b32 v2, 7, v0")
        a("v_min_u32 v2, k5_kernel-%s-4, v2" % lab)
        a("v_mov_b32 v3, s5")
        a("v_add_co_u32 v2, vcc, s4, v2")
        a("s_nop 1")
        a("v_addc_co_u32 v3, vcc, 0, v3, vcc")
        a("global_load_dword v250, v[2:3], off")
        a.label(sk)
    a("s_cmp_ge_u32 s2, 256")
    a("s_cbranch_scc1 %s" % end)
    stamp(a, 0)
    a("s_load_dwordx4 s[96:99], s[0:1], %d" % KA_X)
    a("s_load_dwordx4 s[92:95], s[0:1], %d" % KA_C)
    a("s_load_dwordx4 s[88:91], s[0:1], %d" % KA_DBG) if not STAMPS else a("s_load_dwordx2 s[90:91], s[0:1], %d" % KA_DBG)
    a("s_load_dwordx2 s[20:21], s[0:1], %d" % KA_WS)
    a("s_load_dwordx2 s[26:27], s[0:1], %d" % KA_WO)
    a("s_load_dwordx4 s[60:63], s[0:1], %d" % KA_WG)
    DBG = 90 if STAMPS else 88
    wave_lane(a, VL, VT)
    a("v_lshlrev_b32 v%d, 4, v%d" % (VHA, VL))

    def nonce_ld(vd, vz):
        return "buffer_load_dword v%d, v%d, s[40:43], s37 offen sc1" % (vd, vz)

    def nonce_get(vd, vz, cnt):
        lp, ok = a.uid("nl"), a.uid("nok")
        a("s_mov_b32 s33, %d" % SPIN)
        a("s_waitcnt vmcnt(%d)" % cnt)
        a.label(lp)
        a("v_readfirstlane_b32 s100, v%d" % vd)
        a("s_cmp_lg_u32 s100, 0")
        a("s_cbranch_scc1 %s" % ok)
        a(nonce_ld(vd, vz))
        a("s_sub_u32 s33, s33, 1")
        a("s_waitcnt vmcnt(0)")
        a("s_cmp_lg_u32 s33, 0")
        a("s_cbranch_scc1 %s" % lp)
        a.label(ok)

    a("s_and_b32 s37, s2, 3")
    a("s_lshl_b32 s37, s37, 6")
    a("v_mov_b32 v5, %d" % CNT)
    a("v_mov_b32 v6, 0")
    a("v_mov_b32 v7, 0")
    a("ds_write_b64 v5, v[6:7]")
    a("ds_write_b32 v5, v6 offset:8")
    a("s_cmp_ge_u32 s3, 4")
    a("s_cbranch_scc1 %s" % helper)
    VI, VF, VD, VM = 1, 2, 3, 4
    XD, XF, MD, T2, ML, SH, SC = 8, 24, 56, 66, 72, 132, 164
    a("v_lshrrev_b32 v%d, 5, v%d" % (T2, VL))
    a("v_bfe_u32 v%d, v%d, 3, 2" % (T2 + 1, VL))
    a("v_and_b32 v%d, 7, v%d" % (T2 + 2, VL))
    a("s_lshl_b32 s30, s3, 3")
    a("v_add_u32 v%d, s30, v%d" % (T2, T2))
    a("v_lshlrev_b32 v%d, 11, v%d" % (VI, T2 + 2))
    a("v_lshl_add_u32 v%d, v%d, 6, v%d" % (VI, T2, VI))
    a("v_lshl_add_u32 v%d, v%d, 3, v%d" % (VI, T2 + 1, VI))
    a("s_lshl_b32 s35, s2, 14")
    a("s_waitcnt lgkmcnt(0)")
    a("s_barrier")
    srd(a, 12, 96, ACT_BYTES)
    q0 = []

    def vm(tag, inss):
        for x in inss:
            a(x)
            if is_vmem(x):
                q0.append(tag)

    def wn(tag):
        return min(63, len(q0) - 1 - max(i for i, x in enumerate(q0) if x == tag))

    for i in range(4):
        for h in range(2):
            vm("x", ["buffer_load_dwordx2 %s, v%d, s[12:15], s35 offen offset:%d" % (vr(XD + 4 * i + 2 * h, 2), VI, i * 128 + h * 32)])
    a("v_lshlrev_b32 v%d, 17, v%d" % (VF, T2))
    a("v_lshl_add_u32 v%d, v%d, 8, v%d" % (VF, T2 + 1, VF))
    a("v_lshl_add_u32 v%d, v%d, 4, v%d" % (VF, T2 + 2, VF))
    a("s_lshr_b32 s30, s2, 1")
    a("s_lshl_b32 s30, s30, 10")
    a("s_and_b32 s31, s2, 1")
    a("s_lshl_b32 s31, s31, 7")
    a("s_add_u32 s30, s30, s31")
    a("v_add_u32 v%d, s30, v%d" % (VF, VF))
    a("v_lshlrev_b32 v%d, 7, v%d" % (VD, T2))
    a("v_lshl_add_u32 v%d, v%d, 4, v%d" % (VD, T2 + 1, VD))
    a("v_lshlrev_b32 v%d, 4, v0" % VM)
    a("s_and_b32 s28, s2, 7")
    a("s_lshr_b32 s29, s2, 3")
    a("s_and_b32 s30, s28, 1")
    a("s_lshl_b32 s30, s30, 3")
    a("s_and_b32 s31, s29, 7")
    a("s_add_u32 s30, s30, s31")
    a("s_lshr_b32 s31, s28, 1")
    a("s_lshl_b32 s31, s31, 2")
    a("s_lshr_b32 s29, s29, 3")
    a("s_add_u32 s31, s31, s29")
    a("v_lshrrev_b32 v%d, 3, v%d" % (VT, VL))
    a("v_and_b32 v%d, 6, v%d" % (VT + 1, VT))
    a("v_and_b32 v%d, 7, v%d" % (VT + 2, VL))
    a("v_xor_b32 v%d, v%d, v%d" % (VT + 1, VT + 1, VT + 2))
    a("s_movk_i32 s33, 6144")
    a("v_mul_u32_u24 v%d, s33, v%d" % (VT, VT))
    a("v_lshl_add_u32 v%d, v%d, 4, v%d" % (VT, VT + 1, VT))
    a("s_mul_i32 s32, s3, %d" % (8 * 6144))
    a("s_lshl_b32 s33, s31, 7")
    a("s_add_u32 s32, s32, s33")
    a("v_add_u32 v%d, s32, v%d" % (VW, VT))
    a("v_add_u32 v%d, 1024, v%d" % (VW + 1, VW))
    a("v_add_u32 v%d, 2048, v%d" % (VW + 2, VW))
    a("s_mul_i32 s38, s3, 3072")
    a("s_lshl_b32 s39, s3, 8")
    a("s_add_u32 s39, s39, 12288")
    a("s_mov_b32 s16, 0")
    a("s_mov_b32 s17, 0")
    a("s_mov_b32 s19, 0")
    srd(a, 8, 98, 1024 * 3072 * 2)

    def vm_w(slot):
        return [["s_add_u32 m0, s38, %d" % (slot * SLOT), "s_nop 0",
                 "buffer_load_dwordx4 v%d, s[8:11], s17 offen lds" % VW],
                ["buffer_load_dwordx4 v%d, s[8:11], s17 offen offset:1024 lds" % (VW + 1)],
                ["buffer_load_dwordx4 v%d, s[8:11], s17 offen offset:2048 lds" % (VW + 2),
                 "s_add_u32 s17, s17, %d" % (32 * 6144)],
                ["s_add_u32 m0, s39, %d" % (slot * SLOT), "s_nop 0",
                 "buffer_load_dword v%d, s[4:7], s19 offen sc1 lds" % VH, "s_add_u32 s19, s19, %d" % KBS]]

    def vm_a(buf):
        return [["buffer_load_dwordx4 %s, v%d, s[4:7], s16 offen sc1" % (vr(ACT + buf * 8, 4), VA)],
                ["buffer_load_dwordx4 %s, v%d, s[4:7], s16 offen offset:1024 sc1" % (vr(ACT + buf * 8 + 4, 4), VA),
                 "s_add_u32 s16, s16, %d" % KBS]]

    if WEARLY == "pre":
        for t in range(3):
            vm(("W", t), flat(vm_w(t)[:3]))
    a("s_lshl_b32 s32, s30, 13")
    a("s_lshl_b32 s33, s3, 11")
    a("s_add_u32 s32, s32, s33")
    a("v_add_u32 v%d, s32, v%d" % (VA, VHA))
    a("s_lshl_b32 s32, s30, 3")
    a("s_max_u32 s32, s32, 1")
    a("s_sub_u32 s32, s32, 1")
    a("s_lshl_b32 s32, s32, 10")
    a("s_lshl_b32 s33, s3, 8")
    a("s_add_u32 s32, s32, s33")
    a("v_lshlrev_b32 v%d, 2, v%d" % (VH, VL))
    a("v_add_u32 v%d, s32, v%d" % (VH, VH))
    a("v_lshrrev_b32 v%d, 5, v%d" % (VT, VL))
    a("v_mul_u32_u24 v%d, 3072, v%d" % (VT, VT))
    a("v_bfe_u32 v%d, v%d, 2, 3" % (VT + 1, VL))
    a("v_lshl_add_u32 v%d, v%d, 7, v%d" % (VT, VT + 1, VT))
    a("v_bfe_u32 v%d, v%d, 3, 2" % (VT + 1, VL))
    a("v_lshl_add_u32 v%d, v%d, 5, v%d" % (VT, VT + 1, VT))
    a("v_and_b32 v%d, 3, v%d" % (VT + 1, VL))
    a("v_lshl_add_u32 v%d, v%d, 3, v%d" % (VDS, VT + 1, VT))
    for jj in range(1, 4):
        a("v_xor_b32 v%d, %d, v%d" % (VDS + jj, jj << 5, VDS))
    a("s_lshl_b32 s33, s3, 5")
    a("v_xor_b32 v%d, s33, v%d" % (VDS + 4, VDS))
    a("v_and_b32 v%d, 14, v%d" % (VT, VL))
    a("v_lshrrev_b32 v%d, 4, v%d" % (VT + 1, VL))
    a("v_lshlrev_b32 v%d, 2, v%d" % (VT + 1, VT + 1))
    a("v_cmp_le_u32 s[44:45], v%d, v%d" % (VT + 1, VT))
    a("v_add_u32 v%d, 2, v%d" % (VT + 1, VT + 1))
    a("v_cmp_le_u32 s[46:47], v%d, v%d" % (VT + 1, VT))
    a("v_and_b32 v%d, 1, v%d" % (VT, VL))
    a("v_cmp_eq_u32 s[48:49], 1, v%d" % VT)
    srd(a, 4, 20, ACT_BYTES, WS_H1)
    srd(a, 64, 20, 2048 << FS, WS_FLAG + (4096 << FS))
    if VAL1:
        a("s_cmp_eq_u32 s3, 0")
        a("s_cselect_b32 s6, %d, 0" % ACT_BYTES)
        for i in range(4):
            a("v_mov_b32 v%d, -1" % (ML + i))
        a("s_mov_b32 s33, %d" % (2 * KBS))
        vm("po", ["buffer_store_dwordx4 %s, v%d, s[4:7], 0 offen sc1" % (vr(ML, 4), VF),
                  "buffer_store_dwordx4 %s, v%d, s[4:7], s33 offen sc1" % (vr(ML, 4), VF)])
        a("s_mov_b32 s6, %d" % ACT_BYTES)
    a("s_lshl_b32 s33, s30, 3")
    a("s_lshl_b32 s34, s3, 1")
    a("s_add_u32 s34, s34, s33")
    a("s_lshl_b32 s34, s34, 3")
    a("s_max_u32 s33, s33, 1")
    a("s_sub_u32 s33, s33, 1")
    a("s_lshl_b32 s33, s33, 3")
    a("v_and_b32 v%d, 7, v%d" % (VP, VL))
    a("v_add_u32 v%d, s33, v%d" % (VP, VP))
    a("v_add_u32 v%d, s34, v%d" % (VFL, VL))
    a("v_cmp_lt_u32 vcc, 15, v%d" % VL)
    a("s_lshl_b32 s36, s2, 2")
    a("s_add_u32 s36, s36, s3")
    a("v_cndmask_b32 v%d, v%d, v%d, vcc" % (VFL, VFL, VP))
    a("v_and_b32 v%d, -4, v%d" % (VF1, VFL))
    a("v_lshlrev_b32 v%d, %d, v%d" % (VFL, FS, VFL))
    a("v_lshlrev_b32 v%d, %d, v%d" % (VF1, FS, VF1))
    a("s_lshl_b32 s36, s36, %d" % FS)
    srd(a, 12, 20, 4 * MODP, WS_MOD)
    srd(a, 40, DBG, 256)
    a("v_mov_b32 v7, 0")
    a("v_and_b32 v6, 15, v%d" % VL)
    a("v_bfe_u32 v%d, v%d, 4, 1" % (T2, VL))
    a("v_lshl_add_u32 v6, v%d, 6, v6" % T2)
    a("s_lshl_b32 s33, s3, 4")
    a("s_add_u32 s33, s33, 1024")
    a("v_add_u32 v6, s33, v6")
    a("v_lshlrev_b32 v6, %d, v6" % FS)
    a("s_waitcnt vmcnt(%d)" % wn("x"))
    vm("N", [nonce_ld(VT + 3, 7)])
    if WEARLY == "post":
        for t in range(3):
            vm(("W", t), flat(vm_w(t)[:3]))
    for i in range(16):
        a("v_lshlrev_b32 v%d, 16, v%d" % (XF + 2 * i, XD + i))
        a("v_and_b32 v%d, 0xffff0000, v%d" % (XF + 2 * i + 1, XD + i))
    a("v_pk_add_f32 %s, %s, %s" % (vr(T2, 2), vr(XF, 2), vr(XF + 2, 2)))
    a("v_pk_add_f32 %s, %s, %s" % (vr(T2 + 2, 2), vr(XF + 4, 2), vr(XF + 6, 2)))
    for i in range(2, 8):
        a("v_pk_add_f32 %s, %s, %s" % (vr(T2, 2), vr(T2, 2), vr(XF + 4 * i, 2)))
        a("v_pk_add_f32 %s, %s, %s" % (vr(T2 + 2, 2), vr(T2 + 2, 2), vr(XF + 4 * i + 2, 2)))
    a("v_pk_add_f32 %s, %s, %s" % (vr(T2, 2), vr(T2, 2), vr(T2 + 2, 2)))
    a("v_add_f32 v%d, v%d, v%d" % (T2, T2, T2 + 1))
    xsum(a, [T2], [T2 + 1], (8, 16, 32))
    a("v_mul_f32 v%d, 0x%x, v%d" % (MD, f32bits(1.0 / 256), T2))
    a("v_mov_b32 v%d, v%d" % (MD + 1, MD))
    for i in range(16):
        t = T2 + 2 * (i & 1)
        d = vr(MD + 4 + 2 * (i & 1), 2)
        a("v_pk_add_f32 %s, %s, %s neg_lo:[0,1] neg_hi:[0,1]" % (d, vr(XF + 2 * i, 2), vr(MD, 2)))
        if i < 2:
            a("v_pk_mul_f32 %s, %s, %s" % (vr(t, 2), d, d))
        else:
            a("v_pk_fma_f32 %s, %s, %s, %s" % (vr(t, 2), d, d, vr(t, 2)))
    a("v_pk_add_f32 %s, %s, %s" % (vr(T2, 2), vr(T2, 2), vr(T2 + 2, 2)))
    a("v_add_f32 v%d, v%d, v%d" % (MD + 1, T2, T2 + 1))
    xsum(a, [MD + 1], [T2 + 1], (8, 16, 32))
    a("v_and_b32 v%d, 7, v%d" % (T2 + 4, VL))
    a("v_lshlrev_b32 v%d, 5, v%d" % (T2 + 4, T2 + 4))
    a("s_lshl_b32 s33, s3, 3")
    a("v_add_u32 v%d, s33, v%d" % (T2 + 5, T2 + 4))
    a("ds_write_b64 v%d, %s offset:%d" % (T2 + 5, vr(MD, 2), STS))
    CPOLL = "buffer_load_dword v%d, v6, s[64:67], 0 offen sc1" % VP
    a(CPOLL)
    a("v_mov_b32 v%d, 1" % T2)
    a("s_waitcnt lgkmcnt(0)")
    a("s_mov_b64 exec, 1")
    a("ds_add_u32 v5, v%d" % T2)
    a("s_mov_b64 exec, -1")
    lp = a.uid("lds")
    a("s_mov_b32 s33, %d" % (SPIN * 8))
    a.label(lp)
    a("ds_read_b32 v%d, v5" % T2)
    a("ds_read_b128 %s, v%d offset:%d" % (vr(MD, 4), T2 + 4, STS))
    a("ds_read_b128 %s, v%d offset:%d" % (vr(MD + 4, 4), T2 + 4, STS + 16))
    a("s_sub_u32 s33, s33, 1")
    a("s_waitcnt lgkmcnt(0)")
    a("v_readfirstlane_b32 s34, v%d" % T2)
    a("s_cmp_eq_u32 s33, 0")
    a("s_cselect_b32 s34, 4, s34")
    a("s_cmp_lt_u32 s34, 4")
    a("s_cbranch_scc1 %s" % lp)
    a("v_add_f32 v%d, v%d, v%d" % (T2, MD, MD + 2))
    a("v_add_f32 v%d, v%d, v%d" % (T2 + 1, MD + 4, MD + 6))
    a("v_add_f32 v%d, v%d, v%d" % (T2, T2, T2 + 1))
    a("v_mul_f32 v%d, 0x3e800000, v%d" % (T2, T2))
    a("v_add_f32 v%d, v%d, v%d" % (T2 + 1, MD + 1, MD + 3))
    a("v_add_f32 v%d, v%d, v%d" % (T2 + 2, MD + 5, MD + 7))
    a("v_add_f32 v%d, v%d, v%d" % (T2 + 1, T2 + 1, T2 + 2))
    for q in range(4):
        a("v_sub_f32 v%d, v%d, v%d" % (MD + 2 * q, MD + 2 * q, T2))
    a("v_mul_f32 v%d, v%d, v%d" % (T2 + 2, MD, MD))
    for q in range(1, 4):
        a("v_fmac_f32 v%d, v%d, v%d" % (T2 + 2, MD + 2 * q, MD + 2 * q))
    a("v_mul_f32 v%d, 0x%x, v%d" % (MD + 4, f32bits(1.0 / 1024), T2 + 1))
    a("v_fmac_f32 v%d, 0x3e800000, v%d" % (MD + 4, T2 + 2))
    a("v_mov_b32 v%d, v%d" % (MD, T2))
    ln_finish(a, MD)
    for i in range(16):
        a("v_pk_add_f32 %s, %s, %s neg_lo:[0,1] neg_hi:[0,1]" % (vr(XF + 2 * i, 2), vr(XF + 2 * i, 2), vr(MD, 2)))
    for i in range(16):
        a("v_pk_mul_f32 %s, %s, %s" % (vr(XF + 2 * i, 2), vr(XF + 2 * i, 2), vr(MD + 4, 2)))
    if STM0 == "a":
        stamp(a, 1)
    nonce_get(VT + 3, 7, 1)
    if STM0 == "b":
        stamp(a, 1)
    if WEARLY == "mid":
        for t in range(3):
            vm(("W", t), flat(vm_w(t)[:3]))
    lp, ok = a.uid("cnt"), a.uid("cok")
    a("s_mov_b32 s33, %d" % SPIN)
    a.label(lp)
    a("s_waitcnt vmcnt(0)")
    a("v_cmp_ne_u32 vcc, s100, v%d" % VP)
    a("s_nop 1")
    a("s_cmp_eq_u64 vcc, 0")
    a("s_cbranch_scc1 %s" % ok)
    a(CPOLL)
    a("s_sub_u32 s33, s33, 1")
    a("s_cmp_lg_u32 s33, 0")
    a("s_cbranch_scc1 %s" % lp)
    a.label(ok)
    if STM0 == "b":
        stamp(a, 2)
    if VAL1:
        a("s_add_u32 s33, s2, 1280")
        a("s_lshl_b32 s33, s33, %d" % FS)
        a("s_cmp_eq_u32 s3, 0")
        a("s_cselect_b32 s66, %d, 0" % (2048 << FS))
        a("v_mov_b32 v%d, s100" % T2)
        a("s_mov_b64 exec, 1")
        a("buffer_store_dword v%d, v7, s[64:67], s33 offen sc1" % T2)
        a("s_mov_b64 exec, -1")
        a("s_mov_b32 s66, %d" % (2048 << FS))
        a("v_lshrrev_b32 v6, 2, v%d" % VF1)
        a("s_mov_b32 s35, %d" % (1280 << FS))
    for p in range(4):
        a("s_mov_b32 s%d, %d" % (68 + p if not STAMPS else [22, 23, 24, 25][p], p * MODP))
    PR = [68, 69, 70, 71] if not STAMPS else [22, 23, 24, 25]
    a("v_add_u32 v%d, 4096, v%d" % (T2 + 3, VM))
    if PROBE:
        a("v_and_b32 v6, 3, v%d" % VL)
        a("s_movk_i32 s33, %d" % MODP)
        a("v_mul_u32_u24 v6, s33, v6")
        a("v_bfe_u32 v%d, v%d, 2, 2" % (T2, VL))
        a("v_lshl_add_u32 v6, v%d, 8, v6" % T2)
        a("v_bfe_u32 v%d, v%d, 4, 1" % (T2, VL))
        a("v_lshl_add_u32 v6, v%d, 12, v6" % T2)
        a("s_lshl_b32 s34, s3, 10")
        lp, ok = a.uid("prb"), a.uid("pok")
        a("s_mov_b32 s33, %d" % SPIN)
        a.label(lp)
        a("buffer_load_dword v%d, v6, s[12:15], s34 offen sc1" % T2)
        a("s_waitcnt vmcnt(0)")
        a("v_cmp_eq_u32 vcc, -1, v%d" % T2)
        a("s_nop 1")
        a("s_cmp_eq_u64 vcc, 0")
        a("s_cbranch_scc1 %s" % ok)
        if PROBE > 1:
            a("s_sleep %d" % PROBE)
        a("s_sub_u32 s33, s33, 1")
        a("s_cmp_lg_u32 s33, 0")
        a("s_cbranch_scc1 %s" % lp)
        a.label(ok)
    lp, ok = a.uid("mod"), a.uid("mok")
    a("s_mov_b32 s33, %d" % SPIN)
    a.label(lp)
    for v in range(2):
        for p in range(4):
            a("buffer_load_dwordx4 %s, v%d, s[12:15], s%d offen sc1" % (vr(ML + (v * 4 + p) * 4, 4), T2 + 3 if v else VM, PR[p]))
    for i in range(8):
        a("s_waitcnt vmcnt(%d)" % (7 - i))
        if i == 0:
            a("v_max3_u32 v%d, v%d, v%d, v%d" % (T2, ML, ML + 1, ML + 2))
            a("v_max_u32 v%d, v%d, v%d" % (T2, T2, ML + 3))
        else:
            a("v_max3_u32 v%d, v%d, v%d, v%d" % (T2, T2, ML + i * 4, ML + i * 4 + 1))
            a("v_max3_u32 v%d, v%d, v%d, v%d" % (T2, T2, ML + i * 4 + 2, ML + i * 4 + 3))
    a("v_cmp_eq_u32 vcc, -1, v%d" % T2)
    a("s_nop 1")
    a("s_cmp_eq_u64 vcc, 0")
    a("s_cbranch_scc1 %s" % ok)
    a("s_sub_u32 s33, s33, 1")
    a("s_cmp_lg_u32 s33, 0")
    a("s_cbranch_scc1 %s" % lp)
    a.label(ok)
    if STM0 == "a":
        stamp(a, 2)
    if STM0 == "b":
        stamp(a, 3)
    EPOLL = "buffer_load_dword v%d, v6, s[64:67], s35 offen sc1" % VP
    if VAL1:
        a(EPOLL)
    if WEARLY == "late":
        for t in range(4 if VAL1 else 3):
            vm(("W", t), flat(vm_w(t)[:3]))
    for v in range(2):
        b_ = ML + v * 16
        for e in (0, 2):
            a("v_pk_add_f32 %s, %s, %s" % (vr(b_ + e, 2), vr(b_ + e, 2), vr(b_ + 4 + e, 2)))
            a("v_pk_add_f32 %s, %s, %s" % (vr(b_ + 8 + e, 2), vr(b_ + 8 + e, 2), vr(b_ + 12 + e, 2)))
        for e in (0, 2):
            a("v_pk_add_f32 %s, %s, %s" % (vr(b_ + e, 2), vr(b_ + e, 2), vr(b_ + 8 + e, 2)))
        round_bf16_pair(a, b_, b_ + 1, b_ + 4)
        round_bf16_pair(a, b_ + 2, b_ + 3, b_ + 5)
    for j in range(4):
        a("v_add_f32 v%d, 1.0, v%d" % (ML + 16 + j, ML + 16 + j))
    round_bf16_pair(a, ML + 16, ML + 17, ML + 4)
    round_bf16_pair(a, ML + 18, ML + 19, ML + 5)
    a("ds_write_b128 v%d, %s offset:%d" % (VM, vr(ML, 4), TBL))
    a("ds_write_b128 v%d, %s offset:%d" % (VM, vr(ML + 16, 4), TBL + 4096))
    for i in range(4):
        a("s_mov_b32 s%d, %d" % (PR[i], i * 2 * KBS))
    a("s_waitcnt lgkmcnt(0)")
    for i in range(4):
        for h in range(2):
            a("ds_read_b128 %s, v%d offset:%d" % (vr(SH + 8 * i + 4 * h, 4), VD, TBL + i * 256 + h * 64))
            a("ds_read_b128 %s, v%d offset:%d" % (vr(SC + 8 * i + 4 * h, 4), VD, TBL + 4096 + i * 256 + h * 64))
    for i in range(4):
        a("s_waitcnt lgkmcnt(%d)" % (12 - 4 * i))
        for q in range(4):
            e = 8 * i + 2 * q
            a("v_pk_fma_f32 %s, %s, %s, %s" % (vr(XF + e, 2), vr(XF + e, 2), vr(SC + e, 2), vr(SH + e, 2)))
        for q in range(4):
            e = 8 * i + 2 * q
            a("v_cvt_pk_bf16_f32 v%d, v%d, v%d" % (XD + 4 * i + q, XF + e, XF + e + 1))
        a("buffer_store_dwordx4 %s, v%d, s[4:7], s%d offen sc1" % (vr(XD + 4 * i, 4), VF, PR[i]))
    l1s, l1b = a.uid("slow"), a.uid("back")
    POLL1 = "buffer_load_dword v%d, v%d, s[64:67], 0 offen sc1" % (VP, VF1)
    POLL = "buffer_load_dword v%d, v%d, s[64:67], 0 offen sc1" % (VP, VFL)
    if not VAL1:
        a("v_mov_b32 v6, 0")
        a("v_mov_b32 v7, s100")
        a("s_waitcnt vmcnt(0)")
        a("s_mov_b64 exec, 1")
        a("buffer_store_dword v7, v6, s[64:67], s36 offen sc1")
        a("s_mov_b64 exec, -1")
        a("s_branch %s" % l1s)
        a.label(l1b)
        if STM0 == "a":
            stamp(a, 3)
        for t in range(3):
            vm(("W", t), vm_w(t)[3])
            if t < 2:
                vm(("A", t), flat(vm_a(t)))
    else:
        assert WEARLY == "late"
        les, leb = a.uid("slow"), a.uid("back")
        a("s_waitcnt vmcnt(16)")
        emit(a, ["v_cmp_ne_u32 vcc, s100, v%d" % VP, "s_nop 1", "s_cmp_lg_u64 vcc, 0", "s_cbranch_scc1 %s" % les])
        a.label(leb)
        for i in range(4):
            a("s_mov_b32 s%d, %d" % (PR[i], i * KBS))
        a("v_mov_b32 v%d, s100" % (T2 + 1))
        a("v_lshlrev_b32 v%d, 2, v%d" % (T2 + 2, VL))
        a("v_add_u32 v%d, s39, v%d" % (T2 + 2, T2 + 2))
        a("s_mov_b32 s33, %d" % SPIN)
        a("s_mov_b32 s34, 1")
        lp, ok, nof = a.uid("val"), a.uid("vok"), a.uid("nof")
        HQ = ML
        a.label(lp)
        for t in range(4):
            a("buffer_load_dwordx4 %s, v%d, s[4:7], s%d offen sc1" % (vr(ACT + t * 8, 4), VA, PR[t]))
            a("buffer_load_dwordx4 %s, v%d, s[4:7], s%d offen offset:1024 sc1" % (vr(ACT + t * 8 + 4, 4), VA, PR[t]))
            a("buffer_load_dword v%d, v%d, s[4:7], s%d offen sc1" % (HQ + t, VH, PR[t]))
        a("s_waitcnt vmcnt(0)")
        a("s_cmp_eq_u32 s34, 0")
        a("s_cbranch_scc1 %s" % nof)
        a("s_mov_b64 exec, 1")
        a("buffer_store_dword v%d, v7, s[64:67], s36 offen sc1" % (T2 + 1))
        a("s_mov_b64 exec, -1")
        a("s_mov_b32 s34, 0")
        a.label(nof)
        a("v_max3_u32 v%d, v%d, v%d, v%d" % (T2, HQ, HQ + 1, HQ + 2))
        a("v_max_u32 v%d, v%d, v%d" % (T2, T2, HQ + 3))
        for i in range(16):
            a("v_max3_u32 v%d, v%d, v%d, v%d" % (T2, T2, ACT + 2 * i, ACT + 2 * i + 1))
        a("v_cmp_eq_u32 vcc, -1, v%d" % T2)
        a("s_nop 1")
        a("s_cmp_eq_u64 vcc, 0")
        a("s_cbranch_scc1 %s" % ok)
        a("s_sub_u32 s33, s33, 1")
        a("s_cmp_lg_u32 s33, 0")
        a("s_cbranch_scc1 %s" % lp)
        a.label(ok)
        for t in range(4):
            a("ds_write_b32 v%d, v%d offset:%d" % (T2 + 2, HQ + t, t * SLOT))
            q0.append(("A", t))
        q0.append("flag")
        a("s_mov_b32 s16, %d" % (4 * KBS))
        a("s_mov_b32 s19, %d" % (4 * KBS))
        a("s_waitcnt lgkmcnt(0)")
        if STM0 == "a":
            stamp(a, 3)
    l_slow, l_back = a.uid("slow"), a.uid("back")

    def ds_reads(slot):
        d = {}
        b = VDS
        so = slot * SLOT
        for seg in range(3):
            for jj in range(4):
                f = seg * 4 + jj
                d[f] = ["ds_read_b64_tr_b16 %s, v%d offset:%d" % (vr(WF + f * 4 + hf * 2, 2), b + jj, so + hf * 6144 + seg * 1024)
                        for hf in range(2)]
        d[14] = ["ds_read_b128 %s, v%d offset:%d" % (vr(WF + 56, 4), b + 5, so + 12288)]
        for seg in (1, 2):
            f = 11 + seg
            d[f] = ["ds_read_b64_tr_b16 %s, v%d offset:%d" % (vr(WF + f * 4 + hf * 2, 2), b + 4, so + hf * 6144 + seg * 1024)
                    for hf in range(2)]
        return d

    def accr(tb, seg, jj):
        return ACC + (tb * 12 + seg * 4 + jj) * 4

    def mfmas(u):
        h = vr(WF + 56, 4)
        m = [(mfma(vr(96, 4), vr(WF + 48, 4), h), [12, 14]), (mfma(vr(100, 4), h, vr(WF + 52, 4)), [13, 14])]
        for seg in range(3):
            for jj in range(4):
                for tb in range(2):
                    f = seg * 4 + jj
                    w = vr(WF + f * 4, 4)
                    x = vr(ACT + u * 8 + tb * 4, 4)
                    d = vr(accr(tb, seg, jj), 4)
                    m.append((mfma(d, w, x) if seg < 2 else mfma(d, x, w), [f]))
        return m

    def aux(s):
        r = []
        if VAL1 and s == 0:
            r.append((V1POS, "vm", ("P1",), [POLL1]))
        if VAL1 and s == 1:
            r.append((0, "valu", None, ["v_cmp_ne_u32 vcc, s100, v%d" % VP, "s_nop 1", "s_cmp_lg_u64 vcc, 0",
                                        "s_cbranch_scc1 %s" % l1s, l1b + ":"]))
        if s == CS - 2:
            r.append((12, "vm", ("P",), [POLL]))
        if s == CS:
            r.append((0, "valu", None, ["v_cmp_ne_u32 vcc, s100, v%d" % VP, "s_nop 1", "s_cmp_lg_u64 vcc, 0",
                                        "s_cbranch_scc1 %s" % l_slow, l_back + ":"]))
        return r

    NEG = f32bits(-1e30)

    def tail_extra():
        P0, P1, PD = 127, 128, 113
        b = Asm()
        srd(b, 8, 26, 1024 * 1024 * 2)
        b("v_lshrrev_b32 v%d, 3, v%d" % (P0, VL))
        b("v_lshlrev_b32 v%d, 11, v%d" % (P0, P0))
        b("v_and_b32 v%d, 7, v%d" % (P1, VL))
        b("v_lshl_add_u32 v%d, v%d, 8, v%d" % (P0, P1, P0))
        b("s_lshr_b32 s34, s2, 3")
        b("s_lshl_b32 s34, s34, 2")
        b("s_add_u32 s34, s34, s3")
        b("s_lshl_b32 s34, s34, 14")
        b("s_and_b32 s35, s2, 1")
        b("s_lshl_b32 s35, s35, 7")
        b("s_add_u32 s34, s34, s35")
        b(touch(PD, P0, 8, "s34"))
        return [lines(b), code_touch(a, "k5_kernel", "L_k56_seam", 8, 34, 128, PD, VL)]

    o = dict(P=0)
    o.update(opts)
    if STM0 in ("a", "b"):
        o["stamps"] = (None, None)
    gemm_loop(a, 32, R, mfmas, ds_reads, vm_w, vm_a, lambda: None, tail_extra=tail_extra, aux=aux, queue0=q0,
              need_extra=lambda s: {("P",)} if s == CS else ({("P1",)} if (VAL1 and s == 1) else set()), **o)
    srd(a, 12, 20, ACT_BYTES, WS_O)

    BP, BC, BP0 = 120, 124, 128
    QP = 132
    KP = 148
    VV = 172
    HK = 196
    S = 200
    T = 232

    def pk(dst, src):
        a("v_cvt_pk_bf16_f32 v%d, v%d, v%d" % (dst, src, src + 1))
        a("v_cvt_pk_bf16_f32 v%d, v%d, v%d" % (dst + 1, src + 2, src + 3))

    a("s_lshl_b32 s33, s3, 12")
    a("v_add_u32 v%d, s33, v%d" % (VT, VHA))
    a("s_lshr_b32 s33, s3, 1")
    a("s_lshl_b32 s33, s33, 10")
    a("s_and_b32 s34, s3, 1")
    a("s_lshl_b32 s34, s34, 3")
    a("s_add_u32 s33, s33, s34")
    a("v_add_u32 v%d, s33, v%d" % (VT + 1, VHA))
    for q in range(2):
        pk(HK + 2 * q, 96 + 4 * q)
    for hd in range(2):
        for fb in range(2):
            pk(KP + (4 + hd) * 4 + fb * 2, accr(1, 1, hd * 2 + fb))
            pk(VV + (hd * 2 + fb) * 6 + 4, accr(1, 2, hd * 2 + fb))
    a("ds_write_b64 v%d, %s offset:%d" % (VT + 1, vr(HK, 2), XCH))
    a("ds_write_b64 v%d, %s offset:%d" % (VT + 1, vr(HK + 2, 2), XCH + 2048))
    for hd in range(2):
        a("ds_write_b128 v%d, %s offset:%d" % (VT, vr(KP + (4 + hd) * 4, 4), XCH + 4096 + hd * 1024))
        for db in range(2):
            a("ds_write_b64 v%d, %s offset:%d" % (VT, vr(VV + (hd * 2 + db) * 6 + 4, 2), XCH + 4096 + 2048 + hd * 1024 + db * 8))
    for hd in range(2):
        for fb in range(2):
            for tb in range(2):
                pk(QP + (tb * 2 + hd) * 4 + fb * 2, accr(tb, 0, hd * 2 + fb))
            pk(KP + (2 + hd) * 4 + fb * 2, accr(0, 1, hd * 2 + fb))
            pk(VV + (hd * 2 + fb) * 6 + 2, accr(0, 2, hd * 2 + fb))
    a("s_waitcnt lgkmcnt(0)")
    a("s_barrier")
    for hd in range(2):
        a("ds_read_b128 %s, v%d offset:%d" % (vr(KP + hd * 4, 4), VT, XCH + hd * 1024))
        for db in range(2):
            a("ds_read_b64 %s, v%d offset:%d" % (vr(VV + (hd * 2 + db) * 6, 2), VT, XCH + 2048 + hd * 1024 + db * 8))
    units = [(1, 0), (1, 1), (0, 0), (0, 1)]
    for ui, (tb, hd) in enumerate(units):
        if ui == 2:
            a("s_or_b32 s33, s30, s3")
            a("s_cmp_eq_u32 s33, 0")
            a("s_cselect_b32 s33, 0x%x, 0" % NEG)
            a("v_mov_b32 v%d, s33" % T)
            for q_ in range(2):
                a("v_cndmask_b32_e64 v%d, v%d, 0, s[%d:%d]" % (BP + q_, T, 44 + 2 * q_, 45 + 2 * q_))
            a("v_and_b32 v%d, 1, v%d" % (BP + 2, VL))
            a("v_lshlrev_b32 v%d, 4, v%d" % (BP + 2, BP + 2))
            a("s_waitcnt lgkmcnt(0)")
        q = vr(QP + (tb * 2 + hd) * 4, 4)
        a(mfma(vr(S + ui * 8, 4), vr(KP + (tb * 2 + hd) * 4, 4), q, "0"))
        a(mfma(vr(S + ui * 8 + 4, 4), vr(KP + ((tb + 1) * 2 + hd) * 4, 4), q, "0"))
    a("s_mov_b32 s40, 0x%x" % f32bits(32 ** -0.5 * 1.4426950408889634))
    U = range(4)
    for ui in U:
        for h in range(4):
            a("v_cndmask_b32_e64 v%d, v%d, v%d, s[48:49]" % (S + ui * 8 + 2 * h, S + ui * 8 + 2 * h, S + ui * 8 + 2 * h + 1))
    for ui in U:
        for q_ in range(2):
            a("v_cndmask_b32_e64 v%d, v%d, v%d, s[%d:%d]" % (S + ui * 8 + q_, S + ui * 8 + 2 * q_, S + ui * 8 + 4 + 2 * q_, 44 + 2 * q_, 45 + 2 * q_))
    for ui, (tb, hd) in enumerate(units):
        for q_ in range(2):
            if tb == 1:
                a("v_mul_f32 v%d, s40, v%d" % (S + ui * 8 + q_, S + ui * 8 + q_))
            else:
                a("v_fma_f32 v%d, v%d, s40, v%d" % (S + ui * 8 + q_, S + ui * 8 + q_, BP + q_))
    for ui in U:
        a("v_max_f32 v%d, v%d, v%d" % (T + ui, S + ui * 8, S + ui * 8 + 1))
    xred(a, [T + i for i in U], [T + 4 + i for i in U], (16, 32), "v_max_f32")
    for ui in U:
        for q_ in range(2):
            a("v_sub_f32 v%d, v%d, v%d" % (S + ui * 8 + q_, S + ui * 8 + q_, T + ui))
    for ui in U:
        for q_ in range(2):
            a("v_exp_f32 v%d, v%d" % (S + ui * 8 + q_, S + ui * 8 + q_))
    a("s_nop 0")
    for ui in U:
        a("v_add_f32 v%d, v%d, v%d" % (T + ui, S + ui * 8, S + ui * 8 + 1))
    xred(a, [T + i for i in U], [T + 4 + i for i in U], (16, 32), "v_add_f32")
    for ui in U:
        a("v_rcp_f32 v%d, v%d" % (T + ui, T + ui))
    a("s_nop 0")
    for ui in U:
        for q_ in range(2):
            a("v_mul_f32 v%d, v%d, v%d" % (S + ui * 8 + q_, S + ui * 8 + q_, T + ui))
    for ui in U:
        for q_ in range(2):
            a("v_cvt_pk_bf16_f32 v%d, v%d, 0" % (S + ui * 8 + q_, S + ui * 8 + q_))
    for ui in U:
        for q_ in range(2):
            a("v_lshlrev_b32 v%d, v%d, v%d" % (S + ui * 8 + q_, BP + 2, S + ui * 8 + q_))
    for ui in U:
        for q_ in range(2):
            a("v_cndmask_b32_e64 v%d, v%d, 0, s[%d:%d]" % (QP + ui * 4 + q_, S + ui * 8 + q_, 44 + 2 * q_, 45 + 2 * q_))
            a("v_cndmask_b32_e64 v%d, 0, v%d, s[%d:%d]" % (QP + ui * 4 + 2 + q_, S + ui * 8 + q_, 44 + 2 * q_, 45 + 2 * q_))
    a("s_nop 1")
    for ui, (tb, hd) in enumerate(units):
        for db in range(2):
            a(mfma(vr(S + ui * 8 + db * 4, 4), vr(VV + (hd * 2 + db) * 6 + tb * 2, 4), vr(QP + ui * 4, 4), "0"))
    a("s_lshl_b32 s41, s31, 18")
    a("s_add_u32 s42, s41, %d" % KBS)
    a("s_nop 1")
    for ui, (tb, hd) in enumerate(units):
        if ui == 3:
            a("s_nop 0")
        for i in range(4):
            a("v_cvt_pk_bf16_f32 v%d, v%d, v%d" % (KP + ui * 4 + i, S + ui * 8 + 2 * i, S + ui * 8 + 2 * i + 1))
        a("buffer_store_dwordx4 %s, v%d, s[12:15], s%d offen offset:%d %s" % (vr(KP + ui * 4, 4), VA, 41 + hd, tb * 1024, "sc1"))
    if STM0 not in ("a", "b"):
        stamp(a, 3)
    stamp_store(a, 5, VT, 20, 2)
    a("s_endpgm")
    spin(a, l_slow, l_back, POLL, VP, 33, "s100")
    spin(a, l1s, l1b, POLL1, VP, 33, "s100")
    if VAL1:
        spin(a, les, leb, EPOLL, VP, 33, "s100")

    a.label(helper)
    GO, GC, CD, SV, GA, GT, GW = 1, 2, 4, 8, 16, 24, 32
    a("s_and_b32 s39, s3, 3")
    a("v_and_b32 v3, 255, v0")
    a("v_mov_b32 v100, 0")
    a("v_mov_b32 v101, 1")
    a("v_mov_b32 v102, %d" % CNT)
    for i in range(4):
        a("v_mov_b32 v%d, -1" % (96 + i))
    a("v_lshlrev_b32 v95, 2, v%d" % VL)
    a("s_lshr_b32 s28, s2, 4")
    a("s_lshl_b32 s28, s28, 3")
    a("s_and_b32 s29, s2, 7")
    a("s_add_u32 s28, s28, s29")

    def gemv_addr(kq):
        a("s_lshl_b32 s33, s%d, 8" % kq)
        a("v_add_u32 v%d, s33, v3" % GC)
        a("v_and_b32 v%d, -8, v%d" % (GO, GC))
        a("s_movk_i32 s33, 12288")
        a("v_mul_u32_u24 v%d, s33, v%d" % (GO, GO))
        a("v_lshlrev_b32 v%d, 1, v%d" % (GC, GC))
        a("v_and_b32 v94, 7, v3")
        a("v_lshl_add_u32 v%d, v94, 4, v%d" % (GO, GO))

    def gemv_c():
        a("buffer_load_ushort v%d, v%d, s[44:47], 0 offen" % (CD, GC))

    def gemv_w(colbytes):
        for i in range(8):
            a("buffer_load_dwordx4 %s, v%d, s[48:51], s%d offen nt" % (vr(GW + 4 * i, 4), GO, colbytes))
            a("s_add_u32 s%d, s%d, 12288" % (colbytes, colbytes))

    def gemv_silu():
        a("v_lshlrev_b32 v%d, 16, v%d" % (CD, CD))
        a("v_mul_f32 v%d, 0x%x, v%d" % (CD + 1, NLOG2E, CD))
        a("v_exp_f32 v%d, v%d" % (CD + 1, CD + 1))
        a("v_lshlrev_b32 v%d, 2, v3" % (CD + 2))
        a("v_add_f32 v%d, 1.0, v%d" % (CD + 1, CD + 1))
        a("v_rcp_f32 v%d, v%d" % (CD + 1, CD + 1))
        a("v_and_b32 v%d, -32, v%d" % (CD + 3, CD + 2))
        a("v_mul_f32 v%d, v%d, v%d" % (CD, CD, CD + 1))
        a("v_cvt_pk_bf16_f32 v%d, v%d, v%d" % (CD, CD, CD))
        a("v_lshlrev_b32 v%d, 16, v%d" % (CD, CD))
        a("ds_write_b32 v%d, v%d offset:%d" % (CD + 2, CD, SIL))
        a("ds_read_b128 %s, v%d offset:%d" % (vr(SV, 4), CD + 3, SIL))
        a("ds_read_b128 %s, v%d offset:%d" % (vr(SV + 4, 4), CD + 3, SIL + 16))
        a("s_waitcnt lgkmcnt(0)")

    def gemv_fin(cnt_off, so, done, yng, mid=None):
        if yng is not None:
            gemv_rows(a, 8, GW, SV, GA, GT, yng)
        if mid:
            mid()
        xsum(a, list(range(GA, GA + 8)), list(range(GT, GT + 8)), (8,))
        a("v_lshrrev_b32 v93, 4, v3")
        a("v_lshlrev_b32 v93, 8, v93")
        a("v_lshl_add_u32 v93, v94, 5, v93")
        a("v_add_u32 v93, %d, v93" % RED)
        a("s_waitcnt lgkmcnt(0)")
        a("ds_write_b128 v93, %s" % vr(GA, 4))
        a("ds_write_b128 v93, %s offset:16" % vr(GA + 4, 4))
        a("s_waitcnt lgkmcnt(0)")
        a("s_mov_b64 exec, 1")
        a("ds_add_rtn_u32 v103, v102, v101 offset:%d" % cnt_off)
        a("s_waitcnt lgkmcnt(0)")
        a("v_readfirstlane_b32 s33, v103")
        a("s_mov_b64 exec, -1")
        a("s_cmp_lg_u32 s33, 3")
        a("s_cbranch_scc1 %s" % done)
        a("v_add_u32 v93, %d, v95" % RED)
        for w in range(8):
            a("ds_read2st64_b32 %s, v93 offset0:%d offset1:%d" % (vr(GA + 2 * w, 2), 2 * w, 2 * w + 1))
        a("s_waitcnt lgkmcnt(0)")
        for st in (8, 4, 2, 1):
            for i in range(st):
                a("v_add_f32 v%d, v%d, v%d" % (GA + i, GA + i, GA + st + i))
        a("v_and_b32 v%d, -2, v%d" % (GA, GA))
        a("buffer_store_dword v%d, v95, s[12:15], s%d offen sc1" % (GA, so))

    a("s_lshr_b32 s30, s28, 2")
    a("s_and_b32 s31, s28, 3")
    gemv_addr(31)
    a("s_mul_i32 s34, s31, %d" % MODP)
    a("s_lshl_b32 s33, s30, 8")
    a("s_add_u32 s34, s34, s33")
    a("s_lshl_b32 s35, s30, 7")
    a("s_waitcnt lgkmcnt(0)")
    a("s_barrier")
    srd(a, 12, 20, 4 * MODP, WS_MOD)
    srd(a, 44, 92, 2048)
    srd(a, 48, 94, 1024 * 6144 * 2)
    srd(a, 40, DBG, 256)
    nopub = a.uid("nopub")
    a("s_lshl_b32 s33, s2, 3")
    a("s_add_u32 s33, s33, s3")
    a("s_cmp_lg_u32 s33, %d" % (8 * 8 + 7))
    a("s_cbranch_scc1 %s" % nopub)
    srd(a, 64, 20, 64, WS_FLAG + (5300 << FS))
    a("buffer_load_dword v93, v100, s[64:67], 0 offen sc1")
    a("v_lshlrev_b32 v92, 6, v%d" % VL)
    a("s_waitcnt vmcnt(0)")
    a("v_add_u32 v93, 1, v93")
    a("v_max_u32 v93, 1, v93")
    a("buffer_store_dword v93, v92, s[40:43], 0 offen sc1")
    a("buffer_store_dword v93, v92, s[64:67], 0 offen sc1")
    a.label(nopub)
    a("s_bitcmp0_b32 s2, 3")
    a("s_cselect_b32 s101, 1, 0")
    a("s_cmp_eq_u32 s39, 0")
    a("s_cselect_b32 s36, s101, 0")
    a("s_mul_i32 s14, s36, %d" % (4 * MODP))
    a("buffer_store_dword v96, v95, s[12:15], s34 offen sc1")
    a("s_mov_b32 s14, %d" % (4 * MODP))
    a("s_mul_i32 s50, s101, %d" % (1024 * 6144 * 2))
    gemv_c()
    gemv_w(35)
    srd(a, 52, 98, 1024 * 3072 * 2 if WQPF else 0)
    a("v_lshrrev_b32 v90, 4, v%d" % VL)
    a("s_movk_i32 s33, 6144")
    a("v_mul_u32_u24 v90, s33, v90")
    a("v_and_b32 v91, 15, v%d" % VL)
    a("v_min_u32 v91, 11, v91")
    a("v_and_b32 v92, 3, v91")
    a("v_lshl_add_u32 v90, v92, 7, v90")
    a("v_lshrrev_b32 v91, 2, v91")
    a("v_lshl_add_u32 v90, v91, 11, v90")
    a("s_lshr_b32 s56, s2, 4")
    a("s_lshl_b32 s56, s56, 2")
    a("s_add_u32 s56, s56, s39")
    a("s_mul_i32 s57, s56, %d" % (4 * 6144))
    a("s_bfe_u32 s33, s2, 0x20001")
    a("s_lshl_b32 s33, s33, 9")
    a("s_add_u32 s57, s57, s33")
    nog, join = a.uid("nog"), a.uid("join")
    a("s_cmp_eq_u32 s101, 0")
    a("s_cbranch_scc1 %s" % nog)
    if STM0 == "h":
        stamp(a, 1)
    if SNONCE:
        noflag, lp, ok = a.uid("noflag"), a.uid("nl"), a.uid("nok")
        a("s_cmp_eq_u32 s36, 0")
        a("s_cbranch_scc1 %s" % noflag)
        srd(a, 64, 20, 128 << FS, WS_FLAG + (5120 << FS))
        a("s_mov_b32 s33, %d" % SPIN)
        a.label(lp)
        a("s_load_dword s100, s[%d:%d], s37 glc" % (DBG, DBG + 1))
        a("s_sub_u32 s33, s33, 1")
        a("s_waitcnt lgkmcnt(0)")
        a("s_cmp_lg_u32 s100, 0")
        a("s_cbranch_scc1 %s" % ok)
        a("s_cmp_lg_u32 s33, 0")
        a("s_cbranch_scc1 %s" % lp)
        a.label(ok)
        a("v_mov_b32 v92, s100")
        a("s_lshl_b32 s33, s28, %d" % FS)
        a("s_waitcnt vmcnt(9)")
        a("s_mov_b64 exec, 1")
        a("buffer_store_dword v92, v100, s[64:67], s33 offen sc1")
        a("s_mov_b64 exec, -1")
        a.label(noflag)
    a("s_waitcnt vmcnt(8)")
    if STM0 == "h":
        stamp(a, 2)
    if not SNONCE:
        a(nonce_ld(88, 100))
    gemv_silu()
    g1d = a.uid("g1d")

    def flag1():
        if STM0 == "h":
            stamp(a, 3)
        if SNONCE:
            return
        noflag = a.uid("noflag")
        a("s_cmp_eq_u32 s36, 0")
        a("s_cbranch_scc1 %s" % noflag)
        srd(a, 64, 20, 128 << FS, WS_FLAG + (5120 << FS))
        nonce_get(88, 100, 0)
        a("v_mov_b32 v92, s100")
        a("s_lshl_b32 s33, s28, %d" % FS)
        a("s_mov_b64 exec, 1")
        a("buffer_store_dword v92, v100, s[64:67], s33 offen sc1")
        a("s_mov_b64 exec, -1")
        a.label(noflag)

    gemv_fin(4, 34, g1d, 0 if SNONCE else 1, flag1)
    a("s_mul_i32 s33, s39, %d" % (4 * 6144))
    a("s_sub_u32 s57, s57, s33")
    a("s_add_u32 s57, s57, %d" % (768 * 6144))
    for i in range(4 if HS == "gu" else 0):
        a(touch(89, 90, 52, "s57"))
        a("s_add_u32 s57, s57, %d" % (4 * 6144))
    a.label(g1d)
    if STM0 == "h":
        a("s_mov_b32 s3, s39")
        stamp_store(a, 5, 84, 20, 3)
        a("s_add_u32 s3, s39, 4")
    a("s_branch %s" % join)
    a.label(nog)
    if PFDELAY:
        a("s_waitcnt vmcnt(8)")
    cb_ = a.uid("cb")
    lab = a.uid("pc")
    emit(a, ["s_getpc_b64 s[58:59]", lab + ":", "s_sub_u32 s58, s58, %s-k2_kernel" % lab, "s_subb_u32 s59, s59, 0",
             "s_lshl_b32 s33, s56, 13", "v_lshlrev_b32 v86, 7, v%d" % VL, "v_add_u32 v86, s33, v86",
             "v_min_u32 v86, L_code_end-k2_kernel-4, v86", "v_mov_b32 v87, s59", "v_add_co_u32 v86, vcc, s58, v86", "s_nop 1",
             "v_addc_co_u32 v87, vcc, 0, v87, vcc", "global_load_dword v89, v[86:87], off"])
    for i in range(3 if HS == "gu" else NVT):
        a(touch(89, 90, 52, "s57"))
        a("s_add_u32 s57, s57, %d" % (256 * 6144))
    a.label(join)
    srd(a, 52, 20, 0, WS_STAT)
    srd(a, 56, 20, 0, WS_FLAG)
    a("s_cmp_eq_u32 s39, 1")
    a("s_cselect_b32 s54, 0x40000, 0")
    a("s_cselect_b32 s58, %d, 0" % (4096 << FS))
    a("s_lshl_b32 s33, s2, 10")
    a("buffer_store_dwordx4 v[96:99], v%d, s[52:55], s33 offen sc1" % VHA)
    a("v_min_u32 v92, 15, v%d" % VL)
    a("v_lshlrev_b32 v92, %d, v92" % FS)
    a("s_lshl_b32 s33, s2, %d" % (4 + FS))
    a("buffer_store_dword v96, v92, s[56:59], s33 offen sc1")
    a("s_and_b32 s31, s2, 3")
    a("s_lshr_b32 s30, s2, 2")
    gemv_addr(31)
    a("s_mov_b32 s50, %d" % (1024 * 6144 * 2))
    a("s_mul_i32 s34, s31, %d" % MODP)
    a("s_lshl_b32 s33, s30, 8")
    a("s_add_u32 s34, s34, s33")
    a("s_add_u32 s34, s34, 8192")
    a("s_lshl_b32 s35, s30, 7")
    a("s_add_u32 s35, s35, 4096")
    gemv_c()
    if GV2 == "front":
        gemv_w(35)
        a("s_waitcnt vmcnt(8)")
        gemv_silu()
        g2d = a.uid("g2d")
        gemv_fin(8, 34, g2d, 0)
        a.label(g2d)
        for i in range(3):
            a("s_barrier")
    else:
        for i in range(3):
            a("s_barrier")
        a("s_waitcnt vmcnt(0)")
        gemv_silu()
    if HS == "gu":
        a("s_bitcmp1_b32 s3, 0")
        a("s_cselect_b32 s4, s62, s60")
        a("s_cselect_b32 s5, s63, s61")
        a("s_lshl_b32 s6, s2, 1")
        a("s_bfe_u32 s7, s3, 0x10001")
        a("s_add_u32 s6, s6, s7")
        a("s_lshl_b32 s6, s6, 8")
        a("s_add_u32 s4, s4, s6")
        a("s_addc_u32 s5, s5, 0")
        body = ["s_load_dword s%d, s[4:5], %d" % (52 + i, i * 64) for i in range(4)]
        body += ["s_add_u32 s4, s4, %d" % (512 * 256), "s_addc_u32 s5, s5, 0"]
    else:
        a("s_lshr_b32 s6, s2, 3")
        a("s_lshl_b32 s6, s6, 2")
        a("s_add_u32 s6, s6, s39")
        a("s_min_u32 s6, s6, 125")
        a("s_mul_i32 s7, s6, 43")
        a("s_lshr_b32 s7, s7, 8")
        a("s_mul_i32 s33, s7, 6")
        a("s_sub_u32 s6, s6, s33")
        a("s_mul_i32 s7, s7, 6144")
        a("s_lshr_b32 s33, s6, 1")
        a("s_lshl_b32 s33, s33, 11")
        a("s_add_u32 s7, s7, s33")
        a("s_and_b32 s33, s6, 1")
        a("s_lshl_b32 s33, s33, 8")
        a("s_add_u32 s7, s7, s33")
        a("s_bfe_u32 s33, s2, 0x20001")
        a("s_lshl_b32 s33, s33, 9")
        a("s_add_u32 s7, s7, s33")
        a("s_add_u32 s7, s7, %d" % ((1024 - 21 * NRND) * 6144))
        a("s_add_u32 s4, s98, s7")
        a("s_addc_u32 s5, s99, 0")
        body = ["s_load_dword s%d, s[4:5], %d" % (52 + i, i * 64) for i in range(4)]
        body += ["s_add_u32 s4, s4, %d" % (21 * 6144), "s_addc_u32 s5, s5, 0"]
        assert all((q * 43) >> 8 == q // 6 for q in range(126))
    nb = 3
    srd(a, 56, 20, 0x800000, WS_XCH)
    a("s_lshl_b32 s36, s2, 2")
    a("s_add_u32 s36, s36, s39")
    a("s_lshl_b32 s36, s36, 13")
    pst = ["buffer_store_dwordx4 v[96:99], v%d, s[56:59], s36 offen sc1" % VHA, "s_add_u32 s36, s36, 1024"]
    if GV2 == "spread":
        b = Asm()
        gemv_rows(b, 8, GW, SV, GA, GT, 0)
        rows = [x for x in lines(b) if not x.startswith("s_waitcnt")]
        assert len(rows) == 128
        for k in range(nb, 34):
            i = k - nb
            if i < 28:
                emit(a, body)
            if i % GSP == 0 and 2 <= i // GSP < 10:
                r_ = i // GSP - 2
                a("s_waitcnt vmcnt(%d)" % (1 if r_ < 7 else 0))
                emit(a, rows[16 * r_:16 * r_ + 16])
            if i % GSP == 0 and i // GSP < 8:
                if i // GSP < 4:
                    emit(a, pst)
                a("buffer_load_dwordx4 %s, v%d, s[48:51], s35 offen nt" % (vr(GW + 4 * (i // GSP), 4), GO))
                a("s_add_u32 s35, s35, 12288")
            if k == 33:
                g2d = a.uid("g2d")
                gemv_fin(8, 34, g2d, None)
                a.label(g2d)
            a("s_barrier")
        assert 9 * GSP < 33 - nb
    else:
        rounds = 28 if HS == "gu" else NRND
        paced(a, 4, body + ["s_barrier"] + body + ["s_barrier"] + body + ["s_barrier"] + body + pst)
        paced(a, GV_AT - nb - 16, body)
        assert GV_AT - nb <= rounds
        if GV2 != "front":
            gemv_w(35)
        yng = 0
        for i in range(34 - GV_AT):
            if GV_AT - nb + i < rounds:
                emit(a, body)
            if HS != "gu" and GV_AT + i == GU_AT:
                emit(a, ["s_bitcmp1_b32 s3, 0", "s_cselect_b32 s56, s62, s60", "s_cselect_b32 s57, s63, s61",
                         "s_mov_b32 s58, %d" % WF_BYTES, "s_lshl_b32 s6, s2, 1", "s_bfe_u32 s7, s3, 0x10001", "s_add_u32 s6, s6, s7",
                         "s_mul_i32 s6, s6, 7168", "v_min_u32 v96, 55, v%d" % VL, "v_lshlrev_b32 v96, 7, v96", touch(97, 96, 56, "s6")])
                yng = 1
            a("s_barrier")
        if GV2 != "front":
            gemv_fin(8, 34, end, yng)
    a.label(end)
    a("s_endpgm")
    a.end_kernel(name, 256, 0, 102)
    a.launch(name, 256, 512, 82944)


def gen_k012b(a, name="k2_kernel", R=4, **opts):
    SLOT = 13312
    XCH = 0
    ACC = 0
    VL, VA, VH, VW, VT = 104, 105, 106, 107, 110
    VDS = 114
    VHA = VDS + 5
    WF = 132
    ACT = 212
    TBL = R * SLOT
    SIL = TBL + 8192
    STS = SIL + 1024
    CNT = STS + 1280
    RED = CNT + 64
    RED2 = CNT + 64
    VFL, VP, VF1 = 129, 130, 131
    a.begin_kernel(name)
    end = a.uid("end")
    helper, lnrole, front = a.uid("helper"), a.uid("lnrole"), a.uid("front")
    a("s_cmp_ge_u32 s2, 256")
    a("s_cbranch_scc1 %s" % end)
    stamp(a, 0)
    a("s_load_dwordx4 s[96:99], s[0:1], %d" % KA_X)
    a("s_load_dwordx4 s[92:95], s[0:1], %d" % KA_C)
    a("s_load_dwordx2 s[90:91], s[0:1], %d" % KA_DBG)
    a("s_load_dwordx2 s[20:21], s[0:1], %d" % KA_WS)
    a("s_load_dwordx2 s[26:27], s[0:1], %d" % KA_WO)
    a("s_load_dwordx4 s[60:63], s[0:1], %d" % KA_WG)
    DBG = 90
    wave_lane(a, VL, VT)
    a("v_lshlrev_b32 v%d, 4, v%d" % (VHA, VL))
    a("v_mov_b32 v100, 0")
    a("v_mov_b32 v128, v0")
    a("s_lshr_b32 s28, s2, 4")
    a("s_lshl_b32 s28, s28, 3")
    a("s_and_b32 s29, s2, 7")
    a("s_add_u32 s28, s28, s29")
    a("s_and_b32 s37, s2, 3")
    a("s_lshl_b32 s37, s37, 6")

    def nonce_ld(vd, vz):
        return "buffer_load_dword v%d, v%d, s[40:43], s37 offen sc1" % (vd, vz)

    def nonce_get(vd, vz, cnt):
        lp, ok = a.uid("nl"), a.uid("nok")
        a("s_mov_b32 s33, %d" % SPIN)
        a("s_waitcnt vmcnt(%d)" % cnt)
        a.label(lp)
        a("v_readfirstlane_b32 s100, v%d" % vd)
        a("s_cmp_lg_u32 s100, 0")
        a("s_cbranch_scc1 %s" % ok)
        a(nonce_ld(vd, vz))
        a("s_sub_u32 s33, s33, 1")
        a("s_waitcnt vmcnt(0)")
        a("s_cmp_lg_u32 s33, 0")
        a("s_cbranch_scc1 %s" % lp)
        a.label(ok)

    CS = 4 * NQ1 - R + 1
    q0 = []

    def vm(tag, inss):
        for x in inss:
            a(x)
            if is_vmem(x):
                q0.append(tag)

    def vm_w(slot):
        return [["s_add_u32 m0, s38, %d" % (slot * SLOT), "s_nop 0",
                 "buffer_load_dwordx4 v%d, s[8:11], s17 offen lds" % VW],
                ["buffer_load_dwordx4 v%d, s[8:11], s17 offen offset:1024 lds" % (VW + 1)],
                ["buffer_load_dwordx4 v%d, s[8:11], s17 offen offset:2048 lds" % (VW + 2),
                 "s_add_u32 s17, s17, %d" % (32 * 6144)],
                ["s_add_u32 m0, s39, %d" % (slot * SLOT), "s_nop 0",
                 "buffer_load_dword v%d, s[4:7], s19 offen sc1 lds" % VH, "s_add_u32 s19, s19, %d" % KBS]]

    def vm_a(buf):
        return [["buffer_load_dwordx4 %s, v%d, s[4:7], s16 offen sc1" % (vr(ACT + buf * 8, 4), VA)],
                ["buffer_load_dwordx4 %s, v%d, s[4:7], s16 offen offset:1024 sc1" % (vr(ACT + buf * 8 + 4, 4), VA),
                 "s_add_u32 s16, s16, %d" % KBS]]

    def setup(dma=True):
        sk = a.uid("sk")
        a("s_and_b32 s32, s2, 7")
        a("s_lshr_b32 s34, s2, 3")
        a("s_and_b32 s30, s32, 1")
        a("s_lshl_b32 s30, s30, 3")
        a("s_and_b32 s31, s34, 7")
        a("s_add_u32 s30, s30, s31")
        a("s_lshr_b32 s31, s32, 1")
        a("s_lshl_b32 s31, s31, 2")
        a("s_lshr_b32 s34, s34, 3")
        a("s_add_u32 s31, s31, s34")
        a("v_lshrrev_b32 v%d, 3, v%d" % (VT, VL))
        a("v_and_b32 v%d, 6, v%d" % (VT + 1, VT))
        a("v_and_b32 v%d, 7, v%d" % (VT + 2, VL))
        a("v_xor_b32 v%d, v%d, v%d" % (VT + 1, VT + 1, VT + 2))
        a("s_movk_i32 s33, 6144")
        a("v_mul_u32_u24 v%d, s33, v%d" % (VT, VT))
        a("v_lshl_add_u32 v%d, v%d, 4, v%d" % (VT, VT + 1, VT))
        a("s_mul_i32 s32, s3, %d" % (8 * 6144))
        a("s_lshl_b32 s33, s31, 7")
        a("s_add_u32 s32, s32, s33")
        a("v_add_u32 v%d, s32, v%d" % (VW, VT))
        a("v_add_u32 v%d, 1024, v%d" % (VW + 1, VW))
        a("v_add_u32 v%d, 2048, v%d" % (VW + 2, VW))
        a("s_mul_i32 s38, s3, 3072")
        a("s_lshl_b32 s39, s3, 8")
        a("s_add_u32 s39, s39, 12288")
        a("s_mov_b32 s16, 0")
        a("s_mov_b32 s17, 0")
        a("s_mov_b32 s19, 0")
        srd(a, 8, 98, 1024 * 3072 * 2)

        if dma:
            a("s_cmp_ge_u32 s3, 4")
            a("s_cbranch_scc1 %s" % sk)
            for t in range(3):
                emit(a, flat(vm_w(t)[:3]))
            a.label(sk)
        srd(a, 4, 20, ACT_BYTES, WS_H1)
        a("s_lshl_b32 s33, s30, 3")
        a("s_lshl_b32 s35, s3, 1")
        a("s_add_u32 s35, s35, s33")
        a("s_lshl_b32 s35, s35, 3")
        a("s_max_u32 s33, s33, 1")
        a("s_sub_u32 s33, s33, 1")
        a("s_lshl_b32 s33, s33, 3")
        a("v_and_b32 v%d, 7, v%d" % (VT, VL))
        a("v_add_u32 v%d, s33, v%d" % (VT, VT))
        a("v_add_u32 v%d, s35, v%d" % (VFL, VL))
        a("v_cmp_lt_u32 vcc, 15, v%d" % VL)
        a("s_nop 1")
        a("v_cndmask_b32 v%d, v%d, v%d, vcc" % (VFL, VFL, VT))
        a("v_and_b32 v%d, %d, v%d" % (VF1, -8 | (NQ1 - 1), VFL))
        a("v_lshlrev_b32 v%d, %d, v%d" % (VFL, FS, VFL))
        a("v_lshlrev_b32 v%d, %d, v%d" % (VF1, FS, VF1))
        a("s_lshl_b32 s32, s30, 13")
        a("s_lshl_b32 s33, s3, 11")
        a("s_add_u32 s32, s32, s33")
        a("v_add_u32 v%d, s32, v%d" % (VA, VHA))
        a("s_lshl_b32 s32, s30, 3")
        a("s_max_u32 s32, s32, 1")
        a("s_sub_u32 s32, s32, 1")
        a("s_lshl_b32 s32, s32, 10")
        a("s_lshl_b32 s33, s3, 8")
        a("s_add_u32 s32, s32, s33")
        a("v_lshlrev_b32 v%d, 2, v%d" % (VH, VL))
        a("v_add_u32 v%d, s32, v%d" % (VH, VH))
        a("v_lshrrev_b32 v%d, 5, v%d" % (VT, VL))
        a("v_mul_u32_u24 v%d, 3072, v%d" % (VT, VT))
        a("v_bfe_u32 v%d, v%d, 2, 3" % (VT + 1, VL))
        a("v_lshl_add_u32 v%d, v%d, 7, v%d" % (VT, VT + 1, VT))
        a("v_bfe_u32 v%d, v%d, 3, 2" % (VT + 1, VL))
        a("v_lshl_add_u32 v%d, v%d, 5, v%d" % (VT, VT + 1, VT))
        a("v_and_b32 v%d, 3, v%d" % (VT + 1, VL))
        a("v_lshl_add_u32 v%d, v%d, 3, v%d" % (VDS, VT + 1, VT))
        for jj in range(1, 4):
            a("v_xor_b32 v%d, %d, v%d" % (VDS + jj, jj << 5, VDS))
        a("s_lshl_b32 s33, s3, 5")
        a("v_xor_b32 v%d, s33, v%d" % (VDS + 4, VDS))
        a("v_and_b32 v%d, 14, v%d" % (VT, VL))
        a("v_lshrrev_b32 v%d, 4, v%d" % (VT + 1, VL))
        a("v_lshlrev_b32 v%d, 2, v%d" % (VT + 1, VT + 1))
        a("v_cmp_le_u32 s[44:45], v%d, v%d" % (VT + 1, VT))
        a("v_add_u32 v%d, 2, v%d" % (VT + 1, VT + 1))
        a("v_cmp_le_u32 s[46:47], v%d, v%d" % (VT + 1, VT))
        a("v_and_b32 v%d, 1, v%d" % (VT, VL))
        a("v_cmp_eq_u32 s[48:49], 1, v%d" % VT)

    def tl_warm(vd, va):
        srd(a, 52, 20, 0, 0)
        a("s_cmp_eq_u32 s3, 6")
        a("s_cselect_b32 s54, 0x500000, 0")
        a("s_mov_b32 s33, %d" % PW)
        a("v_mul_lo_u32 v%d, s33, v%d" % (va, VL))
        a("s_and_b32 s33, s2, 0xf8")
        a("s_lshl_b32 s33, s33, 4")
        a("buffer_load_dword v%d, v%d, s[52:55], s33 offen sc1" % (vd, va))

    def pf_addr():
        srd(a, 52, 98, PFROWS * 6144)
        a("v_lshrrev_b32 v90, 4, v%d" % VL)
        a("s_movk_i32 s33, 6144")
        a("v_mul_u32_u24 v90, s33, v90")
        a("v_and_b32 v91, 15, v%d" % VL)
        a("v_min_u32 v91, 11, v91")
        a("v_and_b32 v92, 3, v91")
        a("v_lshl_add_u32 v90, v92, 7, v90")
        a("v_lshrrev_b32 v91, 2, v91")
        a("v_lshl_add_u32 v90, v91, 11, v90")
        a("s_lshr_b32 s56, s2, 4")
        a("s_lshl_b32 s33, s3, 4")
        a("s_add_u32 s56, s56, s33")
        a("s_mul_i32 s57, s56, %d" % (4 * 6144))
        a("s_bfe_u32 s33, s2, 0x20001")
        a("s_lshl_b32 s33, s33, 9")
        a("s_add_u32 s57, s57, s33")

    a("s_bitcmp1_b32 s2, 3")
    a("s_cbranch_scc1 %s" % lnrole)
    GO, GC, CD, SV, GA, GT, GW = 1, 2, 4, 8, 16, 24, 32
    a("s_lshr_b32 s30, s28, 2")
    a("s_and_b32 s31, s28, 3")
    a("v_lshrrev_b32 v%d, 3, v0" % GO)
    a("v_lshlrev_b32 v%d, 2, v%d" % (GO, GO))
    a("s_lshl_b32 s33, s31, 8")
    a("v_add_u32 v%d, s33, v%d" % (GO, GO))
    a("v_lshlrev_b32 v%d, 1, v%d" % (GC, GO))
    a("s_movk_i32 s33, 12288")
    a("v_mul_u32_u24 v%d, s33, v%d" % (GO, GO))
    a("v_and_b32 v94, 7, v0")
    a("v_lshl_add_u32 v%d, v94, 4, v%d" % (GO, GO))
    a("s_lshl_b32 s35, s30, 7")
    a("s_mul_i32 s34, s31, %d" % MODP)
    a("s_lshl_b32 s33, s30, 8")
    a("s_add_u32 s34, s34, s33")
    a("v_lshlrev_b32 v95, 2, v%d" % VL)
    a("v_mov_b32 v96, -1")
    a("s_waitcnt lgkmcnt(0)")
    if STM0 == "c":
        stamp(a, 1)
    srd(a, 44, 92, 2048)
    srd(a, 48, 94, 1024 * 6144 * 2)
    a("buffer_load_dwordx2 %s, v%d, s[44:47], 0 offen" % (vr(CD, 2), GC))
    for i in range(4):
        a("buffer_load_dwordx4 %s, v%d, s[48:51], s35 offen nt" % (vr(GW + 4 * i, 4), GO))
        a("s_add_u32 s35, s35, 12288")
    srd(a, 12, 20, 4 * MODP, WS_MOD)
    srd(a, 40, DBG, 256)
    srd(a, 64, 20, 2048 << FS, WS_FLAG + (4096 << FS))
    a("s_cmp_eq_u32 s3, 1")
    a("s_cselect_b32 s14, %d, 0" % (4 * MODP))
    a("buffer_store_dword v96, v95, s[12:15], s34 offen sc1")
    a("s_mov_b32 s14, %d" % (4 * MODP))
    gy = 0
    if PW:
        tl_warm(87, 86)
    pf_addr()
    if PFM == "early":
        a("s_barrier")
        a("s_add_u32 s57, s57, %d" % (512 * 6144))
        a(touch(VT + 3, 90, 52, "s57"))
        gy = 1
    a("s_mov_b32 s32, 0x%x" % NLOG2E)
    wy = 1 if PW else 0
    a("s_waitcnt vmcnt(%d)" % (5 + gy + wy))
    if STM0 == "c":
        stamp(a, 2)
    if not gy:
        a(nonce_ld(88, 100))
    for i in range(2):
        a("v_lshlrev_b32 v%d, 16, v%d" % (SV + 2 * i, CD + i))
        a("v_and_b32 v%d, 0xffff0000, v%d" % (SV + 2 * i + 1, CD + i))
    silu_bf16(a, SV, 4, GT, 32)
    gemv_rows(a, 4, GW, SV, GA, GT, 2 + wy)
    if STM0 == "c":
        stamp(a, 3)
    xsum(a, list(range(GA, GA + 8)), list(range(GT, GT + 8)), (8,))
    a("v_lshrrev_b32 v93, 4, v0")
    a("v_lshlrev_b32 v93, 8, v93")
    a("v_lshl_add_u32 v93, v94, 5, v93")
    a("ds_write_b128 v93, %s offset:%d" % (vr(GA, 4), TBL))
    a("ds_write_b128 v93, %s offset:%d" % (vr(GA + 4, 4), TBL + 16))
    a("s_waitcnt vmcnt(1) lgkmcnt(0)")
    if gy:
        a(nonce_ld(88, 100))
    a("s_barrier")
    pfgo = a.uid("pfgo")
    a("s_cmp_lg_u32 s3, 0")
    a("s_cbranch_scc1 %s" % pfgo)
    a("v_add_u32 v93, %d, v95" % TBL)
    for w in range(16):
        a("ds_read2st64_b32 %s, v93 offset0:%d offset1:%d" % (vr(GW + 2 * w, 2), 2 * w, 2 * w + 1))
    a("s_waitcnt lgkmcnt(0)")
    for st in (16, 8, 4, 2):
        for i in range(0, st, 2):
            a("v_pk_add_f32 %s, %s, %s" % (vr(GW + i, 2), vr(GW + i, 2), vr(GW + st + i, 2)))
    a("v_add_f32 v%d, v%d, v%d" % (GW, GW, GW + 1))
    a("v_and_b32 v%d, -2, v%d" % (GW, GW))
    a("buffer_store_dword v%d, v95, s[12:15], s34 offen sc1" % GW)
    a.label(pfgo)
    if STM0 == "d":
        stamp(a, 1)
    nonce_get(88, 100, 0)
    if STM0 == "d":
        stamp(a, 2)
    notw1 = a.uid("notw1")
    a("s_cmp_lg_u32 s3, 1")
    a("s_cbranch_scc1 %s" % notw1)
    a("v_mov_b32 v92, s100")
    a("s_add_u32 s33, s28, 1024")
    a("s_lshl_b32 s33, s33, %d" % FS)
    a("s_mov_b64 exec, 1")
    a("buffer_store_dword v92, v100, s[64:67], s33 offen sc1")
    a("s_mov_b64 exec, -1")
    a.label(notw1)
    a("s_barrier")
    lab = a.uid("pc")
    emit(a, ["s_getpc_b64 s[58:59]", lab + ":", "s_sub_u32 s58, s58, %s-k2_kernel" % lab, "s_subb_u32 s59, s59, 0",
             "s_lshl_b32 s33, s56, 13", "v_lshlrev_b32 v86, 7, v%d" % VL, "v_add_u32 v86, s33, v86",
             "v_min_u32 v86, L_code_end-k2_kernel-4, v86", "v_mov_b32 v87, s59", "v_add_co_u32 v86, vcc, s58, v86", "s_nop 1",
             "v_addc_co_u32 v87, vcc, 0, v87, vcc", "global_load_dword v%d, v[86:87], off" % (VT + 3)])
    if PFM == "mixed":
        a("s_add_u32 s57, s57, %d" % (512 * 6144))
    for i in range({"late": 2, "mixed": 1, "early": 0, "ln2": 0}[PFM]):
        a(touch(VT + 3, 90, 52, "s57"))
        a("s_add_u32 s57, s57, %d" % (512 * 6144))
    if GV2 == "role":
        a("s_lshl_b32 s35, s30, 8")
        a("s_add_u32 s35, s35, 4096")
        for i in range(4):
            for u in range(2):
                a("buffer_load_dwordx4 %s, v%d, s[48:51], s35 offen offset:%d nt" % (vr(GW + u * 16 + 4 * i, 4), GO, u * 128))
            a("s_add_u32 s35, s35, 12288")
        a("v_lshrrev_b32 v93, 4, v0")
        a("v_lshlrev_b32 v93, 8, v93")
        a("v_lshl_add_u32 v93, v94, 5, v93")
        a("v_add_u32 v93, %d, v93" % RED2)
        a("s_waitcnt vmcnt(0)")
        for u in range(2):
            b = Asm()
            gemv_rows(b, 4, GW + u * 16, SV, GA, GT, 0)
            emit(a, [x for x in lines(b) if not x.startswith("s_waitcnt")])
            xsum(a, list(range(GA, GA + 8)), list(range(GT, GT + 8)), (8,))
            a("ds_write_b128 v93, %s offset:%d" % (vr(GA, 4), u * 8192))
            a("ds_write_b128 v93, %s offset:%d" % (vr(GA + 4, 4), u * 8192 + 16))
            a("s_nop 1")
        a("s_waitcnt lgkmcnt(0)")
        a("s_barrier")
        g2d = a.uid("g2d")
        a("s_cmp_lt_u32 s3, 6")
        a("s_cbranch_scc1 %s" % g2d)
        a("s_and_b32 s33, s3, 1")
        a("s_lshl_b32 s32, s33, 13")
        a("s_add_u32 s32, s32, %d" % RED2)
        a("v_add_u32 v93, s32, v95")
        for w in range(16):
            a("ds_read2st64_b32 %s, v93 offset0:%d offset1:%d" % (vr(GW + 2 * w, 2), 2 * w, 2 * w + 1))
        a("s_mul_i32 s34, s31, %d" % MODP)
        a("s_lshl_b32 s32, s30, 9")
        a("s_add_u32 s34, s34, s32")
        a("s_lshl_b32 s32, s33, 8")
        a("s_add_u32 s34, s34, s32")
        a("s_add_u32 s34, s34, 8192")
        a("s_waitcnt lgkmcnt(0)")
        for st in (16, 8, 4, 2, 1):
            for i in range(st):
                a("v_add_f32 v%d, v%d, v%d" % (GW + i, GW + i, GW + st + i))
        a("buffer_store_dword v%d, v95, s[12:15], s34 offen sc1" % GW)
        a.label(g2d)
    if STM0 == "a":
        for q in (1, 2):
            stamp(a, q)
    if STM0 == "d":
        stamp(a, 3)
    if STM0 == "e":
        for q in (1, 2, 3):
            stamp(a, q)
    if SETUP_LN != "front":
        setup(SETUP_LN != "split")
    a("s_branch %s" % front)

    a.label(lnrole)
    VI, VD, VM = 1, 3, 4
    XD, XF, MD, T2, ML, SH, SC = 8, 24, 56, 66, 72, 132, 164
    a("v_bfe_u32 v%d, v%d, 4, 1" % (T2, VL))
    a("v_lshlrev_b32 v%d, 5, v%d" % (VD, T2))
    a("v_lshrrev_b32 v%d, 5, v%d" % (T2, VL))
    a("v_lshl_add_u32 v%d, v%d, 4, v%d" % (VD, T2, VD))
    a("v_and_b32 v%d, 15, v%d" % (T2, VL))
    a("v_lshl_add_u32 v%d, v%d, 11, v%d" % (VI, T2, VD))
    a("s_lshl_b32 s35, s28, 15")
    a("s_lshl_b32 s30, s3, 8")
    a("s_add_u32 s35, s35, s30")
    a("s_waitcnt lgkmcnt(0)")
    if STM0 == "c":
        stamp(a, 1)
    srd(a, 12, 96, ACT_BYTES)
    for i in range(4):
        a("buffer_load_dwordx4 %s, v%d, s[12:15], s35 offen offset:%d" % (vr(XD + 4 * i, 4), VI, i * 64))
    srd(a, 40, DBG, 256)
    nopub = a.uid("nopub")
    a("s_lshl_b32 s33, s2, 3")
    a("s_add_u32 s33, s33, s3")
    a("s_cmp_lg_u32 s33, %d" % (8 * 8 + 7))
    a("s_cbranch_scc1 %s" % nopub)
    srd(a, 64, 20, 64, WS_FLAG + (5300 << FS))
    a("s_load_dword s33, s[64:65], 0 glc")
    a("v_lshlrev_b32 v92, 6, v%d" % VL)
    a("s_waitcnt lgkmcnt(0)")
    a("s_add_u32 s33, s33, 1")
    a("s_max_u32 s33, s33, 1")
    a("v_mov_b32 v93, s33")
    a("buffer_store_dword v93, v92, s[40:43], 0 offen sc1")
    a("buffer_store_dword v93, v92, s[64:67], 0 offen sc1")
    a.label(nopub)
    srd(a, 64, 20, 2048 << FS, WS_FLAG + (4096 << FS))
    srd(a, 12, 20, 4 * MODP, WS_MOD)
    srd(a, 4, 20, ACT_BYTES, WS_H1)
    a("s_lshl_b32 s30, s3, 9")
    a("v_lshlrev_b32 v%d, 1, v%d" % (VD, VD))
    a("v_add_u32 v%d, s30, v%d" % (VD, VD))
    a("v_and_b32 v%d, 31, v%d" % (T2, VL))
    a("v_lshlrev_b32 v5, 4, v%d" % T2)
    a("v_add_u32 v5, s30, v5")
    a("v_lshrrev_b32 v%d, 5, v%d" % (T2, VL))
    a("s_movk_i32 s33, %d" % MODP)
    a("v_mul_u32_u24 v%d, s33, v%d" % (VM, T2))
    a("v_add_u32 v%d, v5, v%d" % (VM, VM))
    a("v_and_b32 v6, 7, v%d" % VL)
    a("v_bfe_u32 v%d, v%d, 3, 1" % (T2, VL))
    a("v_lshl_add_u32 v6, v%d, 6, v6" % T2)
    a("s_lshl_b32 s33, s3, 3")
    a("s_add_u32 s33, s33, 1024")
    a("v_add_u32 v6, s33, v6")
    a("v_lshlrev_b32 v6, %d, v6" % FS)
    PR = [22, 23, 24, 25]
    for q, v in enumerate((0, 2 * MODP, 4096, 2 * MODP + 4096)):
        a("s_mov_b32 s%d, %d" % (PR[q], v))
    a("s_lshl_b32 s36, s28, 3")
    a("s_add_u32 s36, s36, s3")
    a("s_lshl_b32 s36, s36, %d" % FS)
    if PFM != "late":
        pf_addr()
        a("s_barrier")
        a(touch(89, 90, 52, "s57"))
        if PFM == "ln2":
            a("s_add_u32 s57, s57, %d" % (512 * 6144))
            a(touch(89, 90, 52, "s57"))
        a("s_waitcnt vmcnt(%d)" % (2 if PFM == "ln2" else 1))
    elif PW:
        tl_warm(89, 90)
        a("s_waitcnt vmcnt(1)")
    else:
        a("s_waitcnt vmcnt(0)")
    if STM0 == "c":
        stamp(a, 2)
    a(nonce_ld(VT + 3, 100))
    for i in range(16):
        a("v_lshlrev_b32 v%d, 16, v%d" % (XF + 2 * i, XD + i))
        a("v_and_b32 v%d, 0xffff0000, v%d" % (XF + 2 * i + 1, XD + i))
    a("v_pk_add_f32 %s, %s, %s" % (vr(T2, 2), vr(XF, 2), vr(XF + 2, 2)))
    a("v_pk_add_f32 %s, %s, %s" % (vr(T2 + 2, 2), vr(XF + 4, 2), vr(XF + 6, 2)))
    for i in range(2, 8):
        a("v_pk_add_f32 %s, %s, %s" % (vr(T2, 2), vr(T2, 2), vr(XF + 4 * i, 2)))
        a("v_pk_add_f32 %s, %s, %s" % (vr(T2 + 2, 2), vr(T2 + 2, 2), vr(XF + 4 * i + 2, 2)))
    a("v_pk_add_f32 %s, %s, %s" % (vr(T2, 2), vr(T2, 2), vr(T2 + 2, 2)))
    a("v_add_f32 v%d, v%d, v%d" % (T2, T2, T2 + 1))
    xsum(a, [T2], [T2 + 1], (16, 32))
    a("v_mul_f32 v%d, 0x%x, v%d" % (MD, f32bits(1.0 / 128), T2))
    a("v_mov_b32 v%d, v%d" % (MD + 1, MD))
    for i in range(16):
        t = T2 + 2 * (i & 1)
        d = vr(MD + 4 + 2 * (i & 1), 2)
        a("v_pk_add_f32 %s, %s, %s neg_lo:[0,1] neg_hi:[0,1]" % (d, vr(XF + 2 * i, 2), vr(MD, 2)))
        if i < 2:
            a("v_pk_mul_f32 %s, %s, %s" % (vr(t, 2), d, d))
        else:
            a("v_pk_fma_f32 %s, %s, %s, %s" % (vr(t, 2), d, d, vr(t, 2)))
    a("v_pk_add_f32 %s, %s, %s" % (vr(T2, 2), vr(T2, 2), vr(T2 + 2, 2)))
    a("v_add_f32 v%d, v%d, v%d" % (MD + 1, T2, T2 + 1))
    xsum(a, [MD + 1], [T2 + 1], (16, 32))
    a("v_and_b32 v%d, 15, v%d" % (T2 + 4, VL))
    a("v_mul_u32_u24 v%d, 80, v%d" % (T2 + 4, T2 + 4))
    a("s_lshl_b32 s30, s3, 3")
    a("v_add_u32 v%d, s30, v%d" % (T2 + 5, T2 + 4))
    a("ds_write_b64 v%d, %s offset:%d" % (T2 + 5, vr(MD, 2), STS))
    CPOLL = "buffer_load_dword v%d, v6, s[64:67], 0 offen sc1" % VP
    a(CPOLL)
    a("s_waitcnt lgkmcnt(0)")
    a("s_barrier")
    G = ML
    for q in range(4):
        a("ds_read_b128 %s, v%d offset:%d" % (vr(G + 4 * q, 4), T2 + 4, STS + 16 * q))
    a("s_waitcnt lgkmcnt(0)")
    a("v_pk_add_f32 %s, %s, %s" % (vr(T2, 2), vr(G, 2), vr(G + 2, 2)))
    a("v_pk_add_f32 %s, %s, %s" % (vr(T2 + 2, 2), vr(G + 4, 2), vr(G + 6, 2)))
    for q in (8, 12):
        a("v_pk_add_f32 %s, %s, %s" % (vr(T2, 2), vr(T2, 2), vr(G + q, 2)))
        a("v_pk_add_f32 %s, %s, %s" % (vr(T2 + 2, 2), vr(T2 + 2, 2), vr(G + q + 2, 2)))
    a("v_pk_add_f32 %s, %s, %s" % (vr(T2, 2), vr(T2, 2), vr(T2 + 2, 2)))
    a("v_mul_f32 v%d, 0x3e000000, v%d" % (MD, T2))
    for q in range(8):
        a("v_sub_f32 v%d, v%d, v%d" % (G + 2 * q, G + 2 * q, MD))
    a("v_mul_f32 v%d, v%d, v%d" % (T2 + 2, G, G))
    for q in range(1, 8):
        a("v_fmac_f32 v%d, v%d, v%d" % (T2 + 2, G + 2 * q, G + 2 * q))
    a("v_mul_f32 v%d, 0x%x, v%d" % (MD + 4, f32bits(1.0 / 1024), T2 + 1))
    a("v_fmac_f32 v%d, 0x3e000000, v%d" % (MD + 4, T2 + 2))
    ln_finish(a, MD)
    a("s_barrier")
    for i in range(16):
        a("v_pk_add_f32 %s, %s, %s neg_lo:[0,1] neg_hi:[0,1]" % (vr(XF + 2 * i, 2), vr(XF + 2 * i, 2), vr(MD, 2)))
    for i in range(16):
        a("v_pk_mul_f32 %s, %s, %s" % (vr(XF + 2 * i, 2), vr(XF + 2 * i, 2), vr(MD + 4, 2)))
    if STM0 == "a":
        stamp(a, 1)
    if STM0 == "c":
        stamp(a, 3)
    nonce_get(VT + 3, 100, 1)
    if STM0 == "d":
        stamp(a, 1)
    if SETUP_LN != "front":
        setup(SETUP_LN != "split")
    lp, ok = a.uid("cnt"), a.uid("cok")
    a("s_mov_b32 s33, %d" % SPIN)
    a.label(lp)
    a("s_waitcnt vmcnt(0)")
    a("v_cmp_ne_u32 vcc, s100, v%d" % VP)
    a("s_nop 1")
    a("s_cmp_eq_u64 vcc, 0")
    a("s_cbranch_scc1 %s" % ok)
    a(CPOLL)
    a("s_sub_u32 s33, s33, 1")
    a("s_cmp_lg_u32 s33, 0")
    a("s_cbranch_scc1 %s" % lp)
    a.label(ok)
    if STM0 == "d":
        stamp(a, 2)
    lp, ok = a.uid("mod"), a.uid("mok")
    a("s_mov_b32 s33, %d" % SPIN)
    a.label(lp)
    for q in range(4):
        a("buffer_load_dwordx4 %s, v%d, s[12:15], s%d offen sc1" % (vr(ML + q * 4, 4), VM, PR[q]))
    for i in range(4):
        a("s_waitcnt vmcnt(%d)" % (3 - i))
        if i == 0:
            a("v_max3_u32 v%d, v%d, v%d, v%d" % (T2, ML, ML + 1, ML + 2))
            a("v_max_u32 v%d, v%d, v%d" % (T2, T2, ML + 3))
        else:
            a("v_max3_u32 v%d, v%d, v%d, v%d" % (T2, T2, ML + i * 4, ML + i * 4 + 1))
            a("v_max3_u32 v%d, v%d, v%d, v%d" % (T2, T2, ML + i * 4 + 2, ML + i * 4 + 3))
    a("v_cmp_eq_u32 vcc, -1, v%d" % T2)
    a("s_nop 1")
    a("s_cmp_eq_u64 vcc, 0")
    a("s_cbranch_scc1 %s" % ok)
    a("s_sub_u32 s33, s33, 1")
    a("s_cmp_lg_u32 s33, 0")
    a("s_cbranch_scc1 %s" % lp)
    a.label(ok)
    if STM0 == "a":
        stamp(a, 2)
    if STM0 == "d":
        stamp(a, 3)
    if STM0 == "e":
        stamp(a, 1)
    for v in range(2):
        for e in (0, 2):
            a("v_pk_add_f32 %s, %s, %s" % (vr(ML + v * 4 + e, 2), vr(ML + v * 8 + e, 2), vr(ML + v * 8 + 4 + e, 2)))
    xsum(a, list(range(ML, ML + 8)), list(range(ML + 8, ML + 16)), (32,))
    for j in range(4):
        round_bf16_pair(a, ML + 2 * j, ML + 2 * j + 1, ML + 8 + j)
    for j in range(4):
        a("v_add_f32 v%d, 1.0, v%d" % (ML + 4 + j, ML + 4 + j))
    round_bf16_pair(a, ML + 4, ML + 5, ML + 8)
    round_bf16_pair(a, ML + 6, ML + 7, ML + 9)
    a("ds_write_b128 v5, %s offset:%d" % (vr(ML, 4), TBL))
    a("ds_write_b128 v5, %s offset:%d" % (vr(ML + 4, 4), TBL + 4096))
    for i in range(4):
        for h in range(2):
            a("ds_read_b128 %s, v%d offset:%d" % (vr(SH + 8 * i + 4 * h, 4), VD, TBL + i * 128 + h * 16))
            a("ds_read_b128 %s, v%d offset:%d" % (vr(SC + 8 * i + 4 * h, 4), VD, TBL + 4096 + i * 128 + h * 16))
    a("s_lshl_b32 s22, s3, 19")
    a("s_lshl_b32 s33, s28, 10")
    a("s_add_u32 s22, s22, s33")
    for i in range(1, 4):
        a("s_add_u32 s%d, s22, %d" % (22 + i, i * KBS))
    for i in range(4):
        a("s_waitcnt lgkmcnt(%d)" % (12 - 4 * i))
        for q in range(4):
            e = 8 * i + 2 * q
            a("v_pk_fma_f32 %s, %s, %s, %s" % (vr(XF + e, 2), vr(XF + e, 2), vr(SC + e, 2), vr(SH + e, 2)))
        for q in range(4):
            e = 8 * i + 2 * q
            a("v_cvt_pk_bf16_f32 v%d, v%d, v%d" % (XD + 4 * i + q, XF + e, XF + e + 1))
        a("s_nop 1")
        a("v_permlane16_swap_b32 v%d, v%d" % (XD + 4 * i, XD + 4 * i + 2))
        a("v_permlane16_swap_b32 v%d, v%d" % (XD + 4 * i + 1, XD + 4 * i + 3))
        a("s_nop 1")
        if not STPRI:
            a("buffer_store_dwordx4 %s, v%d, s[4:7], s%d offen sc1" % (vr(XD + 4 * i, 4), VHA, 22 + i))
    if STPRI:
        l2 = a.uid("fst")
        a("s_cmp_lt_u32 s3, %d" % NQ1)
        a("s_cbranch_scc1 %s" % l2)
        a("s_barrier")
        a.label(l2)
        for i in range(4):
            a("buffer_store_dwordx4 %s, v%d, s[4:7], s%d offen sc1" % (vr(XD + 4 * i, 4), VHA, 22 + i))
        if STPRI == 1:
            l3 = a.uid("fst")
            a("s_cmp_ge_u32 s3, %d" % NQ1)
            a("s_cbranch_scc1 %s" % l3)
            a("s_barrier")
            a.label(l3)
    a("v_mov_b32 v7, s100")
    if STM0 == "e":
        stamp(a, 2)
    a("s_waitcnt vmcnt(0)")
    if STM0 == "e":
        stamp(a, 3)
    a("s_mov_b64 exec, 1")
    a("buffer_store_dword v7, v100, s[64:67], s36 offen sc1")
    a("s_mov_b64 exec, -1")
    if STPRI == 2:
        l3 = a.uid("fst")
        a("s_cmp_ge_u32 s3, %d" % NQ1)
        a("s_cbranch_scc1 %s" % l3)
        a("s_barrier")
        a.label(l3)

    a.label(front)
    a("s_cmp_ge_u32 s3, 4")
    a("s_cbranch_scc1 %s" % helper)
    if SETUP_LN == "front":
        setup()
    elif SETUP_LN == "split":
        for t in range(3):
            emit(a, flat(vm_w(t)[:3]))
    for t in range(3):
        q0 += [("W", t)] * 3
    l1s, l1b = a.uid("slow"), a.uid("back")
    POLL1 = "buffer_load_dword v%d, v%d, s[64:67], 0 offen sc1" % (VP, VF1)
    POLL = "buffer_load_dword v%d, v%d, s[64:67], 0 offen sc1" % (VP, VFL)
    a("s_branch %s" % l1s)
    a.label(l1b)
    if STM0 == "a":
        stamp(a, 3)
    for t in range(3):
        vm(("W", t), vm_w(t)[3])
        if t < 2:
            vm(("A", t), flat(vm_a(t)))
    l_slow, l_back = a.uid("slow"), a.uid("back")

    def ds_reads(slot):
        d = {}
        b = VDS
        so = slot * SLOT
        for seg in range(3):
            for jj in range(4):
                f = seg * 4 + jj
                d[f] = ["ds_read_b64_tr_b16 %s, v%d offset:%d" % (vr(WF + f * 4 + hf * 2, 2), b + jj, so + hf * 6144 + seg * 1024)
                        for hf in range(2)]
        d[14] = ["ds_read_b128 %s, v%d offset:%d" % (vr(WF + 56, 4), b + 5, so + 12288)]
        for seg in (1, 2):
            f = 11 + seg
            d[f] = ["ds_read_b64_tr_b16 %s, v%d offset:%d" % (vr(WF + f * 4 + hf * 2, 2), b + 4, so + hf * 6144 + seg * 1024)
                    for hf in range(2)]
        return d

    def accr(tb, seg, jj):
        return ACC + (tb * 12 + seg * 4 + jj) * 4

    def mfmas(u):
        h = vr(WF + 56, 4)
        m = [(mfma(vr(96, 4), vr(WF + 48, 4), h), [12, 14]), (mfma(vr(100, 4), h, vr(WF + 52, 4)), [13, 14])]
        for seg in range(3):
            for jj in range(4):
                for tb in range(2):
                    f = seg * 4 + jj
                    w = vr(WF + f * 4, 4)
                    x = vr(ACT + u * 8 + tb * 4, 4)
                    d = vr(accr(tb, seg, jj), 4)
                    m.append((mfma(d, w, x) if seg < 2 else mfma(d, x, w), [f]))
        return m

    def aux(s):
        r = []
        if VAL1 and s == 0:
            r.append((V1POS, "vm", ("P1",), [POLL1]))
        if VAL1 and s == 1:
            r.append((0, "valu", None, ["v_cmp_ne_u32 vcc, s100, v%d" % VP, "s_nop 1", "s_cmp_lg_u64 vcc, 0",
                                        "s_cbranch_scc1 %s" % l1s, l1b + ":"]))
        if s == max(CS - 2, 0):
            r.append((12 if CS >= 2 else 4, "vm", ("P",), [POLL]))
        if s == CS:
            r.append((0, "valu", None, ["v_cmp_ne_u32 vcc, s100, v%d" % VP, "s_nop 1", "s_cmp_lg_u64 vcc, 0",
                                        "s_cbranch_scc1 %s" % l_slow, l_back + ":"]))
        return r

    NEG = f32bits(-1e30)

    def tail_extra():
        P0, P1, PD = 127, 126, 113
        b = Asm()
        srd(b, 8, 26, 1024 * 1024 * 2)
        b("v_lshrrev_b32 v%d, 3, v%d" % (P0, VL))
        b("v_lshlrev_b32 v%d, 11, v%d" % (P0, P0))
        b("v_and_b32 v%d, 7, v%d" % (P1, VL))
        b("v_lshl_add_u32 v%d, v%d, 8, v%d" % (P0, P1, P0))
        b("s_lshr_b32 s34, s2, 3")
        b("s_lshl_b32 s34, s34, 2")
        b("s_add_u32 s34, s34, s3")
        b("s_lshl_b32 s34, s34, 14")
        b("s_and_b32 s35, s2, 1")
        b("s_lshl_b32 s35, s35, 7")
        b("s_add_u32 s34, s34, s35")
        b(touch(PD, P0, 8, "s34"))
        return [lines(b), code_touch(a, "k5_kernel", "L_k56_seam", 8, 34, 128, PD, VL)]

    o = dict(P=0)
    o.update(opts)
    if STM0 in ("a", "b", "c", "d", "e"):
        o["stamps"] = (None, None)
    gemm_loop(a, 32, R, mfmas, ds_reads, vm_w, vm_a, lambda: None, tail_extra=tail_extra, aux=aux, queue0=q0,
              need_extra=lambda s: {("P",)} if s == CS else ({("P1",)} if (VAL1 and s == 1) else set()), **o)
    srd(a, 12, 20, ACT_BYTES, WS_O)

    BP, BC, BP0 = 120, 124, 128
    QP = 132
    KP = 148
    VV = 172
    HK = 196
    S = 200
    T = 232

    def pk(dst, src):
        a("v_cvt_pk_bf16_f32 v%d, v%d, v%d" % (dst, src, src + 1))
        a("v_cvt_pk_bf16_f32 v%d, v%d, v%d" % (dst + 1, src + 2, src + 3))

    a("s_lshl_b32 s33, s3, 12")
    a("v_add_u32 v%d, s33, v%d" % (VT, VHA))
    a("s_lshr_b32 s33, s3, 1")
    a("s_lshl_b32 s33, s33, 10")
    a("s_and_b32 s34, s3, 1")
    a("s_lshl_b32 s34, s34, 3")
    a("s_add_u32 s33, s33, s34")
    a("v_add_u32 v%d, s33, v%d" % (VT + 1, VHA))
    for q in range(2):
        pk(HK + 2 * q, 96 + 4 * q)
    for hd in range(2):
        for fb in range(2):
            pk(KP + (4 + hd) * 4 + fb * 2, accr(1, 1, hd * 2 + fb))
            pk(VV + (hd * 2 + fb) * 6 + 4, accr(1, 2, hd * 2 + fb))
    a("ds_write_b64 v%d, %s offset:%d" % (VT + 1, vr(HK, 2), XCH))
    a("ds_write_b64 v%d, %s offset:%d" % (VT + 1, vr(HK + 2, 2), XCH + 2048))
    for hd in range(2):
        a("ds_write_b128 v%d, %s offset:%d" % (VT, vr(KP + (4 + hd) * 4, 4), XCH + 4096 + hd * 1024))
        for db in range(2):
            a("ds_write_b64 v%d, %s offset:%d" % (VT, vr(VV + (hd * 2 + db) * 6 + 4, 2), XCH + 4096 + 2048 + hd * 1024 + db * 8))
    for hd in range(2):
        for fb in range(2):
            for tb in range(2):
                pk(QP + (tb * 2 + hd) * 4 + fb * 2, accr(tb, 0, hd * 2 + fb))
            pk(KP + (2 + hd) * 4 + fb * 2, accr(0, 1, hd * 2 + fb))
            pk(VV + (hd * 2 + fb) * 6 + 2, accr(0, 2, hd * 2 + fb))
    a("s_waitcnt lgkmcnt(0)")
    a("s_barrier")
    for hd in range(2):
        a("ds_read_b128 %s, v%d offset:%d" % (vr(KP + hd * 4, 4), VT, XCH + hd * 1024))
        for db in range(2):
            a("ds_read_b64 %s, v%d offset:%d" % (vr(VV + (hd * 2 + db) * 6, 2), VT, XCH + 2048 + hd * 1024 + db * 8))
    units = [(1, 0), (1, 1), (0, 0), (0, 1)]
    for ui, (tb, hd) in enumerate(units):
        if ui == 2:
            a("s_or_b32 s33, s30, s3")
            a("s_cmp_eq_u32 s33, 0")
            a("s_cselect_b32 s33, 0x%x, 0" % NEG)
            a("v_mov_b32 v%d, s33" % T)
            for q_ in range(2):
                a("v_cndmask_b32_e64 v%d, v%d, 0, s[%d:%d]" % (BP + q_, T, 44 + 2 * q_, 45 + 2 * q_))
            a("v_and_b32 v%d, 1, v%d" % (BP + 2, VL))
            a("v_lshlrev_b32 v%d, 4, v%d" % (BP + 2, BP + 2))
            a("s_waitcnt lgkmcnt(0)")
        q = vr(QP + (tb * 2 + hd) * 4, 4)
        a(mfma(vr(S + ui * 8, 4), vr(KP + (tb * 2 + hd) * 4, 4), q, "0"))
        a(mfma(vr(S + ui * 8 + 4, 4), vr(KP + ((tb + 1) * 2 + hd) * 4, 4), q, "0"))
    a("s_mov_b32 s40, 0x%x" % f32bits(32 ** -0.5 * 1.4426950408889634))
    U = range(4)
    for ui in U:
        for h in range(4):
            a("v_cndmask_b32_e64 v%d, v%d, v%d, s[48:49]" % (S + ui * 8 + 2 * h, S + ui * 8 + 2 * h, S + ui * 8 + 2 * h + 1))
    for ui in U:
        for q_ in range(2):
            a("v_cndmask_b32_e64 v%d, v%d, v%d, s[%d:%d]" % (S + ui * 8 + q_, S + ui * 8 + 2 * q_, S + ui * 8 + 4 + 2 * q_, 44 + 2 * q_, 45 + 2 * q_))
    for ui, (tb, hd) in enumerate(units):
        for q_ in range(2):
            if tb == 1:
                a("v_mul_f32 v%d, s40, v%d" % (S + ui * 8 + q_, S + ui * 8 + q_))
            else:
                a("v_fma_f32 v%d, v%d, s40, v%d" % (S + ui * 8 + q_, S + ui * 8 + q_, BP + q_))
    for ui in U:
        a("v_max_f32 v%d, v%d, v%d" % (T + ui, S + ui * 8, S + ui * 8 + 1))
    xred(a, [T + i for i in U], [T + 4 + i for i in U], (16, 32), "v_max_f32")
    for ui in U:
        for q_ in range(2):
            a("v_sub_f32 v%d, v%d, v%d" % (S + ui * 8 + q_, S + ui * 8 + q_, T + ui))
    for ui in U:
        for q_ in range(2):
            a("v_exp_f32 v%d, v%d" % (S + ui * 8 + q_, S + ui * 8 + q_))
    a("s_nop 0")
    for ui in U:
        a("v_add_f32 v%d, v%d, v%d" % (T + ui, S + ui * 8, S + ui * 8 + 1))
    xred(a, [T + i for i in U], [T + 4 + i for i in U], (16, 32), "v_add_f32")
    for ui in U:
        a("v_rcp_f32 v%d, v%d" % (T + ui, T + ui))
    a("s_nop 0")
    for ui in U:
        for q_ in range(2):
            a("v_mul_f32 v%d, v%d, v%d" % (S + ui * 8 + q_, S + ui * 8 + q_, T + ui))
    for ui in U:
        for q_ in range(2):
            a("v_cvt_pk_bf16_f32 v%d, v%d, 0" % (S + ui * 8 + q_, S + ui * 8 + q_))
    for ui in U:
        for q_ in range(2):
            a("v_lshlrev_b32 v%d, v%d, v%d" % (S + ui * 8 + q_, BP + 2, S + ui * 8 + q_))
    for ui in U:
        for q_ in range(2):
            a("v_cndmask_b32_e64 v%d, v%d, 0, s[%d:%d]" % (QP + ui * 4 + q_, S + ui * 8 + q_, 44 + 2 * q_, 45 + 2 * q_))
            a("v_cndmask_b32_e64 v%d, 0, v%d, s[%d:%d]" % (QP + ui * 4 + 2 + q_, S + ui * 8 + q_, 44 + 2 * q_, 45 + 2 * q_))
    a("s_nop 1")
    for ui, (tb, hd) in enumerate(units):
        for db in range(2):
            a(mfma(vr(S + ui * 8 + db * 4, 4), vr(VV + (hd * 2 + db) * 6 + tb * 2, 4), vr(QP + ui * 4, 4), "0"))
    a("s_lshl_b32 s41, s31, 18")
    a("s_add_u32 s42, s41, %d" % KBS)
    a("s_nop 1")
    for ui, (tb, hd) in enumerate(units):
        if ui == 3:
            a("s_nop 0")
        for i in range(4):
            a("v_cvt_pk_bf16_f32 v%d, v%d, v%d" % (KP + ui * 4 + i, S + ui * 8 + 2 * i, S + ui * 8 + 2 * i + 1))
        a("buffer_store_dwordx4 %s, v%d, s[12:15], s%d offen offset:%d %s" % (vr(KP + ui * 4, 4), VA, 41 + hd, tb * 1024, "sc1"))
    if STM0 not in ("a", "b", "c", "d", "e"):
        stamp(a, 3)
    stamp_store(a, 5, VT, 20, 2)
    a("s_endpgm")
    spin(a, l_slow, l_back, POLL, VP, 33, "s100")
    spin(a, l1s, l1b, POLL1, VP, 33, "s100")
    if VAL1:
        spin(a, les, leb, EPOLL, VP, 33, "s100")

    a.label(helper)
    a("s_and_b32 s39, s3, 3")
    a("v_and_b32 v3, 255, v128")
    a("v_mov_b32 v101, 1")
    a("v_mov_b32 v102, %d" % CNT)
    a("ds_write_b32 v102, v100 offset:8")
    for i in range(4):
        a("v_mov_b32 v%d, -1" % (96 + i))
    a("v_lshlrev_b32 v95, 2, v%d" % VL)
    srd(a, 12, 20, 4 * MODP, WS_MOD)
    srd(a, 44, 92, 2048)
    srd(a, 48, 94, 1024 * 6144 * 2)

    def gemv_addr(kq):
        a("s_lshl_b32 s33, s%d, 8" % kq)
        a("v_add_u32 v%d, s33, v3" % GC)
        a("v_and_b32 v%d, -8, v%d" % (GO, GC))
        a("s_movk_i32 s33, 12288")
        a("v_mul_u32_u24 v%d, s33, v%d" % (GO, GO))
        a("v_lshlrev_b32 v%d, 1, v%d" % (GC, GC))
        a("v_and_b32 v94, 7, v3")
        a("v_lshl_add_u32 v%d, v94, 4, v%d" % (GO, GO))

    def gemv_c():
        a("buffer_load_ushort v%d, v%d, s[44:47], 0 offen" % (CD, GC))

    def gemv_w(colbytes):
        for i in range(8):
            a("buffer_load_dwordx4 %s, v%d, s[48:51], s%d offen nt" % (vr(GW + 4 * i, 4), GO, colbytes))
            a("s_add_u32 s%d, s%d, 12288" % (colbytes, colbytes))

    def gemv_silu():
        a("v_lshlrev_b32 v%d, 16, v%d" % (CD, CD))
        a("v_mul_f32 v%d, 0x%x, v%d" % (CD + 1, NLOG2E, CD))
        a("v_exp_f32 v%d, v%d" % (CD + 1, CD + 1))
        a("v_lshlrev_b32 v%d, 2, v3" % (CD + 2))
        a("v_add_f32 v%d, 1.0, v%d" % (CD + 1, CD + 1))
        a("v_rcp_f32 v%d, v%d" % (CD + 1, CD + 1))
        a("v_and_b32 v%d, -32, v%d" % (CD + 3, CD + 2))
        a("v_mul_f32 v%d, v%d, v%d" % (CD, CD, CD + 1))
        a("v_cvt_pk_bf16_f32 v%d, v%d, v%d" % (CD, CD, CD))
        a("v_lshlrev_b32 v%d, 16, v%d" % (CD, CD))
        a("ds_write_b32 v%d, v%d offset:%d" % (CD + 2, CD, SIL))
        a("ds_read_b128 %s, v%d offset:%d" % (vr(SV, 4), CD + 3, SIL))
        a("ds_read_b128 %s, v%d offset:%d" % (vr(SV + 4, 4), CD + 3, SIL + 16))
        a("s_waitcnt lgkmcnt(0)")

    def gemv_fin(cnt_off, so, done, yng, mid=None):
        if yng is not None:
            gemv_rows(a, 8, GW, SV, GA, GT, yng)
        if mid:
            mid()
        xsum(a, list(range(GA, GA + 8)), list(range(GT, GT + 8)), (8,))
        a("v_lshrrev_b32 v93, 4, v3")
        a("v_lshlrev_b32 v93, 8, v93")
        a("v_lshl_add_u32 v93, v94, 5, v93")
        a("v_add_u32 v93, %d, v93" % RED)
        a("s_waitcnt lgkmcnt(0)")
        a("ds_write_b128 v93, %s" % vr(GA, 4))
        a("ds_write_b128 v93, %s offset:16" % vr(GA + 4, 4))
        a("s_waitcnt lgkmcnt(0)")
        a("s_mov_b64 exec, 1")
        a("ds_add_rtn_u32 v103, v102, v101 offset:%d" % cnt_off)
        a("s_waitcnt lgkmcnt(0)")
        a("v_readfirstlane_b32 s33, v103")
        a("s_mov_b64 exec, -1")
        a("s_cmp_lg_u32 s33, 3")
        a("s_cbranch_scc1 %s" % done)
        a("v_add_u32 v93, %d, v95" % RED)
        for w in range(8):
            a("ds_read2st64_b32 %s, v93 offset0:%d offset1:%d" % (vr(GA + 2 * w, 2), 2 * w, 2 * w + 1))
        a("s_waitcnt lgkmcnt(0)")
        for st in (8, 4, 2, 1):
            for i in range(st):
                a("v_add_f32 v%d, v%d, v%d" % (GA + i, GA + i, GA + st + i))
        a("v_and_b32 v%d, -2, v%d" % (GA, GA))
        a("buffer_store_dword v%d, v95, s[12:15], s%d offen sc1" % (GA, so))

    srd(a, 52, 20, 0, WS_STAT)
    srd(a, 56, 20, 0, WS_FLAG)
    a("s_cmp_eq_u32 s39, 1")
    a("s_cselect_b32 s54, 0x40000, 0")
    a("s_cselect_b32 s58, %d, 0" % (4096 << FS))
    a("s_lshl_b32 s33, s2, 10")
    a("buffer_store_dwordx4 v[96:99], v%d, s[52:55], s33 offen sc1" % VHA)
    a("v_min_u32 v92, 15, v%d" % VL)
    a("v_lshlrev_b32 v92, %d, v92" % FS)
    a("s_lshl_b32 s33, s2, %d" % (4 + FS))
    a("buffer_store_dword v96, v92, s[56:59], s33 offen sc1")
    a("s_and_b32 s31, s2, 3")
    a("s_lshr_b32 s30, s2, 2")
    gemv_addr(31)
    a("s_mov_b32 s50, %d" % (1024 * 6144 * 2))
    a("s_mul_i32 s34, s31, %d" % MODP)
    a("s_lshl_b32 s33, s30, 8")
    a("s_add_u32 s34, s34, s33")
    a("s_add_u32 s34, s34, 8192")
    a("s_lshl_b32 s35, s30, 7")
    a("s_add_u32 s35, s35, 4096")
    if GV2 != "role":
        gemv_c()
    if GV2 == "role":
        for i in range(3):
            a("s_barrier")
    elif GV2 == "front":
        gemv_w(35)
        a("s_waitcnt vmcnt(8)")
        gemv_silu()
        g2d = a.uid("g2d")
        gemv_fin(8, 34, g2d, 0)
        a.label(g2d)
        for i in range(3):
            a("s_barrier")
    else:
        for i in range(3):
            a("s_barrier")
        a("s_waitcnt vmcnt(0)")
        gemv_silu()
    if HS == "gu":
        a("s_bitcmp1_b32 s3, 0")
        a("s_cselect_b32 s4, s62, s60")
        a("s_cselect_b32 s5, s63, s61")
        a("s_lshl_b32 s6, s2, 1")
        a("s_bfe_u32 s7, s3, 0x10001")
        a("s_add_u32 s6, s6, s7")
        a("s_lshl_b32 s6, s6, 8")
        a("s_add_u32 s4, s4, s6")
        a("s_addc_u32 s5, s5, 0")
        body = ["s_load_dword s%d, s[4:5], %d" % (52 + i, i * 64) for i in range(4)]
        body += ["s_add_u32 s4, s4, %d" % (512 * 256), "s_addc_u32 s5, s5, 0"]
    else:
        a("s_lshr_b32 s6, s2, 3")
        a("s_lshl_b32 s6, s6, 2")
        a("s_add_u32 s6, s6, s39")
        a("s_min_u32 s6, s6, 125")
        a("s_mul_i32 s7, s6, 43")
        a("s_lshr_b32 s7, s7, 8")
        a("s_mul_i32 s33, s7, 6")
        a("s_sub_u32 s6, s6, s33")
        a("s_mul_i32 s7, s7, 6144")
        a("s_lshr_b32 s33, s6, 1")
        a("s_lshl_b32 s33, s33, 11")
        a("s_add_u32 s7, s7, s33")
        a("s_and_b32 s33, s6, 1")
        a("s_lshl_b32 s33, s33, 8")
        a("s_add_u32 s7, s7, s33")
        a("s_bfe_u32 s33, s2, 0x20001")
        a("s_lshl_b32 s33, s33, 9")
        a("s_add_u32 s7, s7, s33")
        a("s_add_u32 s7, s7, %d" % ((1024 - 21 * NRND) * 6144))
        a("s_add_u32 s4, s98, s7")
        a("s_addc_u32 s5, s99, 0")
        body = ["s_load_dword s%d, s[4:5], %d" % (52 + i, i * 64) for i in range(4)]
        body += ["s_add_u32 s4, s4, %d" % (21 * 6144), "s_addc_u32 s5, s5, 0"]
        assert all((q * 43) >> 8 == q // 6 for q in range(126))
    nb = 3
    srd(a, 56, 20, 0x800000, WS_XCH)
    a("s_lshl_b32 s36, s2, 2")
    a("s_add_u32 s36, s36, s39")
    a("s_lshl_b32 s36, s36, 13")
    pst = ["buffer_store_dwordx4 v[96:99], v%d, s[56:59], s36 offen sc1" % VHA, "s_add_u32 s36, s36, 1024"]
    if GV2 == "spread":
        b = Asm()
        gemv_rows(b, 8, GW, SV, GA, GT, 0)
        rows = [x for x in lines(b) if not x.startswith("s_waitcnt")]
        assert len(rows) == 128
        for k in range(nb, 34):
            i = k - nb
            if i < 28:
                emit(a, body)
            if i % GSP == 0 and 2 <= i // GSP < 10:
                r_ = i // GSP - 2
                a("s_waitcnt vmcnt(%d)" % (1 if r_ < 7 else 0))
                emit(a, rows[16 * r_:16 * r_ + 16])
            if i % GSP == 0 and i // GSP < 8:
                if i // GSP < 4:
                    emit(a, pst)
                a("buffer_load_dwordx4 %s, v%d, s[48:51], s35 offen nt" % (vr(GW + 4 * (i // GSP), 4), GO))
                a("s_add_u32 s35, s35, 12288")
            if k == 33:
                g2d = a.uid("g2d")
                gemv_fin(8, 34, g2d, None)
                a.label(g2d)
            a("s_barrier")
        assert 9 * GSP < 33 - nb
    else:
        rounds = 28 if HS == "gu" else NRND
        paced(a, 4, body + ["s_barrier"] + body + ["s_barrier"] + body + ["s_barrier"] + body + pst)
        paced(a, GV_AT - nb - 16, body)
        assert GV_AT - nb <= rounds
        if GV2 not in ("front", "role"):
            gemv_w(35)
        yng = 0
        for i in range(34 - GV_AT):
            if GV_AT - nb + i < rounds:
                emit(a, body)
            if HS != "gu" and GV_AT + i == GU_AT:
                emit(a, ["s_bitcmp1_b32 s3, 0", "s_cselect_b32 s56, s62, s60", "s_cselect_b32 s57, s63, s61",
                         "s_mov_b32 s58, %d" % WF_BYTES, "s_lshl_b32 s6, s2, 1", "s_bfe_u32 s7, s3, 0x10001", "s_add_u32 s6, s6, s7",
                         "s_mul_i32 s6, s6, 7168", "v_min_u32 v96, 55, v%d" % VL, "v_lshlrev_b32 v96, 7, v96", touch(97, 96, 56, "s6")])
                yng = 1
            a("s_barrier")
        if GV2 not in ("front", "role"):
            gemv_fin(8, 34, end, yng)
    a.label(end)
    a("s_endpgm")
    a.end_kernel(name, 256, 0, 102)
    a.launch(name, 256, 512, 82944)


def phase3(a, LB, VEC, hooks, R=4, **opts):
    SLOT = 8192
    ACC = 0
    VL, VA, VA2, VW, VDS, VX, VT = 32, 33, 34, 35, 37, 41, 42
    RES = 48
    GV = 64
    T = 80
    WF = 88
    ACT = 120
    SB, S2 = ACT + R * 16, ACT + R * 16 + 16
    assert S2 + 16 <= 224
    a("v_and_b32 v%d, 63, v0" % VL)
    a("s_and_b32 s28, s2, 1")
    a("s_lshr_b32 s29, s2, 3")
    a("s_bfe_u32 s30, s2, 0x20001")
    a("s_lshl_b32 s30, s30, 2")
    a("s_and_b32 s31, s29, 3")
    a("s_add_u32 s30, s30, s31")
    a("s_lshr_b32 s29, s29, 2")
    a("s_lshl_b32 s31, s29, 1")
    a("s_add_u32 s31, s31, s28")
    a("s_lshl_b32 s32, s30, 13")
    a("s_lshl_b32 s33, s3, 11")
    a("s_add_u32 s32, s32, s33")
    a("v_lshlrev_b32 v%d, 4, v%d" % (VA, VL))
    a("v_add_u32 v%d, s32, v%d" % (VA, VA))
    a("v_add_u32 v%d, %d, v%d" % (VA2, KBS, VA))
    a("v_lshrrev_b32 v%d, 3, v%d" % (VT, VL))
    a("v_and_b32 v%d, 6, v%d" % (VT + 1, VT))
    a("v_and_b32 v%d, 7, v%d" % (VT + 2, VL))
    a("v_xor_b32 v%d, v%d, v%d" % (VT + 1, VT + 1, VT + 2))
    a("v_lshlrev_b32 v%d, 11, v%d" % (VT, VT))
    a("v_lshl_add_u32 v%d, v%d, 4, v%d" % (VT, VT + 1, VT))
    a("s_lshl_b32 s32, s3, 15")
    a("s_lshl_b32 s33, s31, 7")
    a("s_add_u32 s32, s32, s33")
    a("v_add_u32 v%d, s32, v%d" % (VW, VT))
    a("v_add_u32 v%d, %d, v%d" % (VW + 1, 8 * 2048 - 1024, VW))
    a("s_lshl_b32 s38, s3, 11")
    a("s_add_u32 s38, s38, %d" % LB)
    a("s_mov_b32 s16, 0")
    a("s_mov_b32 s17, 0")
    a("s_waitcnt lgkmcnt(0)")
    srd(a, 8, 24, 1024 * 1024 * 2)
    srd(a, 4, 20, ACT_BYTES, WS_O)

    def vm_w(slot):
        return [["s_add_u32 m0, s38, %d" % (slot * SLOT), "s_nop 0",
                 "buffer_load_dwordx4 v%d, s[8:11], s17 offen lds" % VW],
                ["buffer_load_dwordx4 v%d, s[8:11], s17 offen offset:1024 lds" % (VW + 1),
                 "s_add_u32 s17, s17, %d" % (64 * 2048)]]

    def vm_a(buf):
        g = []
        for kk in range(2):
            for tb in range(2):
                ins = ["buffer_load_dwordx4 %s, v%d, s[4:7], s16 offen offset:%d" % (
                    vr(ACT + buf * 16 + (kk * 2 + tb) * 4, 4), VA2 if kk else VA, tb * 1024)]
                if kk and tb:
                    ins.append("s_add_u32 s16, s16, %d" % (2 * KBS))
                g.append(ins)
        return g

    def ds_reads(slot):
        d = {}
        for kk in range(2):
            for jj in range(4):
                f = kk * 4 + jj
                d[f] = ["ds_read_b64_tr_b16 %s, v%d offset:%d" % (
                    vr(WF + f * 4 + hf * 2, 2), VDS + jj, slot * SLOT + kk * 4096 + hf * 2048) for hf in range(2)]
        return d

    def mfmas(u):
        m = []
        for kk in range(2):
            for jj in range(4):
                for tb in range(2):
                    f = kk * 4 + jj
                    m.append((mfma(vr(ACC + (tb * 4 + jj) * 4, 4), vr(WF + f * 4, 4),
                                   vr(ACT + u * 16 + (kk * 2 + tb) * 4, 4)), [f]))
        return m

    def pro():
        a("v_lshrrev_b32 v%d, 2, v%d" % (T, VL))
        a("v_lshlrev_b32 v%d, 7, v%d" % (T, T))
        a("v_bfe_u32 v%d, v%d, 3, 2" % (T + 1, VL))
        a("v_lshl_add_u32 v%d, v%d, 5, v%d" % (T, T + 1, T))
        a("v_and_b32 v%d, 3, v%d" % (T + 1, VL))
        a("v_lshl_add_u32 v%d, v%d, 3, v%d" % (T, T + 1, T))
        for jj in range(4):
            a("v_xor_b32 v%d, %d, v%d" % (VDS + jj, jj << 5, T))
            a("v_add_u32 v%d, %d, v%d" % (VDS + jj, LB, VDS + jj))
        hooks["pro"]()
        a("v_and_b32 v%d, 15, v%d" % (VT, VL))
        a("v_lshlrev_b32 v%d, 11, v%d" % (VX, VT))
        a("v_bfe_u32 v%d, v%d, 4, 1" % (VT + 2, VL))
        a("v_lshl_add_u32 v%d, v%d, 5, v%d" % (VX, VT + 2, VX))
        a("v_lshrrev_b32 v%d, 5, v%d" % (VT + 2, VL))
        a("v_lshl_add_u32 v%d, v%d, 4, v%d" % (VX, VT + 2, VX))
        a("s_lshl_b32 s32, s30, 18")
        a("s_lshl_b32 s33, s3, 16")
        a("s_add_u32 s32, s32, s33")
        a("s_lshl_b32 s33, s31, 7")
        a("s_add_u32 s32, s32, s33")
        a("v_add_u32 v%d, s32, v%d" % (VX, VX))
        a("v_mov_b32 v%d, v%d" % (hooks["vx"], VX))
        a("s_lshl_b32 s41, s31, 18")
        a("s_add_u32 s42, s41, %d" % KBS)
        a("s_mov_b32 s43, 0x8000")
        srd(a, 44, 26, ACT_BYTES)
        srd(a, 48, 20, 4 * MODP, WS_MOD)
        mod_lane_off(a, VT + 3, VL, VT, 33)
        a("s_lshl_b32 s34, s31, 8")
        a("s_lshl_b32 s33, s3, 12")
        a("s_add_u32 s34, s34, s33")
        a("s_add_u32 s34, s34, 8192")

    XU = ACT
    XS0, VS0 = 6, 2

    def extra(s):
        if s == VS0:
            return [["buffer_load_dwordx4 %s, v%d, s[48:51], s34 offen" % (vr(SB, 4), VT + 3)]]
        if s in (XS0, XS0 + 1):
            tb = s - XS0
            return [["buffer_load_dwordx4 %s, v%d, s[44:47], %s offen offset:%d" % (
                vr(RES + (tb * 2 + kb) * 4, 4), VX, "s43" if tb else "0", kb * 64) for kb in range(2)]]
        return []

    def aux(s):
        r = []
        if s == VS0 + 3:
            b = Asm()
            xsum(b, [SB + i for i in range(4)], [SB + 4 + i for i in range(4)], (16, 32))
            round_bf16_pair(b, SB, SB + 1, SB + 4)
            round_bf16_pair(b, SB + 2, SB + 3, SB + 5)
            b("s_cmp_eq_u32 s3, 2")
            b("s_cselect_b32 s33, 1.0, 0")
            for i in range(4):
                b("v_add_f32 v%d, s33, v%d" % (SB + i, SB + i))
            round_bf16_pair(b, SB, SB + 1, SB + 4)
            round_bf16_pair(b, SB + 2, SB + 3, SB + 5)
            b("v_and_b32 v%d, 15, v%d" % (SB + 4, VL))
            b("v_lshlrev_b32 v%d, 4, v%d" % (SB + 4, SB + 4))
            b("s_lshl_b32 s33, s3, 8")
            b("s_add_u32 s33, s33, %d" % VEC)
            b("v_add_u32 v%d, s33, v%d" % (SB + 4, SB + 4))
            r.append((2, "valu", None, lines(b)))
            r.append((2, "ds", ("V",), ["ds_write_b128 v%d, %s" % (SB + 4, vr(SB, 4))]))
        if s == VS0 + 4:
            r.append((2, "valu", {("V",)}, ["v_lshrrev_b32 v%d, 4, v%d" % (VT + 3, VL), "v_lshlrev_b32 v%d, 4, v%d" % (VT + 3, VT + 3),
                                            "v_add_u32 v%d, %d, v%d" % (VT + 3, VEC, VT + 3),
                                            "v_mov_b32 v%d, v%d" % (hooks["vvec"], VT + 3)]))
        if VS0 + 6 <= s < VS0 + 9:
            v = s - VS0 - 6
            dst = (GV, SB, S2)[v]
            for jj in range(4):
                r.append((3 + 3 * jj, "ds", ("V2",), ["ds_read_b128 %s, v%d offset:%d" % (vr(dst + jj * 4, 4), VT + 3, v * 256 + jj * 64)]))
        if s in (14, 15):
            tb = s - 14
            for i in range(8):
                r.append((2 * i, "valu", None, ["v_lshlrev_b32 v%d, 16, v%d" % (XU + tb * 16 + 2 * i, RES + tb * 8 + i)]))
                r.append((2 * i + 1, "valu", None, ["v_and_b32 v%d, 0xffff0000, v%d" % (XU + tb * 16 + 2 * i + 1, RES + tb * 8 + i)]))
        if s == 13:
            b = Asm()
            srd(b, 52, 20, 0x40000, WS_STAT)
            b("v_lshlrev_b32 v%d, 3, v%d" % (T, VL))
            b("s_lshl_b32 s56, s30, 14")
            b("s_lshl_b32 s57, s3, 8")
            b("s_add_u32 s56, s56, s57")
            b("s_lshl_b32 s57, s31, 10")
            b("s_add_u32 s57, s57, s56")
            b("v_lshrrev_b32 v%d, 4, v%d" % (T + 1, VL))
            b("v_lshlrev_b32 v%d, 12, v%d" % (T + 1, T + 1))
            b("v_and_b32 v%d, 15, v%d" % (T + 2, VL))
            b("v_lshl_add_u32 v%d, v%d, 3, v%d" % (T + 1, T + 2, T + 1))
            b("v_cmp_gt_u32 s[34:35], 16, v%d" % VL)
            r.append((8, "valu", None, lines(b)))
        if s == XS0 + 5:
            b = Asm()
            for q in range(4):
                b("v_permlane16_swap_b32 v%d, v%d" % (RES + 4 * q, RES + 4 * q + 2))
                b("v_permlane16_swap_b32 v%d, v%d" % (RES + 4 * q + 1, RES + 4 * q + 3))
            r.append((2, "valu", None, lines(b)))
        return r

    def need(s):
        if s == VS0 + 3:
            return {("X", VS0)}
        if s == XS0 + 5:
            return {("X", XS0 + 1)}
        return set()

    o = dict(P=3, Q=4, vm_span=0.5, LG=6)
    o.update(opts)
    gemm_loop(a, 16, R, mfmas, ds_reads, vm_w, vm_a, pro, extra=extra, aux=aux, need_extra=need, stamps=(None, None), **o)
    if STM == "p3d":
        stamp(a, 1)
    if STM == "p3e":
        stamp(a, 0)
    if EARLY_AT == "loop":
        hooks["early"]()
    if POISON_AT == "loop":
        hooks["poison"]()
    E = ACT + 32
    for i in range(16):
        a("v_pk_fma_f32 %s, %s, %s, %s" % (vr(XU + 2 * i, 2), vr(ACC + 2 * i, 2), vr(GV + (2 * i) % 16, 2), vr(XU + 2 * i, 2)))
    for i in range(8):
        for tb in range(2):
            x = vr(XU + tb * 16 + 2 * i, 2)
            if i == 0:
                a("v_pk_mul_f32 %s, %s, %s" % (vr(E + 4 + 2 * tb, 2), x, x))
            else:
                a("v_pk_fma_f32 %s, %s, %s, %s" % (vr(E + 4 + 2 * tb, 2), x, x, vr(E + 4 + 2 * tb, 2)))
                a("v_pk_add_f32 %s, %s, %s" % (vr(E + 2 * tb, 2), vr(E + 2 * tb, 2) if i > 1 else vr(XU + tb * 16, 2), x))
    for tb in range(2):
        a("v_add_f32 v%d, v%d, v%d" % (E + 2 * tb, E + 2 * tb, E + 2 * tb + 1))
        a("v_add_f32 v%d, v%d, v%d" % (E + 2 * tb + 1, E + 4 + 2 * tb, E + 5 + 2 * tb))
    xsum(a, [E, E + 1, E + 2, E + 3], [E + 4, E + 5, E + 6, E + 7], (16, 32))
    a("v_cndmask_b32_e64 v%d, v%d, v%d, s[34:35]" % (E + 4, E + 2, E))
    a("v_cndmask_b32_e64 v%d, v%d, v%d, s[34:35]" % (E + 5, E + 3, E + 1))
    a("v_and_b32 v%d, -2, v%d" % (E + 4, E + 4))
    a("v_and_b32 v%d, 0x7fffffff, v%d" % (E + 5, E + 5))
    a("s_mov_b32 exec_hi, 0")
    a("buffer_store_dwordx2 %s, v%d, s[52:55], s57 offen sc1" % (vr(E + 4, 2), T))
    a("s_mov_b64 exec, -1")
    if STM == "p3d":
        stamp(a, 2)
    if EARLY_AT == "pub":
        hooks["early"]()
    if POISON_AT == "pub":
        hooks["poison"]()
    for i in range(16):
        a("v_cvt_pk_bf16_f32 v%d, v%d, v%d" % (RES + i, XU + 2 * i, XU + 2 * i + 1))
    for i in range(16):
        a("v_accvgpr_write_b32 a%d, v%d" % (hooks["x1"] + i, RES + i))
        a("v_lshlrev_b32 v%d, 16, v%d" % (ACC + 2 * i, RES + i))
        a("v_and_b32 v%d, 0xffff0000, v%d" % (ACC + 2 * i + 1, RES + i))
    srd(a, 48, 20, ACT_BYTES, WS_H2)
    G = E + 16
    poll = a.uid("poll")
    ready = a.uid("ready")
    a("s_mov_b32 s58, %d" % SPIN)
    a.label(poll)
    for tb in range(2):
        for i in range(4):
            a("buffer_load_dwordx2 %s, v%d, s[52:55], s56 offen offset:%d sc1" % (vr(G + (tb * 4 + i) * 2, 2), T + 1, i * 1024 + tb * 128))
    a("s_waitcnt vmcnt(0)")
    a("v_max3_u32 v%d, v%d, v%d, v%d" % (E + 8, G, G + 1, G + 2))
    for i in range(3, 15, 2):
        a("v_max3_u32 v%d, v%d, v%d, v%d" % (E + 8, E + 8, G + i, G + i + 1))
    a("v_max_u32 v%d, v%d, v%d" % (E + 8, E + 8, G + 15))
    a("v_cmp_eq_u32 vcc, -1, v%d" % (E + 8))
    a("s_nop 1")
    a("s_cmp_eq_u64 vcc, 0")
    a("s_cbranch_scc1 %s" % ready)
    if SLP[0]:
        a("s_sleep %d" % SLP[0])
    a("s_sub_u32 s58, s58, 1")
    a("s_cmp_lg_u32 s58, 0")
    a("s_cbranch_scc1 %s" % poll)
    a.label(ready)
    if STM == "p3d":
        stamp(a, 3)
    if STM == "p3e":
        stamp(a, 1)
    if EARLY_AT == "rdy":
        hooks["early"]()
    if POISON_AT == "rdy":
        hooks["poison"]()
    if DBGX1:
        srd(a, 12, 20, ACT_BYTES, WS_X1)
        for tb in range(2):
            for kb in range(2):
                a("buffer_store_dwordx4 %s, v%d, s[12:15], s%d offen offset:%d" % (vr(RES + (tb * 2 + kb) * 4, 4), VA, 41 + kb, tb * 1024))
    for tb in range(2):
        g = G + tb * 8
        a("v_pk_add_f32 %s, %s, %s" % (vr(E + 2 * tb, 2), vr(g, 2), vr(g + 2, 2)))
        a("v_pk_add_f32 %s, %s, %s" % (vr(E + 4 + 2 * tb, 2), vr(g + 4, 2), vr(g + 6, 2)))
    for tb in range(2):
        a("v_pk_add_f32 %s, %s, %s" % (vr(E + 2 * tb, 2), vr(E + 2 * tb, 2), vr(E + 4 + 2 * tb, 2)))
    xsum(a, [E, E + 1, E + 2, E + 3], [E + 4, E + 5, E + 6, E + 7], (16, 32))
    M = [XU, XU + 12]
    for tb in range(2):
        a("v_mul_f32 v%d, 0x%x, v%d" % (M[tb], f32bits(1.0 / 1024), E + 2 * tb))
        a("v_mul_f32 v%d, 0x%x, v%d" % (M[tb] + 4, f32bits(1.0 / 1024), E + 2 * tb + 1))
    for tb in range(2):
        a("v_fma_f32 v%d, -v%d, v%d, v%d" % (M[tb] + 4, M[tb], M[tb], M[tb] + 4))
    for tb in range(2):
        a("v_max_f32 v%d, 0, v%d" % (M[tb] + 4, M[tb] + 4))
    for tb in range(2):
        ln_finish(a, M[tb])
    H = G
    for tb in range(2):
        for i in range(8):
            x = vr(ACC + tb * 16 + 2 * i, 2)
            a("v_pk_add_f32 %s, %s, %s neg_lo:[0,1] neg_hi:[0,1]" % (x, x, vr(M[tb], 2)))
        for i in range(8):
            x = vr(ACC + tb * 16 + 2 * i, 2)
            a("v_pk_mul_f32 %s, %s, %s" % (x, x, vr(M[tb] + 4, 2)))
        for i in range(8):
            x = vr(ACC + tb * 16 + 2 * i, 2)
            a("v_pk_fma_f32 %s, %s, %s, %s" % (x, x, vr(S2 + 2 * i, 2), vr(SB + 2 * i, 2)))
        for i in range(8):
            a("v_cvt_pk_bf16_f32 v%d, v%d, v%d" % (H + tb * 8 + i, ACC + tb * 16 + 2 * i, ACC + tb * 16 + 2 * i + 1))
        for kb in range(2):
            a("buffer_store_dwordx4 %s, v%d, s[48:51], s%d offen offset:%d %s" % (vr(H + tb * 8 + kb * 4, 4), VA, 41 + kb, tb * 1024, "sc1"))


def gen_k356(a, name="k5_kernel", k3={}, k5={}, k6={}):
    FUSE3, PF, CPF, SB_EARLY, OUTFLAGS = True, True, True, True, OUTF
    R = R6
    R5, TS = R5_TS
    SLOT = 14336
    VA, VW, VDS, VL, VT = 224, 225, 229, 231, 232
    AACT = 0
    AW = R5 * 16
    a.begin_kernel(name)
    end = a.uid("end")
    a("s_cmp_ge_u32 s2, 256")
    a("s_cbranch_scc1 %s" % end)
    stamp(a, 0)
    a("s_load_dwordx2 s[20:21], s[0:1], %d" % KA_WS)
    if FUSE3:
        a("s_load_dwordx2 s[24:25], s[0:1], %d" % KA_WO)
        a("s_load_dwordx2 s[26:27], s[0:1], %d" % KA_X)
    a("s_load_dwordx4 s[%d:%d], s[0:1], %d" % ((60, 63, KA_WG) if FUSE3 else (24, 27, KA_WG)))
    a("s_load_dwordx2 s[22:23], s[0:1], %d" % KA_WD)
    a("s_load_dwordx2 s[90:91], s[0:1], %d" % KA_OUT)
    wave_lane(a, VL, VT)

    def mapping5():
        a("s_and_b32 s28, s2, 7")
        a("s_lshr_b32 s29, s2, 3")
        a("s_and_b32 s30, s28, 1")
        a("s_lshl_b32 s30, s30, 2")
        a("s_and_b32 s31, s29, 3")
        a("s_add_u32 s30, s30, s31")
        a("s_lshr_b32 s31, s28, 1")
        a("s_lshl_b32 s31, s31, 3")
        a("s_lshr_b32 s29, s29, 2")
        a("s_add_u32 s31, s31, s29")

    def vaddr5():
        a("s_lshl_b32 s32, s30, 14")
        a("s_lshl_b32 s33, s3, 12")
        a("s_add_u32 s32, s32, s33")
        a("v_lshlrev_b32 v%d, 4, v%d" % (VA, VL))
        a("v_add_u32 v%d, s32, v%d" % (VA, VA))
        a("s_and_b32 s33, s3, 1")
        a("s_mul_i32 s34, s33, %d" % (16 * 7168))
        a("s_mul_i32 s35, s31, 224")
        a("s_add_u32 s34, s34, s35")
        a("s_movk_i32 s36, 4682")
        a("s_movk_i32 s37, 7168")
        a("s_and_b32 s39, s31, 1")
        a("s_lshl_b32 s39, s39, 1")
        for p in range(4):
            a("v_add_u32 v%d, %d, v%d" % (VT + 2, p * 64, VL))
            a("v_mul_u32_u24 v%d, s36, v%d" % (VT + 3, VT + 2))
            a("v_lshrrev_b32 v%d, 16, v%d" % (VT + 3, VT + 3))
            a("v_mul_u32_u24 v%d, 14, v%d" % (VT + 4, VT + 3))
            a("v_sub_u32 v%d, v%d, v%d" % (VT + 4, VT + 2, VT + 4))
            a("v_add_u32 v%d, s39, v%d" % (VT + 4, VT + 4))
            a("v_subrev_u32 v%d, 14, v%d" % (VT + 5, VT + 4))
            a("v_min_u32 v%d, v%d, v%d" % (VT + 4, VT + 4, VT + 5))
            a("v_mul_u32_u24 v%d, s37, v%d" % (VT + 3, VT + 3))
            a("v_lshl_add_u32 v%d, v%d, 4, v%d" % (VT + 3, VT + 4, VT + 3))
            a("v_add_u32 v%d, s34, v%d" % (VT + 3, VT + 3))
            a("v_subrev_u32 v%d, %d, v%d" % (VW + p, p * 1024, VT + 3))

    def wsrd5(p):
        a("s_mul_i32 s38, s3, 3584")
        a("s_mov_b32 s17, 0")
        a("s_cmp_lt_u32 s3, 2")
        a("s_cselect_b32 s8, s%d, s%d" % (p, p + 2))
        a("s_cselect_b32 s9, s%d, s%d" % (p + 1, p + 3))
        a("s_mov_b32 s10, %d" % WF_BYTES)
        a("s_mov_b32 s11, 0x20000")

    if not FUSE3:
        mapping5()
        vaddr5()
        a("s_mov_b32 s16, 0")
        a("s_waitcnt lgkmcnt(0)")
        wsrd5(24)
        srd(a, 4, 20, ACT_BYTES, WS_H2)

    def vm_w(slot):
        g = [["s_add_u32 m0, s38, %d" % (slot * SLOT), "s_nop 0",
              "buffer_load_dwordx4 v%d, s[8:11], s17 offen lds" % VW]]
        for p in (1, 2):
            g.append(["buffer_load_dwordx4 v%d, s[8:11], s17 offen offset:%d lds" % (VW + p, p * 1024)])
        g.append(["s_mov_b32 exec_hi, 0",
                  "buffer_load_dwordx4 v%d, s[8:11], s17 offen offset:3072 lds" % (VW + 3),
                  "s_mov_b32 exec_hi, -1",
                  "s_add_u32 s17, s17, %d" % (32 * 7168)])
        return g

    def vm_a(buf):
        g = []
        for tb in range(4):
            ins = ["buffer_load_dwordx4 %s, v%d, s[4:7], s16 offen offset:%d %s" % (ar(AACT + buf * 16 + tb * 4, 4), VA, tb * 1024, LD5)]
            if tb == 3:
                ins.append("s_add_u32 s16, s16, %d" % KBS)
            g.append(ins)
        return g

    GROUPS = [[0, 1, 7, 8], [2, 3, 9, 10], [4, 5, 6, 11, 12, 13]]
    tail_uses = [(f, t_) for g in GROUPS for t_ in range(32 - TS, 32) for f in g]

    def uses(s):
        if s < 32 - TS:
            return [(f, s) for f in range(14)]
        k = (s - (32 - TS)) * 14
        return tail_uses[k:k + 14]

    def ds_reads(s):
        d = {}
        for pos, (f, t_) in enumerate(uses(s)):
            mat, j = f // 7, f % 7
            slot = t_ % R5
            d[pos] = ["ds_read_b64_tr_b16 %s, v%d offset:%d" % (
                ar(AW + pos * 4 + hf * 2, 2), VDS + slot // 4, (slot % 4) * SLOT + mat * 7168 + hf * 3584 + j * 32) for hf in range(2)]
        return d

    def mfmas(s):
        m = []
        for pos, (f, t_) in enumerate(uses(s)):
            for tb in range(4):
                m.append((mfma(vr((tb * 14 + f) * 4, 4), ar(AW + pos * 4, 4), ar(AACT + (t_ % R5) * 16 + tb * 4, 4)), [pos]))
        return m

    def need5(s):
        n = {("A", t_) for f, t_ in uses(s)}
        if s + 1 < 32:
            n |= {("W", t_) for f, t_ in uses(s + 1)}
        if NF1 < 16 and s == 2 * NF1 - R5 + 1:
            n.add(("P5",))
        return n

    def pro():
        srd(a, 12, 20, HH_BYTES, WS_HH)
        a("v_lshrrev_b32 v%d, 2, v%d" % (VT + 2, VL))
        a("v_mul_u32_u24 v%d, 224, v%d" % (VT + 2, VT + 2))
        a("v_and_b32 v%d, 3, v%d" % (VT + 3, VL))
        a("v_lshl_add_u32 v%d, v%d, 3, v%d" % (VDS, VT + 3, VT + 2))
        a("v_add_u32 v%d, %d, v%d" % (VDS + 1, 4 * SLOT, VDS))

    def pro_extra():
        return ["s_bitcmp1_b32 s3, 0", "s_cselect_b32 s52, s26, s24", "s_cselect_b32 s53, s27, s25",
                "s_cselect_b32 s60, %d, 0" % (WF_BYTES // 2),
                "s_mov_b32 s54, %d" % WF_BYTES, "s_mov_b32 s55, 0x20000",
                "s_lshl_b32 s56, s2, 1", "s_lshr_b32 s59, s3, 1", "s_add_u32 s56, s56, s59", "s_lshl_b32 s56, s56, 10",
                "s_add_u32 s60, s60, s56", "s_add_u32 s56, s56, %d" % (WF_BYTES // 2), "s_mov_b32 s59, 0",
                "v_lshrrev_b32 v249, 3, v%d" % VL, "v_lshlrev_b32 v249, 7, v249"]

    def extra(s):
        if PF and ((s % 2 == 0 and s < 26) or s == 1):
            return [[touch(251, 249, 52, "s56"), "s_add_u32 s56, s56, 0x80000", "s_add_u32 s59, s59, 1",
                     "s_cmp_eq_u32 s59, 7", "s_cselect_b32 s52, s22, s52", "s_cselect_b32 s53, s23, s53",
                     "s_cselect_b32 s56, s60, s56"]]
        return []

    def tail_extra():
        return [code_touch(a, "L_k56_seam", "L_code_end", 52, 56, 254, 251, VL)] if CPF else []

    AX1 = max(AW + 56, R * 16 + 64)
    VEC = R5 * SLOT + R * 16384
    VXK, VVEC = 252, 253
    slow = []
    o5 = dict(k5)
    if FUSE3:
        q5 = []

        def pro3():
            a("s_mov_b32 s92, s30")
            a("s_mov_b32 s93, s31")
            mapping5()
            vaddr5()
            a("s_mov_b32 s94, s30")
            a("s_mov_b32 s95, s31")
            a("s_mov_b32 s30, s92")
            a("s_mov_b32 s31, s93")

        def early3():
            wsrd5(60)
            for t in range(3):
                for x in flat(vm_w(t)):
                    a(x)
                    if is_vmem(x):
                        q5.append(("W", t))

        def poison3():
            srd(a, 12, 20, 0x800000, WS_XCH)
            a("s_lshl_b32 s34, s2, 2")
            a("s_add_u32 s34, s34, s3")
            a("s_lshl_b32 s34, s34, 13")
            a("s_add_u32 s35, s34, 4096")
            a("v_lshlrev_b32 v250, 4, v%d" % VL)
            for i in range(4):
                a("v_mov_b32 v%d, -1" % (244 + i))
            for i in range(4 if XBF else 8):
                a("buffer_store_dwordx4 v[244:247], v250, s[12:15], s%d offen offset:%d sc1" % (34 + i // 4, (i % 4) * 1024))

        phase3(a, R5 * SLOT, VEC, dict(pro=pro3, early=early3, poison=poison3, x1=AX1, vx=VXK, vvec=VVEC), **k3)
        if STM == "p3":
            stamp(a, 1)
        srd(a, 64, 20, 1024 << FS, WS_FLAG + (3072 << FS))
        a("s_lshl_b32 s32, s30, 2")
        a("s_add_u32 s32, s32, s3")
        a("s_lshl_b32 s32, s32, 4")
        a("s_add_u32 s32, s32, s31")
        a("s_lshl_b32 s32, s32, %d" % FS)
        a("s_mov_b32 s30, s94")
        a("s_mov_b32 s31, s95")
        a("s_lshl_b32 s33, s30, 2")
        a("s_add_u32 s33, s33, s3")
        a("s_lshl_b32 s68, s33, %d" % (5 + FS))
        a("v_mov_b32 v250, 0")
        a("v_mov_b32 v248, 1")
        a("v_and_b32 v246, 31, v%d" % VL)
        a("v_and_b32 v245, %d, v246" % (16 | (NF1 - 1)))
        a("v_lshlrev_b32 v245, %d, v245" % FS)
        a("v_lshlrev_b32 v246, %d, v246" % FS)
        a("s_mov_b64 s[24:25], s[60:61]")
        a("s_mov_b64 s[26:27], s[62:63]")
        srd(a, 4, 20, ACT_BYTES, WS_H2)
        a("s_mov_b32 s16, 0")
        a("s_waitcnt vmcnt(0)")
        if STM == "p3e":
            stamp(a, 2)
        a("s_mov_b64 exec, 1")
        a("buffer_store_dword v248, v250, s[64:67], s32 offen sc1")
        a("s_mov_b64 exec, -1")
        a("s_mov_b32 s34, 0x40000")
        lp, rdy = a.uid("spin"), a.uid("rdy")
        a.label(lp)
        a("buffer_load_dword v247, v245, s[64:67], s68 offen sc1")
        a("s_waitcnt vmcnt(0)")
        a("v_cmp_ne_u32 vcc, 1, v247")
        a("s_nop 1")
        a("s_cmp_eq_u64 vcc, 0")
        a("s_cbranch_scc1 %s" % rdy)
        if SLP[1]:
            a("s_sleep %d" % SLP[1])
        a("s_sub_u32 s34, s34, 1")
        a("s_cmp_lg_u32 s34, 0")
        a("s_cbranch_scc1 %s" % lp)
        a.label(rdy)
        if STM == "p3":
            stamp(a, 2)
        if STM == "p3e":
            stamp(a, 3)
        o5.update(queue0=q5, P=2)
    SLOT6 = 16384
    L6 = R5 * SLOT
    NST = 28
    VA6, VA62, VDS6, VFL, VP, VONE = 240, 241, 242, 246, 247, 248
    a_main, a = a, Asm()
    a("s_lshr_b32 s32, s31, 4")
    a("s_mul_i32 s32, s32, 56")
    a("s_and_b32 s33, s31, 15")
    a("s_add_u32 s34, s33, s32")
    a("s_lshl_b32 s98, s34, 17")
    a("s_add_u32 s99, s98, %d" % (16 * KBS))
    a("s_add_u32 s100, s98, %d" % (32 * KBS))
    a("s_lshr_b32 s34, s33, 1")
    a("s_add_u32 s34, s34, s32")
    a("s_add_u32 s34, s34, 48")
    a("s_lshl_b32 s101, s34, 17")
    a("s_and_b32 s35, s31, 1")
    a("s_lshl_b32 s35, s35, %d" % (10 if COMPACT else 3))
    a("s_add_u32 s101, s101, s35")
    a("s_lshl_b32 s92, s30, 2")
    a("s_add_u32 s92, s92, s3")
    a("s_lshl_b32 s92, s92, 5")
    a("s_add_u32 s92, s92, s31")
    a("s_lshl_b32 s92, s92, %d" % FS)
    srd(a, 56, 20, 3072 << FS, WS_FLAG)
    a("s_and_b32 s28, s2, 1")
    a("s_lshr_b32 s29, s2, 3")
    a("s_bfe_u32 s30, s2, 0x20001")
    a("s_lshl_b32 s30, s30, 2")
    a("s_and_b32 s31, s29, 3")
    a("s_add_u32 s30, s30, s31")
    a("s_lshr_b32 s29, s29, 2")
    a("s_lshl_b32 s31, s29, 1")
    a("s_add_u32 s31, s31, s28")
    a("s_lshl_b32 s94, s30, 1")
    a("s_lshr_b32 s33, s3, 1")
    a("s_add_u32 s94, s94, s33")
    a("s_lshl_b32 s94, s94, %d" % (5 + FS))
    a("s_lshl_b32 s33, s28, %d" % (4 + FS))
    a("s_add_u32 s94, s94, s33")
    a("v_and_b32 v%d, 15, v%d" % (VFL, VL))
    a("v_min_u32 v254, %d, v%d" % (2 * NA1 - 1, VFL))
    a("v_lshlrev_b32 v254, %d, v254" % FS)
    a("v_lshlrev_b32 v%d, %d, v%d" % (VFL, FS, VFL))
    a("v_mov_b32 v%d, 1" % VONE)
    a("v_mov_b32 v250, 0")
    a("s_lshl_b32 s32, s30, 13")
    a("s_lshl_b32 s33, s3, 11")
    a("s_add_u32 s32, s32, s33")
    a("v_lshlrev_b32 v%d, 4, v%d" % (VA6, VL))
    a("v_add_u32 v%d, s32, v%d" % (VA6, VA6))
    a("v_add_u32 v%d, %d, v%d" % (VA62, KBS, VA6))
    a("v_lshrrev_b32 v%d, 3, v%d" % (VT, VL))
    a("v_and_b32 v%d, 6, v%d" % (VT + 1, VT))
    a("v_and_b32 v%d, 7, v%d" % (VT + 2, VL))
    a("v_xor_b32 v%d, v%d, v%d" % (VT + 1, VT + 1, VT + 2))
    a("v_lshlrev_b32 v%d, 11, v%d" % (VT, VT))
    a("v_lshl_add_u32 v%d, v%d, 4, v%d" % (VT, VT + 1, VT))
    a("s_lshl_b32 s32, s3, 15")
    a("s_add_u32 s32, s32, 4096")
    a("s_lshl_b32 s33, s31, 7")
    a("s_add_u32 s34, s32, s33")
    a("s_xor_b32 s33, s33, 128")
    a("s_add_u32 s35, s32, s33")
    a("v_add_u32 v%d, s34, v%d" % (VW, VT))
    a("v_add_u32 v%d, %d, v%d" % (VW + 1, 8 * 2048 - 1024, VW))
    a("v_add_u32 v%d, s35, v%d" % (VW + 2, VT))
    a("v_add_u32 v%d, %d, v%d" % (VW + 3, 8 * 2048 - 3072, VW + 2))
    a("v_subrev_u32 v%d, 2048, v%d" % (VW + 2, VW + 2))
    a("s_lshl_b32 s38, s3, 12")
    a("s_add_u32 s38, s38, %d" % L6)
    a("s_mul_i32 s16, s28, %d" % (56 * KBS))
    a("s_mul_i32 s17, s28, %d" % (1792 * 2048))
    a("s_lshr_b32 s33, s3, 1")
    a("s_mul_i32 s33, s33, %d" % (96 * 2048))
    a("s_add_u32 s17, s17, s33")
    a("s_add_u32 s97, s17, s33")
    a("s_add_u32 s97, s97, %d" % (96 * 2048))
    if PF6:
        assert PF6 < 7
        a("s_add_u32 s96, s17, %d" % (PF6 * 224 * 2048))
        a("s_lshr_b32 s33, s2, 3")
        a("s_lshl_b32 s33, s33, 11")
        a("s_lshr_b32 s34, s3, 1")
        a("s_lshl_b32 s34, s34, 16")
        a("s_add_u32 s33, s33, s34")
        a("s_and_b32 s34, s3, 1")
        a("s_lshl_b32 s34, s34, 10")
        a("s_add_u32 s33, s33, s34")
        a("s_add_u32 s33, s33, %d" % (4096 + 256))
        a("v_and_b32 v255, 1, v%d" % VL)
        a("v_lshlrev_b32 v255, 7, v255")
        a("v_add_u32 v255, s33, v255")
    a("s_sub_u32 s8, s22, 4096")
    a("s_subb_u32 s9, s23, 0")
    a("s_mov_b32 s10, %d" % (WF_BYTES + 4096))
    srd(a, 4, 20, HH_BYTES, WS_HH)
    a("v_lshrrev_b32 v%d, 2, v%d" % (VT, VL))
    a("v_lshlrev_b32 v%d, 7, v%d" % (VT, VT))
    a("v_bfe_u32 v%d, v%d, 3, 2" % (VT + 1, VL))
    a("v_lshl_add_u32 v%d, v%d, 5, v%d" % (VT, VT + 1, VT))
    a("v_and_b32 v%d, 3, v%d" % (VT + 1, VL))
    a("v_lshl_add_u32 v%d, v%d, 3, v%d" % (VT, VT + 1, VT))
    for jj in range(4):
        a("v_xor_b32 v%d, %d, v%d" % (VDS6 + jj, jj << 5, VT))
        a("v_add_u32 v%d, %d, v%d" % (VDS6 + jj, L6, VDS6 + jj))

    a("s_mov_b32 s42, 0x%x" % NLOG2E)
    a("s_mov_b32 s43, 0x%x" % f32bits(62.0))
    setup6 = lines(a)
    a = a_main

    def adv6(r, t):
        if t in (7, 15):
            return "s_sub_u32 s%d, s%d, %d" % (r, r, (7 * 224 - 32) * 2048)
        if t < 23:
            return "s_add_u32 s%d, s%d, %d" % (r, r, 224 * 2048)
        if t == 23:
            return "s_mov_b32 s%d, s97" % r
        return "s_add_u32 s%d, s%d, %d" % (r, r, 448 * 2048)

    def vm_w6(slot, t):
        if TAIL6 and t >= 24:
            hs = 1 if t < 26 else 0
            g = []
            for hp_ in (1, 0):
                g.append(["s_add_u32 m0, s38, %d" % (slot * SLOT6 + (hp_ - hs) * 2048), "s_nop 0",
                          "buffer_load_dwordx4 v%d, s[8:11], s17 offen offset:%d lds" % (VW + 2 * hs, 2 * hs * 1024)])
                g.append(["buffer_load_dwordx4 v%d, s[8:11], s17 offen offset:%d lds" % (VW + 2 * hs + 1, (2 * hs + 1) * 1024),
                          "s_mov_b32 s17, s97" if (t == 25 and hp_ == 0) else "s_add_u32 s17, s17, %d" % (448 * 2048)])
            return g
        g = [["s_add_u32 m0, s38, %d" % (slot * SLOT6), "s_nop 0",
              "buffer_load_dwordx4 v%d, s[8:11], s17 offen lds" % VW]]
        for q in (1, 2, 3):
            g.append(["buffer_load_dwordx4 v%d, s[8:11], s17 offen offset:%d lds" % (VW + q, q * 1024)])
        g[-1].append(adv6(17, t))
        if PF6 and t + PF6 < NST:
            g.append([touch(251, 255, 8, "s96"), adv6(96, t + PF6)])
        return g

    VS6 = 128

    def a6reg(t, q):
        if COMPACT and t >= 24:
            return vr(VS6 + (t - 24) * 16 + q * 4, 4)
        return ar((t % R) * 16 + q * 4, 4)

    def vm_a6(buf, t, real=False):
        if TAIL6 and t >= 24 and not real:
            return vm_a6(buf, 2 * t - 24, True) + vm_a6(buf, 2 * t - 23, True)
        g = []
        for kk in range(2):
            for tb in range(2):
                ins = ["buffer_load_dwordx4 %s, v%d, s[4:7], s16 offen offset:%d %s" % (
                    a6reg(t, kk * 2 + tb), VA62 if kk else VA6, tb * 1024, LD6)]
                if kk and tb:
                    ins.append("s_add_u32 s16, s16, %d" % (2 * KBS))
                g.append(ins)
        return g

    q0 = []

    def vm(tag, inss):
        for x in inss:
            a(x)
            if is_vmem(x):
                q0.append(tag)

    def wn(tag):
        return min(63, len(q0) - 1 - max(i for i, x in enumerate(q0) if x == tag))

    def flag_store():
        return ["s_mov_b64 exec, 1", "buffer_store_dword v%d, v250, s[56:59], s92 offen sc1" % VONE, "s_mov_b64 exec, -1",
                "s_add_u32 s92, s92, %d" % (1024 << FS)]

    def poll_ld(so="s94"):
        return "buffer_load_dword v%d, v%d, s[56:59], s94 offen sc1" % (VP, 254 if so == "first" else VFL)

    def hh_store(pr, tb):
        if pr < 3:
            return "buffer_store_dwordx4 %s, v%d, s[12:15], s%d offen offset:%d sc1" % (vr(tb * 56 + 4 * pr, 4), VA, 98 + pr, tb * 1024)
        if COMPACT:
            return "buffer_store_dwordx4 %s, v%d, s[12:15], s101 offen offset:%d sc1" % (vr(tb * 56 + 12, 4), VA, tb * 1024)
        return "buffer_store_dwordx2 %s, v%d, s[12:15], s101 offen offset:%d sc1" % (vr(tb * 56 + 12, 2), VA, tb * 1024)

    def check(so="s94"):
        l_slow, l_back = a.uid("slow"), a.uid("back")
        slow.append((l_slow, l_back, so))
        return ["v_cmp_ne_u32 vcc, 1, v%d" % VP, "s_nop 1", "s_cmp_lg_u64 vcc, 0", "s_cbranch_scc1 %s" % l_slow, l_back + ":",
                "s_add_u32 s94, s94, %d" % (0 if so == "first" else 1024 << FS)]

    def glu(tb, j, t, pk=True):
        gb = (tb * 14 + j) * 4
        ub = (tb * 14 + 7 + j) * 4
        r = ["v_mul_f32 v%d, s42, v%d" % (t + e, gb + e) for e in range(4)]
        if RCP2:
            r += ["v_min_f32 v%d, s43, v%d" % (t + e, t + e) for e in range(4)]
            r += ["v_exp_f32 v%d, v%d" % (t + e, t + e) for e in range(4)]
            r += ["v_add_f32 v%d, 1.0, v%d" % (t + e, t + e) for e in range(4)]
            r += ["v_mul_f32 v%d, v%d, v%d" % (gb + e, t + e, t + e + 1) for e in (0, 2)]
            r += ["v_rcp_f32 v%d, v%d" % (gb + e, gb + e) for e in (0, 2)]
            r += ["v_mul_f32 v%d, v%d, v%d" % (ub + e, ub + e, t + (e ^ 1)) for e in range(4)]
            r += ["v_mul_f32 v%d, v%d, v%d" % (t + e, ub + e, gb + (e & 2)) for e in range(4)]
        else:
            r += ["v_exp_f32 v%d, v%d" % (t + e, t + e) for e in range(4)]
            r += ["v_add_f32 v%d, 1.0, v%d" % (t + e, t + e) for e in range(4)]
            r += ["v_rcp_f32 v%d, v%d" % (t + e, t + e) for e in range(4)]
            r += ["v_mul_f32 v%d, v%d, v%d" % (t + e, t + e, ub + e) for e in range(4)]
        d = tb * 56 + 2 * j
        if COMPACT and j == 6 and tb & 1:
            d = (tb - 1) * 56 + 14
        r.append("v_cvt_pk_bf16_f32 v%d, v%d, v%d" % (d, t, t + 1))
        r.append("v_cvt_pk_bf16_f32 v%d, v%d, v%d" % (d + 1, t + 2, t + 3))
        return r

    def build_items(pk):
        it = []
        for pr in range(4):
            g = min(pr, 2)
            done = (32 - TS) * 56 + 4 * TS * sum(len(x) for x in GROUPS[:g + 1]) + 9
            for tb in range(4):
                units = [(2 * pr, VT), (2 * pr + 1, VT + 4)] if pr < 3 else [(6, VT + (tb & 1) * 4)]
                gl = [glu(tb, j, tmp, pk) for j, tmp in units]
                if GILV and len(gl) == 2:
                    sk = GILV
                    seq = gl[0][:sk]
                    for k in range(len(gl[1])):
                        seq += gl[0][sk + k:sk + k + 1] + [gl[1][k]]
                else:
                    seq = flat(gl)
                it += [(done, "valu", None, [x], None) for x in seq]
                if pr == 0:
                    it.append((done, "vm", "SA", [hh_store(0, tb)], None))
                if (pr, tb) == FLAGA_AT:
                    it.append((done, "wait", {"SA"}, [], None))
                    it.append((done, "vm", "F", flag_store(), None))
                if (pr, tb) == POLLA_AT:
                    it.append((1 << 30, "poll", None, [], None))
                if (pr, tb) == CHECKA_AT:
                    it.append((1 << 30, "check", None, [], None))
        return it

    items = build_items(TAILPK)
    placed = {}
    gap = 0.0
    ndone = 0
    for k, (e, kind, tag, inss, unit) in enumerate(items):
        gap = max(gap, e)
        if gap >= 32 * 56 - 1 or not FILL:
            break
        placed.setdefault(int(gap) // 56, []).append((int(gap) % 56, kind, tag, inss))
        gap += 1.0 / FILL
        ndone = k + 1
    rest = items[ndone:]

    C5 = 2 * NF1 - R5 + 1
    POLL5 = "buffer_load_dword v247, v246, s[64:67], s68 offen sc1"
    l5s, l5b = a.uid("slow"), a.uid("back")

    def aux5(s):
        r = list(placed.get(s, []))
        if NF1 < 16 and s == C5 - 1:
            r.append((P5POS, "vm", ("P5",), [POLL5]))
        if NF1 < 16 and s == C5:
            r.append((0, "valu", None, ["v_cmp_ne_u32 vcc, 1, v247", "s_nop 1", "s_cmp_lg_u64 vcc, 0",
                                        "s_cbranch_scc1 %s" % l5s, l5b + ":"]))
        if s == SETUP_AT:
            r += [(k * 55 // len(setup6), "valu", None, [x]) for k, x in enumerate(setup6)]
        if s == SETUP_AT + 1:
            gs = [(t_, g) for t_ in range(3) for g in vm_w6(t_, t_)]
            r += [(2 + k * 3, "vm", ("W6", t_), g) for k, (t_, g) in enumerate(gs)]
        return r

    SETUP_AT = 32 - R5 + 1
    assert SETUP_AT + 1 < 32 and min(list(placed) + [99]) > SETUP_AT
    q = gemm_loop(a, 32, R5, mfmas, ds_reads, vm_w, vm_a, pro, tail_extra=tail_extra, pro_extra=pro_extra, extra=extra,
                  stamps=(None, 3 if STM == "p3" else (0 if STM == "p6" else None)), bystep=True, need_extra=need5, aux=aux5, **o5)
    a.label("L_k56_seam")
    for x in q:
        q0.append(("W", x[1]) if isinstance(x, tuple) and x[0] == "W6" else (x if isinstance(x, str) else "old"))
    for e, kind, tag, inss, unit in rest:
        if kind == "valu":
            emit(a, inss)
        elif kind == "vm":
            vm(tag, inss)
        elif kind == "wait":
            a("s_waitcnt vmcnt(%d)" % wn("SA"))
        elif kind == "poll":
            vm("P", [poll_ld("first" if NA1 < 8 else "s94")])
            for tb2 in range(4):
                vm("SB", [hh_store(1, tb2)])
        elif kind == "check":
            a("s_waitcnt vmcnt(%d)" % wn("P"))
            emit(a, check("first" if NA1 < 8 else "s94"))
            for t in range(min(3, NA1)):
                vm(("A", t), flat(vm_a6(t, t)))

    ACC, ACS = 16, 72
    VX, T = VXK, 50
    RES, GV, X, INB = 0, 56, 192, 72
    WF6 = R * 16
    PK = 108
    VDH6 = 104
    for jj in range(4):
        a("v_add_u32 v%d, %d, v%d" % (VDH6 + jj, 4 * SLOT6, VDS6 + jj))

    def ds_reads6(s):
        slot = s % R
        d = {}
        for kk in range(2):
            for h in range(2):
                for jj in range(4):
                    f = (kk * 2 + h) * 4 + jj
                    d[f] = ["ds_read_b64_tr_b16 %s, v%d offset:%d" % (
                        ar(WF6 + f * 4 + hf * 2, 2), (VDH6 if slot >= 4 else VDS6) + jj, (slot % 4) * SLOT6 + (2 * kk + hf) * 4096 + h * 2048) for hf in range(2)]
        return d

    def mfmas6(u):
        m = []
        for h in (1, 0):
            for kk in range(2):
                for jj in range(4):
                    for tb in range(2):
                        f = (kk * 2 + h) * 4 + jj
                        hs, real = h, u
                        if TAIL6 and u >= 24:
                            hs, real = (1 if u < 26 else 0), 24 + 2 * (u & 1) + (1 - h)
                        m.append((mfma(vr((ACS if hs else ACC) + (tb * 4 + jj) * 4, 4), ar(WF6 + f * 4, 4),
                                       a6reg(real, kk * 2 + tb)), [f]))
        return m

    b = Asm()
    srd(b, 52, 20, 0x800000, WS_XCH)
    b("v_lshlrev_b32 v%d, 4, v%d" % (T, VL))
    b("s_lshl_b32 s36, s2, 2")
    b("s_add_u32 s36, s36, s3")
    b("s_xor_b32 s37, s36, 4")
    b("s_lshl_b32 s39, s37, 13")
    b("s_add_u32 s40, s39, 4096")
    b("s_lshl_b32 s36, s36, 13")
    b("s_add_u32 s37, s36, 4096")
    b("s_mov_b32 s43, 0x8000")
    srd(b, 44, 90, ACT_BYTES)
    if OUTFULL:
        b("v_bfe_u32 v%d, v%d, 3, 1" % (T + 3, VL))
        b("v_mul_u32_u24 v%d, %d, v%d" % (T + 3, 8 * 2048 - 64, T + 3))
        b("v_sub_u32 v%d, v%d, v%d" % (T + 2, VX, T + 3))
        b("v_add_u32 v%d, %d, v%d" % (T + 3, 8 * 2048, T + 2))
    if OUTPF:
        b(touch(251, VX, 44, "0"))
        b(touch(251, VX, 44, "s43"))
    eg = [lines(b)]

    FB, PB, CB = GENB
    SC0, FC, PC, CC = GENC
    cst = [hh_store(2, tb) for tb in range(4)] + [hh_store(3, tb) for tb in range(0, 4, 2 if COMPACT else 1)]
    NCS = len(cst) // 2

    def extra6(s):
        r = []
        if 0 <= s - SC0 < NCS:
            r += [[cst[2 * (s - SC0)]], [cst[2 * (s - SC0) + 1]]]
        return r

    def need6(s):
        n = set()
        if s == FB:
            n.add("SB")
        if s == FC:
            n.add(("X", SC0 + NCS - 1))
        if NA1 < 8 and s == 1:
            n.add(("P", 0))
        if s == CB:
            n.add(("P", PB))
        if s == CC:
            n.add(("P", PC))
        return n

    def aux6(s):
        r = []
        if COMPACT and s >= 24 and not TAIL6:
            b_ = VS6 + (s - 24) * 16
            r.append((0, "valu", None, ["v_swap_b32 v%d, v%d" % (b_ + kk * 8 + 2 + e, b_ + kk * 8 + 4 + e) for kk in range(2) for e in range(2)]
                      + ["s_nop 1"]))
        if TAIL6 and s in (24, 25):
            b_ = VS6 + (s - 24) * 32
            r.append((0, "valu", None, ["v_swap_b32 v%d, v%d" % (b_ + kk * 8 + 2 + e, b_ + kk * 8 + 4 + e) for kk in range(4) for e in range(2)]
                      + ["s_nop 1"]))
        if TAIL6 and s == 27:
            pre = ["v_accvgpr_read_b32 v%d, a%d" % (RES + i, AX1 + i) for i in range(16)]
            for i in range(16):
                pre += ["v_lshlrev_b32 v%d, 16, v%d" % (X + 2 * i, RES + i), "v_and_b32 v%d, 0xffff0000, v%d" % (X + 2 * i + 1, RES + i)]
            r += [(k * 30 // len(pre), "valu", None, [x]) for k, x in enumerate(pre)]
            for jj in range(4):
                r.append((20 + jj, "ds", ("GV",), ["ds_read_b128 %s, v%d offset:%d" % (vr(GV + jj * 4, 4), VVEC, 768 + jj * 64)]))
            for i in range(4):
                r.append((INPOS + i, "vm", ("I",), ["buffer_load_dwordx4 %s, v%d, s[52:55], s36 offen offset:%d sc1" % (vr(PK + i * 4, 4), T, i * 1024)]))
        if NA1 < 8 and s == 0:
            r.append((A2POS, "vm", ("P", 0), [poll_ld()]))
        if s in (CB, CC) or (NA1 < 8 and s == 1):
            r.append((0, "valu", None, check()))
        if s in (FB, FC):
            r.append((0, "vm", ("F",), flag_store()))
        if s in (PB, PC):
            r.append((POLLPOS, "vm", ("P", s), [poll_ld()]))
        if s == NST - 1 and not XBF:
            for k, (jj, tb) in enumerate([(jj, tb) for jj in range(4) for tb in range(2)]):
                i = tb * 4 + jj
                r.append((18 + k + (k > 3), "vm", ("X",), ["buffer_store_dwordx4 %s, v%d, s[52:55], s%d offen offset:%d sc1" % (
                    vr(ACS + i * 4, 4), T, 39 + i // 4, (i % 4) * 1024)]))
        if s == (26 if TAIL6 else NST - 1) and XBF:
            for k, (kb, tb) in enumerate([(kb, tb) for kb in range(2) for tb in range(2)]):
                q = tb * 2 + kb
                src = ACS + (tb * 4 + 2 * kb) * 4
                ins = ["v_cvt_pk_bf16_f32 v%d, v%d, v%d" % (PK + q * 4 + e, src + 2 * e, src + 2 * e + 1) for e in range(4)]
                pos = 8 + 2 * (2 * kb + 1) + tb + 10
                if TAIL6:
                    pos = 24 + 2 * (2 * kb + 1) + tb + 10 - 32
                r.append((pos, "valu", None, ins))
                r.append((pos, "vm", ("X",), ["buffer_store_dwordx4 %s, v%d, s[52:55], s39 offen offset:%d sc1" % (vr(PK + q * 4, 4), T, q * 1024)]))
        return r

    assert CB <= 9 - R and CC <= 17 - R
    o = dict(P=0, Q=4, vm_span=1.0, LG=10)
    o.update(k6)
    o.pop("R", None)
    gemm_loop(a, NST, R, mfmas6, ds_reads6, vm_w6, vm_a6, lambda: None, tail_extra=lambda: eg, aux=aux6, extra=extra6,
              queue0=q0, stepaware=2, bystep=True, need_extra=need6, skip=[("A", 26), ("A", 27)] if TAIL6 else (), hold={("A", NA1): 1} if NA1 < 8 else {}, stamps=(None, 3 if STM in ("p6", "p6b", "none") else None),
              midstamps={"p6": {0: 1, 8: 2}, "p6b": {0: 0, 5: 1, 16: 2}}.get(STM, {}), **o)
    if not TAIL6:
        if FUSE3:
            for i in range(16):
                a("v_accvgpr_read_b32 v%d, a%d" % (RES + i, AX1 + i))
        for jj in range(4):
            a("ds_read_b128 %s, v%d offset:%d" % (vr(GV + jj * 4, 4), VVEC, 768 + jj * 64))
        for i in range(16):
            a("v_lshlrev_b32 v%d, 16, v%d" % (X + 2 * i, RES + i))
            a("v_and_b32 v%d, 0xffff0000, v%d" % (X + 2 * i + 1, RES + i))
    a("s_waitcnt lgkmcnt(0)")
    for i in range(8):
        for e in (0, 2):
            a("v_pk_fma_f32 %s, %s, %s, %s" % (vr(X + i * 4 + e, 2), vr(ACC + i * 4 + e, 2), vr(GV + (i % 4) * 4 + e, 2), vr(X + i * 4 + e, 2)))
    a("s_mov_b32 s60, 0x40000")
    poll = a.uid("poll")
    ready = a.uid("ready")
    chk = a.uid("chk")
    if TAIL6:
        a("s_branch %s" % chk)
    a.label(poll)
    NXL = 4 if XBF else 8
    LB_ = PK if XBF else INB
    for i in range(NXL):
        a("buffer_load_dwordx4 %s, v%d, s[52:55], s%d offen offset:%d sc1" % (vr(LB_ + i * 4, 4), T, 36 + i // 4, (i % 4) * 1024))
    a.label(chk)
    for i in range(NXL):
        a("s_waitcnt vmcnt(%d)" % (NXL - 1 - i))
        if i == 0:
            a("v_max3_u32 v%d, v%d, v%d, v%d" % (T + 1, LB_, LB_ + 1, LB_ + 2))
            a("v_max_u32 v%d, v%d, v%d" % (T + 1, T + 1, LB_ + 3))
        else:
            a("v_max3_u32 v%d, v%d, v%d, v%d" % (T + 1, T + 1, LB_ + i * 4, LB_ + i * 4 + 1))
            a("v_max3_u32 v%d, v%d, v%d, v%d" % (T + 1, T + 1, LB_ + i * 4 + 2, LB_ + i * 4 + 3))
    a("v_cmp_eq_u32 vcc, -1, v%d" % (T + 1))
    a("s_nop 1")
    a("s_cmp_eq_u64 vcc, 0")
    a("s_cbranch_scc1 %s" % ready)
    if SLP[2]:
        a("s_sleep %d" % SLP[2])
    a("s_sub_u32 s60, s60, 1")
    a("s_cmp_lg_u32 s60, 0")
    a("s_cbranch_scc1 %s" % poll)
    a.label(ready)
    for tb in range(2):
        for kb in range(2):
            for jj in (2 * kb, 2 * kb + 1):
                i = tb * 4 + jj
                if XBF:
                    for e in range(2):
                        a("v_lshlrev_b32 v%d, 16, v%d" % (INB + i * 4 + 2 * e, PK + 2 * i + e))
                        a("v_and_b32 v%d, 0xffff0000, v%d" % (INB + i * 4 + 2 * e + 1, PK + 2 * i + e))
                for e in (0, 2):
                    a("v_pk_fma_f32 %s, %s, %s, %s" % (vr(X + i * 4 + e, 2), vr(INB + i * 4 + e, 2), vr(GV + jj * 4 + e, 2), vr(X + i * 4 + e, 2)))
                a("v_cvt_pk_bf16_f32 v%d, v%d, v%d" % (RES + 2 * i, X + i * 4, X + i * 4 + 1))
                a("v_cvt_pk_bf16_f32 v%d, v%d, v%d" % (RES + 2 * i + 1, X + i * 4 + 2, X + i * 4 + 3))
            r = RES + (tb * 2 + kb) * 4
            a("s_nop 1")
            a("v_permlane16_swap_b32 v%d, v%d" % (r, r + 2))
            a("v_permlane16_swap_b32 v%d, v%d" % (r + 1, r + 3))
            if not OUTFULL:
                a("s_nop 1")
                a("buffer_store_dwordx4 %s, v%d, s[44:47], %s offen offset:%d %s" % (vr(r, 4), VX, "s43" if tb else "0", kb * 64, OUTFLAGS))
        if OUTFULL:
            r0, r1, c0 = RES + tb * 8, RES + tb * 8 + 4, PK + tb * 4
            for e in range(4):
                a("v_mov_b32 v%d, v%d" % (c0 + e, r0 + e))
            a("s_nop 1")
            for e in range(4):
                a("v_mov_b32_dpp v%d, v%d row_ror:8 row_mask:0xf bank_mask:0xc" % (r0 + e, r1 + e))
            for e in range(4):
                a("v_mov_b32_dpp v%d, v%d row_ror:8 row_mask:0xf bank_mask:0x3" % (r1 + e, c0 + e))
            a("buffer_store_dwordx4 %s, v%d, s[44:47], %s offen %s" % (vr(r0, 4), T + 2, "s43" if tb else "0", OUTFLAGS))
            a("buffer_store_dwordx4 %s, v%d, s[44:47], %s offen %s" % (vr(r1, 4), T + 3, "s43" if tb else "0", OUTFLAGS))
    stamp_store(a, 5, VT, 20, 5)
    a("s_endpgm")
    if NF1 < 16:
        spin(a, l5s, l5b, POLL5, 247, 69)
    for l_slow, l_back, so in slow:
        lp = a.uid("spin")
        a.label(l_slow)
        a("s_mov_b32 s60, 0x40000")
        a.label(lp)
        a(poll_ld(so))
        a("s_waitcnt vmcnt(0)")
        a("v_cmp_ne_u32 vcc, 1, v%d" % VP)
        a("s_nop 1")
        a("s_cmp_eq_u64 vcc, 0")
        a("s_cbranch_scc1 %s" % l_back)
        if SLP[3]:
            a("s_sleep %d" % SLP[3])
        a("s_sub_u32 s60, s60, 1")
        a("s_cmp_lg_u32 s60, 0")
        a("s_cbranch_scc1 %s" % lp)
        a("s_branch %s" % l_back)
    a.label(end)
    a("s_endpgm")
    a.end_kernel(name, 256, AX1 + 16, 102)
    a.launch(name, 256, 256, VEC + 1024)


HEADER = """; adaLN + sliding local dilated attention + GLU block, gfx950.  Generated by dev/gen2.py (hand-written generator).
"""


def build(stamps=False, k2={}, k3={}, k5={}, k6={}):
    global STAMPS
    STAMPS = stamps
    a = Asm()
    if MERGE0 == 2:
        gen_k012b(a, **k2)
    elif MERGE0:
        gen_k012(a, **k2)
    else:
        gen_k0(a)
        gen_k12(a, **k2)
    gen_k356(a, k3=k3, k5=k5, k6=k6)
    a.label("L_code_end")
    a("s_endpgm")
    return a.text(HEADER)


CFG = dict(k3=dict(P=6, vm_span=1.0, LG=10))

if __name__ == "__main__":
    open("/code/%s.s" % NAME, "w").write(build(False, **CFG))
    open("full_st.s", "w").write(build(True, **CFG))
```

```python
import re

TRANS = ("v_exp_f32", "v_rcp_f32", "v_rsq_f32", "v_sqrt_f32", "v_log_f32")


def regs(tok):
    tok = tok.strip()
    m = re.fullmatch(r"-?(?:abs\()?([vas])(\d+)\)?", tok)
    if m:
        return {(m.group(1), int(m.group(2)))}
    m = re.fullmatch(r"([vas])\[(\d+):(\d+)\]", tok)
    if m:
        return {(m.group(1), i) for i in range(int(m.group(2)), int(m.group(3)) + 1)}
    if tok == "vcc":
        return {("s", 106), ("s", 107)}
    if tok in ("exec", "exec_hi", "exec_lo"):
        return {("x", 0)}
    if tok == "m0":
        return {("m", 0)}
    return set()


_pc = {}


def parse(line):
    if line in _pc:
        return _pc[line]
    d = _parse(line)
    _pc[line] = d
    return d


def _parse(line):
    line = line.split(";")[0].strip()
    if not line or line.startswith(".") or line.endswith(":"):
        return None
    p = line.split(None, 1)
    op = p[0]
    ops = []
    if len(p) > 1:
        body = re.sub(r"(op_sel\w*|neg_\w+|quad_perm):\[[^\]]*\]", "", p[1])
        ops = [o.strip().split(" ")[0] for o in body.split(",")]
    d = dict(op=op, text=line, W=set(), R=set(), kind="o")
    R = lambda *idx: set().union(*[regs(ops[i]) for i in idx if i < len(ops)]) if idx else set()
    allr = set().union(*[regs(o) for o in ops]) if ops else set()
    rest = lambda k: set().union(*[regs(o) for o in ops[k:]]) if len(ops) > k else set()
    if op.startswith("v_mfma"):
        d.update(kind="mfma", W=R(0), A=R(1, 2), C=R(3), R=R(1, 2, 3))
    elif op.startswith("v_cmp"):
        d.update(kind="valu", W=R(0), R=R(1, 2))
    elif op.startswith("v_readfirstlane") or op.startswith("v_readlane"):
        d.update(kind="valu", W=R(0), R=R(1), rfl=True)
    elif op.startswith("v_permlane") or op.startswith("v_swap"):
        d.update(kind="valu", W=R(0, 1), R=R(0, 1), perm=op.startswith("v_permlane"))
    elif op.startswith("v_") and "_co_" in op:
        d.update(kind="valu", W=R(0, 1), R=rest(2))
    elif op.startswith("v_"):
        d.update(kind="valu", W=R(0), R=rest(1))
        if op.startswith("v_fmac"):
            d["R"] |= d["W"]
        if "dpp" in op:
            d["dpp"] = True
            d["R"] |= d["W"]
        if op in TRANS:
            d["trans"] = True
    elif op.startswith("buffer_load") or op.startswith("global_load"):
        if line.endswith("lds"):
            d.update(kind="vmem", R=allr | {("m", 0)}, dma=True)
        else:
            d.update(kind="vmem", W=R(0), R=rest(1))
    elif op.startswith("buffer_store") or op.startswith("buffer_atomic"):
        d.update(kind="vmem", R=allr, sdata=R(0) if ("x4" in op or "x3" in op) else set())
    elif op.startswith("ds_read") or op.startswith("ds_add_rtn"):
        d.update(kind="ds", W=R(0), R=rest(1))
    elif op.startswith("ds_"):
        d.update(kind="ds", R=allr)
    elif op.startswith("s_load") or op.startswith("s_mem"):
        d.update(kind="smem", W=R(0), R=rest(1))
    elif op.startswith("s_"):
        nw = op.startswith(("s_cmp", "s_bitcmp", "s_cbranch", "s_branch", "s_waitcnt", "s_nop", "s_barrier"))
        d.update(kind="salu", W=set() if nw else R(0), R=allr if nw else rest(1))
    d["ws"] = (int(ops[0]) + 1) if op == "s_nop" else 1
    return d


def isv(s):
    return {r for r in s if r[0] in "va"}


def iss(s):
    return {r for r in s if r[0] == "s"}


def pair_need(p, c):
    need = 0
    if p["kind"] == "valu":
        if c["kind"] == "mfma" and isv(p["W"]) & c["R"]:
            need = 2
        if c.get("perm") and isv(p["W"]) & c["R"]:
            need = max(need, 2)
        if p.get("perm") and c["kind"] in ("valu", "vmem", "ds") and p["W"] & c["R"]:
            need = max(need, 2)
        if c.get("dpp") and isv(p["W"]) & c["R"]:
            need = max(need, 2)
        if c.get("rfl") and isv(p["W"]) & c["R"]:
            need = max(need, 1)
        if p.get("trans") and c["kind"] == "valu" and not c.get("trans") and p["W"] & c["R"]:
            need = max(need, 1)
        if c["kind"] == "valu" and iss(p["W"]) & c["R"]:
            need = max(need, 2)
        if c["kind"] == "vmem" and iss(p["W"]) & c["R"]:
            need = max(need, 5)
        if c["kind"] in ("salu", "smem") and iss(p["W"]) & c["R"]:
            need = max(need, 2)
    if p["kind"] == "mfma":
        if c["kind"] == "mfma":
            if p["W"] & c["A"]:
                need = 8
            if p["W"] & c["C"] and p["W"] != c["C"]:
                need = max(need, 6)
            if p["W"] & c["W"] and p["W"] != c["C"]:
                need = max(need, 8)
        elif c["kind"] in ("valu", "vmem", "ds") and p["W"] & (c["R"] | c["W"]):
            need = 8
        if c["kind"] == "valu" and p["C"] & c["W"]:
            need = max(need, 3)
    if p["kind"] == "salu" and ("m", 0) in p["W"] and c.get("dma"):
        need = max(need, 1)
    if p.get("sdata") and p["sdata"] & c["W"]:
        need = max(need, 2)
    return need


VMCOST = [8]


def cost_of(ins):
    d = parse(ins)
    if d is None:
        return 0
    if d.get("trans"):
        return 8
    if d["kind"] == "vmem":
        return VMCOST[0]
    if d["kind"] == "mfma":
        return 16
    if d["op"].startswith("v_pk_"):
        return 8
    return 4 * d["ws"]


class Item:
    def __init__(self, ins, at=0, delay=0, after=(), sets=None, needv=(), needd=(), vtag=None, dtag=None, bar=False, pause=0):
        self.ins = [ins] if isinstance(ins, str) else list(ins)
        self.at, self.delay, self.after, self.sets = at, delay, set(after), sets
        self.needv, self.needd, self.vtag, self.dtag = set(needv), set(needd), vtag, dtag
        self.pause = pause
        self.bar = bar
        self.cost = sum(cost_of(i) for i in self.ins)


class Stream:
    def __init__(self, items, name="", budget=None, rate=None):
        self.items = list(items)
        self.name = name
        self.last = -10 ** 9
        self.lastbar = -1
        self.budget = budget
        self.rate = rate
        self.credit = 0.0


class Page:
    def __init__(self, key, src, at=0, after=()):
        self.key, self.src = key, src
        self.at, self.after = at, set(after)
        self.addr = None
        self.issued = None
        self.visible = False
        self.freed = False
        self.reads = []
        self.nreads = 0
        self.want = self.need = 10 ** 9


class AGroup:
    def __init__(self, tag, ops, at=0, after=()):
        self.tag, self.ops, self.at, self.after = tag, ops, at, set(after)
        self.dl = 10 ** 9


class Sched:
    def __init__(self, a, nf, fragreg, dsbase, page0, npages, m0base):
        self.a = a
        self.hist = []
        self.vq, self.dq = [], []
        self.vdone = self.ddone = -1
        self.nf, self.fragreg, self.dsbase = nf, fragreg, dsbase
        self.free = [page0 + 4096 * i for i in range(npages)]
        self.m0base = m0base
        self.events = {}
        self.streams = []
        self.pend = []
        self.lastvm = -10 ** 9
        self.i = 0
        self.nbar = 0
        self.sreg = {}
        self.LG = 10
        self.LGMIN = 0
        self.nops = 0
        self.log = []
        self.leads = []
        self.vnext = -1e9
        self.vstep = 1.0

    def short(self, ins):
        c = parse(ins)
        if c is None:
            return 0
        dist, worst = 0, 0
        for p in reversed(self.hist[-12:]):
            worst = max(worst, pair_need(p, c) - dist)
            dist += p["ws"]
        return worst

    def ins(self, ins, vtag=None, dtag=None):
        for l in ins.split("\n"):
            l = l.strip()
            if not l:
                continue
            if l.endswith(":"):
                self.a.label(l[:-1])
                continue
            c = parse(l)
            if c is None:
                self.a(l)
                continue
            n = self.short(l)
            if n > 0:
                self.a("s_nop %d" % (n - 1))
                self.hist.append(parse("s_nop %d" % (n - 1)))
                self.nops += n
            self.a(l)
            self.hist.append(c)
            if c["kind"] == "vmem":
                self.vq.append(vtag)
                self.lastvm = self.i
            elif c["kind"] == "ds":
                self.dq.append(dtag)
            elif c["op"] == "s_waitcnt":
                m = re.search(r"vmcnt\((\d+)\)", l)
                if m:
                    self.vdone = max(self.vdone, len(self.vq) - 1 - int(m.group(1)))
                m = re.search(r"lgkmcnt\((\d+)\)", l)
                if m:
                    self.ddone = max(self.ddone, len(self.dq) - 1 - int(m.group(1)))

    __call__ = ins

    def label(self, n):
        self.a.label(n)

    def uid(self, b):
        return self.a.uid(b)

    def emit(self, lst, vtag=None, dtag=None):
        for x in lst:
            self.ins(x, vtag, dtag)

    def _cnt(self, q, done, tags, cap):
        last = -1
        for k in range(len(q) - 1, done, -1):
            if q[k] in tags:
                last = k
                break
        if last < 0:
            return None
        return min(cap, len(q) - 1 - last)

    def wait(self, v=(), d=(), lg=None):
        nv = self._cnt(self.vq, self.vdone, set(v), 63) if v else None
        nd = self._cnt(self.dq, self.ddone, set(d), self.LG if lg is None else lg) if d else None
        if nv is None and nd is None:
            return 0
        self.ins("s_waitcnt" + (" vmcnt(%d)" % nv if nv is not None else "") + (" lgkmcnt(%d)" % nd if nd is not None else ""))
        return 4

    def setup(self, main, frags, pages, agroups, bars, margin=6, lat=60, cuts=()):
        self.main, self.frags = main, frags
        self.pages = {p.key: p for p in pages}
        self.pq = list(pages)
        self.aq = list(agroups)
        self.bars = sorted(bars)
        self.lat = lat
        self.cuts = sorted(cuts)
        order, fu, lu = [], {}, {}
        af = {}
        for i, (t, f, at) in enumerate(main):
            if f is not None:
                if f not in fu:
                    fu[f] = i
                    order.append(f)
                lu[f] = i
            for x in (at if isinstance(at, list) else [at]):
                if x is not None and x not in af:
                    af[x] = i
        self.forder, self.fu, self.lu = order, fu, lu
        self.fbuf = {f: k % self.nf for k, f in enumerate(order)}
        self.rq = []
        for k, f in enumerate(order):
            e = lu[order[k - self.nf]] + 1 if k >= self.nf else 0
            assert e <= fu[f], (f, e, fu[f])
            for r, rd in enumerate(frags[f]):
                self.rq.append((e, f, r))
                p = self.pages[rd[0]]
                p.nreads += 1
                p.want = min(p.want, e)
                p.need = min(p.need, max([e, fu[f] - margin] + [c for c in cuts if c <= fu[f]]))
        for p in pages:
            assert p.nreads, p.key
            b = sorted(x for x in self.bars + self.cuts if x <= p.want)
            p.dl = b[-1] if b else 0
        for g in agroups:
            g.dl = af[g.tag]
        self.margin = margin
        self.seenC = set()

    def add(self, st):
        self.streams.append(st)
        return st

    def barrier(self, nxt=None):
        i = self.i
        if nxt is None:
            later = sorted(x for x in self.bars + self.cuts if x > i)
            nxt = later[0] if later else 10 ** 9
        vis = []
        for p in self.pages.values():
            if p.visible:
                continue
            if p.need < nxt:
                if p.issued is None:
                    self.flush_until(p)
                vis.append(p)
            elif p.want < nxt and p.issued is not None and p.issued <= i - self.lat:
                vis.append(p)
        self.wait(v={("W", p.key) for p in vis})
        landed = set(self.vq[:self.vdone + 1])
        vis = [p for p in self.pages.values() if not p.visible and ("W", p.key) in landed]
        done = set(self.dq[:self.ddone + 1])
        self.ins("s_barrier")
        self.nbar += 1
        for p in vis:
            p.visible = True
        for p in self.pages.values():
            if p.visible and not p.freed and len(p.reads) == p.nreads and all(t in done for t in p.reads):
                p.freed = True
                self.free.append(p.addr)

    def ok_after(self, s):
        return all(e in self.events for e in s)

    def pick(self, force=False):
        c = []
        if self.pq:
            p = self.pq[0]
            if self.free and p.at <= self.i and self.ok_after(p.after):
                c.append((p.dl, 0, p))
        if self.aq:
            g = self.aq[0]
            if g.at <= self.i and self.ok_after(g.after):
                c.append((g.dl, 1, g))
        if not c:
            return False
        dl, kind, x = min(c, key=lambda t: (t[0], t[1]))
        if kind == 0:
            self.pq.pop(0)
            x.addr = self.free.pop(0)
            pre, ld, imm = x.src
            ops = [o for o in pre]
            ops.append("s_add_u32 m0, %s, %d" % (self.m0base, x.addr - imm))
            ops.append(ld)
            self.pend = [(o, ("W", x.key), x) for o in ops]
        else:
            self.aq.pop(0)
            self.pend = [(o, x.tag, None) for o in x.ops]
        self.pdl = dl
        return True

    def pend_step(self):
        o, tag, pg = self.pend.pop(0)
        m = re.fullmatch(r"s_mov_b32 (s\d+), (\S+)", o)
        if m:
            if self.sreg.get(m.group(1)) == m.group(2):
                return 0
            self.sreg[m.group(1)] = m.group(2)
        self.ins(o, vtag=tag)
        if parse(o)["kind"] == "vmem":
            self.leads.append((self.i, "W" if pg is not None else "A", self.pdl - self.i))
            self.vnext = min(max(self.vnext, self.i - 1.0), self.i + 1.0) + self.vstep
            if pg is not None:
                pg.issued = self.i
        return cost_of(o)

    def flush_until(self, p):
        n = 0
        while p.issued is None:
            if not self.pend:
                assert self.pick(), ("page cannot be issued", p.key, self.i, len(self.free))
            self.pend_step()
            n += 1
        self.log.append("gap %d: forced issue up to page %s (%d ops)" % (self.i, p.key, n))

    def pump(self, n, only=None):
        k = 0
        while k < n:
            if not self.pend:
                sv = None
                if only == "W":
                    sv, self.aq = self.aq, []
                if only == "A":
                    sv, self.pq = self.pq, []
                ok = self.pick()
                if only == "W":
                    self.aq = sv
                if only == "A":
                    self.pq = sv
                if not ok:
                    break
            isvm = parse(self.pend[0][0])["kind"] == "vmem"
            self.pend_step()
            k += isvm
        self.vnext = self.i
        return k

    def read_ready(self):
        if not self.rq:
            return False
        e, f, r = self.rq[0]
        return e <= self.i and self.pages[self.frags[f][r][0]].visible

    def do_read(self):
        e, f, r = self.rq.pop(0)
        pk, kind, off, tmpl, half = self.frags[f][r]
        p = self.pages[pk]
        base, o = self.dsbase(kind, p.addr + off)
        tag = ("F", f, r)
        self.ins(tmpl.format(d=self.fragreg(self.fbuf[f], half), b=base, o=o), dtag=tag)
        p.reads.append(tag)

    def reads(self, n=99):
        k = 0
        while k < n and self.read_ready():
            self.do_read()
            k += 1
        return k

    def item_ready(self, st):
        if not st.items:
            return False
        it = st.items[0]
        if it.at > self.i or st.last + it.delay > self.i or not self.ok_after(it.after):
            return False
        if it.bar and self.nbar <= st.lastbar:
            return False
        if it.needd and self.LGMIN:
            n = self._cnt(self.dq, self.ddone, it.needd, 99)
            if n is not None and n < self.LGMIN:
                return False
        return all(self.short(x) == 0 for x in it.ins[:2])

    def do_item(self, st):
        it = st.items.pop(0)
        c = self.wait(v=it.needv, d=it.needd)
        self.emit(it.ins, vtag=it.vtag, dtag=it.dtag)
        st.last = self.i
        st.lastbar = self.nbar
        if it.pause:
            self.vnext = max(self.vnext, self.i + it.pause)
        if it.sets:
            self.events[it.sets] = self.i
        return c + it.cost

    def drain(self, st, upto=None):
        n = 0
        while st.items and not (upto and upto in self.events):
            it = st.items[0]
            assert self.ok_after(it.after), (st.name, it.after)
            if it.bar and self.nbar <= st.lastbar:
                self.barrier()
            self.do_item(st)
            n += 1
        if n:
            self.log.append("gap %d: drained %d items of %s" % (self.i, n, st.name))

    def run(self, end, budget=lambda i: 8, vsp=lambda i: 5, urgent=24, hooks={}, pair=lambda i: False):
        while self.i < end:
            i = self.i
            if i in hooks:
                hooks[i]()
            B = budget(i)
            if i in self.bars:
                self.barrier()
                B -= 8
            tmpl, f, at = self.main[i]
            if not self.pend:
                self.pick()
            vm_now = False
            if self.pend:
                isvm = parse(self.pend[0][0])["kind"] == "vmem"
                self.vstep = vsp(i)
                due = i - self.lastvm >= 2 and (self.pdl - i < urgent or i >= self.vnext)
                if isvm and due and B >= 8:
                    vm_now = True
            late = self.read_ready() and self.fu[self.rq[0][1]] - i <= self.margin
            if vm_now and not late:
                B -= self.pend_step()
            else:
                n = 0
                while self.read_ready() and (B >= 4 and n < 2 or self.fu[self.rq[0][1]] - i <= 2):
                    if n == 1 and not pair(i) and i - self.rq[0][0] < 2 and self.fu[self.rq[0][1]] - i > self.margin:
                        break
                    self.do_read()
                    B -= 4
                    n += 1
            while self.pend and B >= 4 and parse(self.pend[0][0])["kind"] != "vmem":
                B -= self.pend_step()
            for st in self.streams:
                lim = B if st.budget is None else B + st.budget(i)
                if st.rate and st.items and st.items[0].at <= i and self.ok_after(st.items[0].after):
                    st.credit = min(st.credit + st.rate(i), 24)
                while self.item_ready(st) and (lim >= st.items[0].cost or (lim >= 8 and st.items[0].cost > 8)
                                               or (st.items[0].cost and st.credit + max(lim, 0) >= 2 * st.items[0].cost)):
                    c = self.do_item(st)
                    lim -= c
                    B -= c
                    st.credit = max(st.credit - c, -32)
            ats = [x for x in (at if isinstance(at, list) else [at]) if x is not None]
            for x in ats:
                while any(g.tag == x for g in self.aq) or any(t == x for o, t, p in self.pend):
                    if not self.pend:
                        assert self.pick(), ("operand cannot be issued", x, i)
                    self.pend_step()
                    self.log.append("gap %d: late operand %s" % (i, x))
            if f is not None:
                while any(r[1] == f for r in self.rq[:4]):
                    assert self.read_ready(), ("fragment not readable", f, i)
                    self.do_read()
                self.wait(v=ats, d={("F", f, r) for r in range(len(self.frags[f]))})
                t = tmpl.format(W=self.fragreg(self.fbuf[f], None))
            else:
                self.wait(v=ats)
                t = tmpl
            self.ins(t)
            self.i += 1


    def lead_report(self, step=64):
        r = []
        for k in range(0, self.i, step):
            w = [l for i, t, l in self.leads if k <= i < k + step and t == "W"]
            x = [l for i, t, l in self.leads if k <= i < k + step and t == "A"]
            r.append("%d:%dW%s/%dA%s" % (k, len(w), ">%d" % min(w) if w else "", len(x), ">%d" % min(x) if x else ""))
        return " ".join(r)
```

```python
import gen2
from gen2 import NAME, f32bits, srd, xsum, xred, wave_lane, round_bf16_pair, ln_finish, mfma, touch, lines, flat
from asmlib import *
from sched import *

WS_MOD, MODP, WS_STAT, WS_FLAG = gen2.WS_MOD, gen2.MODP, gen2.WS_STAT, gen2.WS_FLAG
WS_H1, WS_O, WS_HH, WS_H2, WS_XCH = gen2.WS_H1, gen2.WS_O, gen2.WS_HH, gen2.WS_H2, gen2.WS_XCH
WS_X1 = gen2.WS_X1
WS_SIZE = 0x2800000
ACT_BYTES, HH_BYTES, WF_BYTES, KBS, NLOG2E, SPIN, FS = gen2.ACT_BYTES, gen2.HH_BYTES, gen2.WF_BYTES, gen2.KBS, gen2.NLOG2E, gen2.SPIN, gen2.FS

P = dict(
    T5=10, T6=4, NA=12, NF=12, BAR5=56, BAR6=32, BAR3=16,
    VSP3=2, VSP5=6, VSP6=4, LG=10,
    GB_A=16, GB_B=6, GB_C=7, GB_D=3,
    FD_A=48, FD_B=60, FD_C=60, FD_D=60,
    CA=-50, CB=6 * 32, CC=10 * 32, CD=18 * 32, PLAT=40,
    PFSTEP=112, INPOS=-12, NF1=2, PRE3=6, W5AT="pub", W5N=12,
    LEAD5=224, LEADA=224, DEEP=22,
    CHAIN=1, COMPACT=1, SPF=22, SPF2=1, LG5=13, PF0=60, PFG=1, PFP=0, WALK=1, WOFF=0, IPF=0, IPD=2048, PFT=1, PAIR=2, VMC=8, VSP5D=6, TR0=None, TRS=56,
    STM="p3", DBGX1=False,
)

MISC = 8192
NPAGES = 38
LDS_BYTES = MISC + NPAGES * 4096
VEC = 0

VL, VA5, VW1, VW2, VDS = 224, 225, 226, 227, 228
VA3, VW3, VW6S, VFA, VP, VTAG, VF0, VTA, VTD, VX, VVEC, VT16, VA6, VW6K, VFB = 240, 241, 242, 243, 244, 245, 246, 247, 248, 249, 250, 251, 252, 253, 254
SW, SWO, SG, SU, SD, SX, SO, ST = 4, 8, 12, 16, 44, 48, 52, 56
SA_, SWF, SM0, SNL = 40, 41, 42, 43
SHA, SHB, SHC, SHC2 = 60, 61, 62, 63
SFP, SFC, SF2P, SF2C, SSR, SSW, SIN, SOUTB, SH2, SH2B, STAG = 90, 91, 92, 93, 94, 95, 96, 97, 98, 99, 100
S8K = 38
SCMP = 68


def stamp(S, idx):
    if gen2.STAMPS:
        S("s_memtime s[%d:%d]" % (70 + 2 * idx, 71 + 2 * idx))
        S("s_memrealtime s[%d:%d]" % (80 + 2 * idx, 81 + 2 * idx))
        S("s_waitcnt lgkmcnt(0)")


def sq(s):
    return "s[%d:%d]" % (s, s + 3)


def srd_fin(a, d, nbytes):
    a("s_mov_b32 s%d, 0x%x" % (d + 2, nbytes))
    a("s_mov_b32 s%d, 0x20000" % (d + 3))


def cap(fn, *args):
    b = Asm()
    fn(b, *args)
    return [x for x in lines(b) if not x.startswith("s_nop")]


def items(lst, **kw):
    r = [Item(x) for x in lst]
    if r and kw:
        r[0] = Item(lst[0], **kw)
    return r


def code_touch(S, vo):
    lab = S.uid("pc")
    return ["s_getpc_b64 s[30:31]", lab + ":",
            "s_lshr_b32 s32, s2, 3", "s_lshl_b32 s32, s32, 2", "s_add_u32 s32, s32, s3", "s_lshl_b32 s32, s32, 13",
            "v_lshlrev_b32 v%d, 7, v%d" % (vo, VL), "v_add_u32 v%d, s32, v%d" % (vo, vo),
            "v_min_u32 v%d, L_code_end-%s-4, v%d" % (vo, lab, vo),
            "global_load_dword v%d, v%d, s[30:31]" % (VTD, vo)]


TR = "ds_read_b64_tr_b16 {d}, v{b} offset:{o}"


def acc5(tb, m, grp, jj):
    if grp == 2:
        return ((tb * 2 + m) * 2 + jj) * 4 if jj < 2 else 64 + (tb * 2 + m) * 4
    return 96 + ((tb * 2 + m) * 4 + jj) * 4


def wd_row(p):
    if p < 16:
        return 448 * (p >> 2) + (64, 192, 224, 352)[p & 3]
    if p < 24:
        q = p - 16
        return 448 * (q >> 1) + (96, 320)[q & 1]
    t, h = (p - 24) & 15, (p - 24) >> 4
    return 448 * (t >> 2) + 128 * (t & 3) + 32 * h


def gen_kb(a, name="k5_kernel"):
    T5, T6, NA, NF = P["T5"], P["T6"], P["NA"], P["NF"]
    AWF = NA * 16
    AX1 = AWF + NF * 4
    assert AX1 + 16 <= 256
    STM = P["STM"]

    def fragreg(buf, half):
        return ar(AWF + buf * 4, 4) if half is None else ar(AWF + buf * 4 + 2 * half, 2)

    def dsbase(kind, addr):
        w = addr >> 16
        return VDS + 4 * w + kind, addr - (w << 16)

    a.begin_kernel(name)
    S = Sched(a, NF, fragreg, dsbase, MISC, NPAGES, "s%d" % SM0)
    S.LG = P["LG"]
    end = S.uid("end")

    main, frags, pages, ags = [], {}, [], []
    seen = set()

    def vsing(s, q):
        return 96 + ((s - 8) * 2 + (q >> 1)) * 16 + (q & 1) * 4

    def areg(gs, q):
        if P["COMPACT"] and 56 <= gs < 60:
            return vr(vsing(gs - 48, q), 4)
        return ar((gs % NA) * 16 + q * 4, 4)

    def mm(acc, f, gs, q):
        c = vr(acc, 4) if (acc, f[0]) in seen else "0"
        seen.add((acc, f[0]))
        main.append((mfma(vr(acc, 4), "{W}", areg(gs, q), c), f, ("A", gs)))

    def page(key, srd_, v, soff, njj, **kw):
        pages.append(Page(key, (["s_mov_b32 s%d, %d" % (SWF, soff)],
                                "buffer_load_dwordx4 v%d, %s, s%d offen lds" % (v, sq(srd_), SWF), 0), **kw))
        for jj in range(njj):
            frags[key + (jj,)] = [(key, jj, hf * 2048, TR, hf) for hf in range(2)]

    ACC3 = 0
    CH = P["CHAIN"]
    for s in range(16):
        for kk in range(2):
            page((3, 2 * s + kk), SWO, VW3, (2 * s + kk) * 32 * 2048, 4)
        for kk, jj, tb in ([(kk, jj, tb) for jj in range(4) for tb in range(2) for kk in range(2)] if CH else
                           [(kk, jj, tb) for kk in range(2) for jj in range(4) for tb in range(2)]):
            mm(ACC3 + (tb * 4 + jj) * 4, (3, 2 * s + kk, jj), s, kk * 2 + tb)
    I5 = len(main)
    ks = 2 if CH else 1
    assert T5 % ks == 0
    u5 = [(s, g) for s in range(0, 32 - T5, ks) for g in (2, 1)] + [(s, g) for g in (2, 3, 4) for s in range(32 - T5, 32, ks)]
    pos5, end5 = {}, {}
    for s0, g in u5:
        pos5[(s0, g)] = len(main)
        pg = 2 if g == 2 else 1
        if g != 4:
            for m in range(2):
                for s in range(s0, s0 + ks):
                    page((5, s, m, pg), (SG, SU)[m], VW1 if pg == 1 else VW2, s * 32 * 7168, 4 if pg == 1 else 3, after={"w5"})
        js = {1: [(m, jj) for m in range(2) for jj in range(4)], 2: [(0, 0), (0, 1), (1, 0), (1, 1), (0, 2), (1, 2)],
              3: [(m, jj) for m in range(2) for jj in (0, 1)], 4: [(m, jj) for m in range(2) for jj in (2, 3)]}[g]
        for m, jj in js:
            for tb in range(4):
                for s in range(s0, s0 + ks):
                    mm(acc5(tb, m, pg, jj), (5, s, m, pg, jj), 16 + s, tb)
            end5[(m, pg, jj)] = len(main)
    I6 = len(main)
    u6 = [(s, h) for s in range(28 - T6) for h in (1, 0)] + [(s, h) for h in (1, 0) for s in range(28 - T6, 28)]
    pos6 = {}
    for s, h in u6:
        pos6[(s, h)] = len(main)
        for kk in range(2):
            page((6, 2 * s + kk, h), SD, VW6S if h else VW6K, wd_row(2 * s + kk) * 2048, 4)
        for kk, jj, tb in ([(kk, jj, tb) for jj in range(4) for tb in range(2) for kk in range(2)] if CH else
                           [(kk, jj, tb) for kk in range(2) for jj in range(4) for tb in range(2)]):
            mm(h * 32 + (tb * 4 + jj) * 4, (6, 2 * s + kk, h, jj), 48 + s, kk * 2 + tb)
    IE = len(main)
    lastA = {}
    for i, (t, f, at) in enumerate(main):
        lastA[at[1]] = i
    NF1 = P["NF1"]
    for gs in range(76):
        at = lastA[gs - NA] + 1 if gs >= NA else 0
        if gs < 16 or gs >= 48:
            s, v, base, fl = (gs, VA3, WS_O, "") if gs < 16 else (gs - 48, VA6, WS_HH, " sc1")
            ops = []
            for kk in range(2):
                ops.append("s_mov_b32 s%d, %d" % (SA_, base + (2 * s + kk) * KBS))
                ops += ["buffer_load_dwordx4 %s, v%d, %s, s%d offen offset:%d%s" % (areg(gs, kk * 2 + tb), v, sq(SW), SA_, tb * 1024, fl) for tb in range(2)]
            aft = set() if gs < 16 else {"chkA" if s < 8 else ("chkB" if s < 12 else ("chkC" if s < 20 else "chkD"))}
        else:
            s = gs - 16
            ops = ["s_mov_b32 s%d, %d" % (SA_, WS_H2 + s * KBS)]
            ops += ["buffer_load_dwordx4 %s, v%d, %s, s%d offen offset:%d sc1" % (areg(gs, tb), VA5, sq(SW), SA_, tb * 1024) for tb in range(4)]
            aft = {"h2a" if s < 2 * NF1 else "h2b"}
        if P["COMPACT"] and 56 <= gs < 60:
            aft.add("stC")
        ags.append(AGroup(("A", gs), ops, at=at, after=aft))
    bars = list(range(P["BAR3"], I5, P["BAR3"])) + list(range(I5 + 18, I6, P["BAR5"])) + list(range(I6 + 2, IE - 16, P["BAR6"]))
    S.setup(main, frags, pages, ags, bars, cuts=(0, I5))
    for p in pages:
        if p.key[0] == 5:
            p.at = max(p.at, p.want - (P["LEAD5"] if p.want < I5 + P["DEEP"] * 56 else 10000), min(p.want - P["LEAD5"], I5 + (P["DEEP"] - 6) * 56))
    for g in ags:
        if 16 <= g.tag[1] < 48 - T5:
            g.at = max(g.at, g.dl - P["LEADA"])

    S("s_cmp_ge_u32 s2, 256")
    S("s_cbranch_scc1 %s" % end)
    stamp(S, 0)
    for s_, ka in ((SW, KA_WS), (SWO, KA_WO), (SX, KA_X), (SG, KA_WG), (SU, KA_WU), (SD, KA_WD), (SO, KA_OUT), (20, KA_WS)):
        S("s_load_dwordx2 s[%d:%d], s[0:1], %d" % (s_, s_ + 1, ka))
    T = 80
    S("v_lshrrev_b32 v%d, 6, v0" % T)
    S("v_and_b32 v%d, 63, v0" % VL)
    S("v_readfirstlane_b32 s3, v%d" % T)
    S("v_lshlrev_b32 v%d, 4, v%d" % (VT16, VL))
    S("s_and_b32 s24, s2, 1")
    S("s_lshr_b32 s29, s2, 3")
    S("s_bfe_u32 s25, s2, 0x20001")
    S("s_lshl_b32 s25, s25, 2")
    S("s_and_b32 s30, s29, 3")
    S("s_add_u32 s25, s25, s30")
    S("s_lshr_b32 s26, s29, 2")
    S("s_lshl_b32 s26, s26, 1")
    S("s_add_u32 s26, s26, s24")
    S("s_lshl_b32 s30, s25, 13")
    S("s_lshl_b32 s31, s3, 11")
    S("s_add_u32 s30, s30, s31")
    S("v_add_u32 v%d, s30, v%d" % (VA3, VT16))
    S("v_lshrrev_b32 v%d, 3, v%d" % (T, VL))
    S("v_and_b32 v%d, 6, v%d" % (T + 1, T))
    S("v_and_b32 v%d, 7, v%d" % (T + 2, VL))
    S("v_xor_b32 v%d, v%d, v%d" % (T + 1, T + 1, T + 2))
    S("s_lshl_b32 s30, s3, 3")
    S("v_add_u32 v%d, s30, v%d" % (T, T))
    S("v_lshlrev_b32 v%d, 11, v%d" % (T + 2, T))
    S("v_lshl_add_u32 v%d, v%d, 4, v%d" % (T + 2, T + 1, T + 2))
    S("s_lshl_b32 s30, s26, 7")
    S("v_add_u32 v%d, s30, v%d" % (VW3, T + 2))
    S("s_lshl_b32 s%d, s3, 10" % SM0)
    S("s_waitcnt lgkmcnt(0)")
    srd_fin(S, SWO, 1024 * 1024 * 2)
    srd_fin(S, SW, WS_SIZE)
    S.pump(P["PRE3"] * 3)
    srd_fin(S, SX, ACT_BYTES)
    srd_fin(S, SG, WF_BYTES)
    srd_fin(S, SU, WF_BYTES)
    srd_fin(S, SD, WF_BYTES)
    srd_fin(S, SO, ACT_BYTES)
    S("s_mul_i32 s30, s24, %d" % (1792 * 2048))
    S("v_add_u32 v%d, s30, v%d" % (VW6K, VW3))
    S("v_xor_b32 v%d, 128, v%d" % (VW6S, VW6K))
    S("s_mul_i32 s30, s24, %d" % (56 * KBS))
    S("v_add_u32 v%d, s30, v%d" % (VA6, VA3))
    S("s_lshl_b32 s27, s24, 2")
    S("s_and_b32 s30, s29, 3")
    S("s_add_u32 s27, s27, s30")
    S("s_bfe_u32 s28, s2, 0x20001")
    S("s_lshl_b32 s28, s28, 3")
    S("s_lshr_b32 s30, s29, 2")
    S("s_add_u32 s28, s28, s30")
    S("s_lshl_b32 s30, s27, 14")
    S("s_lshl_b32 s31, s3, 12")
    S("s_add_u32 s30, s30, s31")
    S("v_add_u32 v%d, s30, v%d" % (VA5, VT16))
    S("s_movk_i32 s30, 7168")
    S("v_mul_u32_u24 v%d, s30, v%d" % (T + 2, T))
    S("v_lshl_add_u32 v%d, v%d, 4, v%d" % (T + 2, T + 1, T + 2))
    S("s_lshr_b32 s30, s28, 2")
    S("s_mul_i32 s30, s30, 896")
    S("s_and_b32 s31, s28, 3")
    S("s_lshl_b32 s32, s31, 8")
    S("s_add_u32 s32, s32, s30")
    S("v_add_u32 v%d, s32, v%d" % (VW1, T + 2))
    S("s_lshl_b32 s31, s31, 3")
    S("s_lshr_b32 s32, 0x%x, s31" % (4 | 12 << 8 | 14 << 16 | 22 << 24))
    S("s_and_b32 s32, s32, 255")
    S("s_lshl_b32 s32, s32, 5")
    S("s_add_u32 s32, s32, s30")
    S("s_lshr_b32 s33, 0x%x, s31" % (6 | 7 << 8 | 20 << 16 | 21 << 24))
    S("s_and_b32 s33, s33, 255")
    S("s_lshl_b32 s33, s33, 5")
    S("s_add_u32 s33, s33, s30")
    S("s_sub_u32 s33, s33, 64")
    S("v_mov_b32 v%d, s32" % (T + 3))
    S("v_mov_b32 v%d, s33" % (T + 4))
    S("v_cmp_lt_u32 vcc, 3, v%d" % (T + 1))
    S("v_cndmask_b32 v%d, v%d, v%d, vcc" % (T + 3, T + 3, T + 4))
    S("v_mov_b32 v%d, 0x40000000" % (T + 4))
    S("v_cmp_lt_u32 vcc, 5, v%d" % (T + 1))
    S("v_cndmask_b32 v%d, v%d, v%d, vcc" % (T + 3, T + 3, T + 4))
    S("v_add_u32 v%d, v%d, v%d" % (VW2, T + 3, T + 2))
    S("v_lshrrev_b32 v%d, 2, v%d" % (T, VL))
    S("v_lshlrev_b32 v%d, 7, v%d" % (T, T))
    S("v_bfe_u32 v%d, v%d, 3, 2" % (T + 1, VL))
    S("v_lshl_add_u32 v%d, v%d, 5, v%d" % (T, T + 1, T))
    S("v_and_b32 v%d, 3, v%d" % (T + 1, VL))
    S("v_lshl_add_u32 v%d, v%d, 3, v%d" % (VDS, T + 1, T))
    for jj in range(1, 4):
        S("v_xor_b32 v%d, %d, v%d" % (VDS + jj, jj << 5, VDS))
    for w in (1, 2):
        for jj in range(4):
            S("v_add_u32 v%d, 0x%x, v%d" % (VDS + 4 * w + jj, w << 16, VDS + jj))
    S("s_lshr_b32 s30, s28, 4")
    S("s_mul_i32 s30, s30, 56")
    S("s_and_b32 s31, s28, 15")
    S("s_add_u32 s32, s30, s31")
    S("s_lshl_b32 s32, s32, 17")
    S("s_add_u32 s%d, s32, %d" % (SHA, WS_HH))
    S("s_lshr_b32 s32, s31, 1")
    S("s_add_u32 s32, s32, s30")
    S("s_lshl_b32 s32, s32, 17")
    S("s_and_b32 s33, s31, 1")
    S("s_lshl_b32 s33, s33, %d" % (10 if P["COMPACT"] else 3))
    S("s_add_u32 s32, s32, s33")
    S("s_add_u32 s%d, s32, %d" % (SHB, WS_HH + 16 * KBS))
    S("s_add_u32 s%d, s%d, %d" % (SHC, SHA, 24 * KBS))
    S("s_add_u32 s%d, s%d, %d" % (SHC2, SHA, 40 * KBS))
    S("s_lshl_b32 s30, s27, 2")
    S("s_add_u32 s30, s30, s3")
    S("s_lshl_b32 s30, s30, 5")
    S("s_lshl_b32 s31, s30, %d" % FS)
    S("s_add_u32 s%d, s31, %d" % (SF2C, WS_FLAG + (3072 << FS)))
    S("s_add_u32 s30, s30, s28")
    S("s_lshl_b32 s30, s30, %d" % FS)
    S("s_add_u32 s%d, s30, %d" % (SFP, WS_FLAG))
    S("s_lshl_b32 s30, s25, 1")
    S("s_lshr_b32 s31, s3, 1")
    S("s_add_u32 s30, s30, s31")
    S("s_lshl_b32 s30, s30, 1")
    S("s_add_u32 s30, s30, s24")
    S("s_lshl_b32 s30, s30, %d" % (4 + FS))
    S("s_add_u32 s%d, s30, %d" % (SFC, WS_FLAG))
    S("s_lshl_b32 s30, s25, 2")
    S("s_add_u32 s30, s30, s3")
    S("s_lshl_b32 s30, s30, 4")
    S("s_add_u32 s30, s30, s26")
    S("s_lshl_b32 s30, s30, %d" % FS)
    S("s_add_u32 s%d, s30, %d" % (SF2P, WS_FLAG + (3072 << FS)))
    S("s_mov_b32 s%d, 1" % STAG)
    S("v_mov_b32 v%d, s%d" % (VTAG, STAG))
    S("v_cmp_ne_u32 vcc, 0, v%d" % VL)
    S("v_mov_b32 v%d, 0x40000000" % T)
    S("v_cndmask_b32 v%d, 0, v%d, vcc" % (VF0, T))
    S("v_and_b32 v%d, 31, v%d" % (VFB, VL))
    S("v_and_b32 v%d, %d, v%d" % (VFA, 16 | (NF1 - 1), VFB))
    S("v_lshlrev_b32 v%d, %d, v%d" % (VFA, FS, VFA))
    S("v_lshlrev_b32 v%d, %d, v%d" % (VFB, FS, VFB))
    S("s_lshl_b32 s30, s25, 14")
    S("s_lshl_b32 s31, s3, 8")
    S("s_add_u32 s30, s30, s31")
    S("s_add_u32 s%d, s30, %d" % (SSR, WS_STAT))
    S("s_lshl_b32 s31, s26, 10")
    S("s_add_u32 s%d, s%d, s31" % (SSW, SSR))
    S("s_lshl_b32 s30, s2, 2")
    S("s_add_u32 s30, s30, s3")
    S("s_xor_b32 s31, s30, 4")
    S("s_lshl_b32 s30, s30, 13")
    S("s_lshl_b32 s31, s31, 13")
    S("s_add_u32 s%d, s30, %d" % (SIN, WS_XCH))
    S("s_add_u32 s%d, s31, %d" % (SOUTB, WS_XCH))
    S("s_lshl_b32 s30, s26, 18")
    S("s_add_u32 s%d, s30, %d" % (SH2, WS_H2))
    S("s_add_u32 s%d, s30, %d" % (SH2B, WS_H2 + KBS))
    S("s_mov_b32 s%d, 0x8000" % S8K)
    S("s_mov_b32 s%d, 0x%x" % (SNL, NLOG2E))
    S("v_and_b32 v%d, 15, v%d" % (T, VL))
    S("v_lshlrev_b32 v%d, 11, v%d" % (VX, T))
    S("v_bfe_u32 v%d, v%d, 4, 1" % (T + 2, VL))
    S("v_lshl_add_u32 v%d, v%d, 5, v%d" % (VX, T + 2, VX))
    S("v_lshrrev_b32 v%d, 5, v%d" % (T + 2, VL))
    S("v_lshl_add_u32 v%d, v%d, 4, v%d" % (VX, T + 2, VX))
    S("s_lshl_b32 s30, s25, 18")
    S("s_lshl_b32 s31, s3, 16")
    S("s_add_u32 s30, s30, s31")
    S("s_lshl_b32 s31, s26, 7")
    S("s_add_u32 s30, s30, s31")
    S("v_add_u32 v%d, s30, v%d" % (VX, VX))
    S("v_lshrrev_b32 v%d, 4, v%d" % (VVEC, VL))
    S("v_lshlrev_b32 v%d, 4, v%d" % (VVEC, VVEC))
    S("s_bitcmp1_b32 s3, 0")
    S("s_cselect_b32 s%d, s%d, s%d" % (ST, SU, SG))
    S("s_cselect_b32 s%d, s%d, s%d" % (ST + 1, SU + 1, SG + 1))
    S("s_cselect_b32 s37, %d, 0" % (WF_BYTES // 2))
    srd_fin(S, ST, WF_BYTES)
    if P["PFT"]:
        S("s_lshr_b32 s30, s2, 6")
        S("s_lshl_b32 s30, s30, 5")
        S("s_and_b32 s31, s2, 31")
        S("s_add_u32 s30, s30, s31")
        S("s_lshl_b32 s30, s30, 1")
        S("s_lshr_b32 s31, s3, 1")
        S("s_add_u32 s30, s30, s31")
        S("s_lshl_b32 s30, s30, 11")
        S("s_add_u32 s31, s28, 1")
        S("s_bitcmp1_b32 s31, 1")
        S("s_cselect_b32 s30, 0x40000000, s30")
        S("v_lshrrev_b32 v%d, 2, v%d" % (VTA, VL))
    else:
        S("s_lshl_b32 s30, s2, 1")
        S("s_lshr_b32 s31, s3, 1")
        S("s_add_u32 s30, s30, s31")
        S("s_lshl_b32 s30, s30, 10")
        S("v_lshrrev_b32 v%d, 3, v%d" % (VTA, VL))
    S("v_lshlrev_b32 v%d, 7, v%d" % (VTA, VTA))
    S("v_add_u32 v%d, s30, v%d" % (VTA, VTA))

    S.emit(["s_lshl_b32 s22, s2, 2", "s_add_u32 s22, s22, s3", "s_lshl_b32 s22, s22, 7", "s_add_u32 s22, s22, 60",
            "s_add_u32 s22, s22, s%d" % SD, "s_addc_u32 s23, s%d, 0" % (SD + 1)])
    def ipf():
        return ["s_getpc_b64 s[22:23]", "s_load_dword s101, s[22:23], %d" % P["IPD"]]
    if P["IPF"]:
        S.add(Stream([Item(x, at=g) for g in range(0, IE - 60, P["IPF"]) for x in ipf()], "ipf", budget=lambda i: 4))

    RES, GV, SB, S2, XU, E = 48, 64, 96, 112, 128, 160
    VM, VS1, VS2 = 88, 89, 90
    S("v_lshrrev_b32 v%d, 4, v%d" % (VM, VL))
    S("s_movk_i32 s30, %d" % MODP)
    S("v_mul_u32_u24 v%d, s30, v%d" % (VM, VM))
    S("v_and_b32 v%d, 15, v%d" % (T, VL))
    S("v_lshl_add_u32 v%d, v%d, 4, v%d" % (VM, T, VM))
    S("s_lshl_b32 s30, s26, 8")
    S("s_lshl_b32 s31, s3, 12")
    S("s_add_u32 s30, s30, s31")
    S("s_add_u32 s36, s30, %d" % (WS_MOD + 8192))
    S("v_lshlrev_b32 v%d, 4, v%d" % (T + 4, T))
    S("s_lshl_b32 s30, s3, 8")
    S("v_add_u32 v%d, s30, v%d" % (T + 4, T + 4))
    S("v_lshlrev_b32 v%d, 3, v%d" % (VS1, VL))
    S("v_lshrrev_b32 v%d, 4, v%d" % (VS2, VL))
    S("v_lshlrev_b32 v%d, 12, v%d" % (VS2, VS2))
    S("v_lshl_add_u32 v%d, v%d, 3, v%d" % (VS2, T, VS2))
    S("v_cmp_gt_u32 s[34:35], 16, v%d" % VL)
    S("s_cmp_eq_u32 s3, 2")
    S("s_cselect_b32 s39, 1.0, 0")

    st = [Item("buffer_load_dwordx4 %s, v%d, %s, s36 offen" % (vr(SB, 4), VM, sq(SW)), at=24, vtag="M")]
    v = cap(xsum, [SB + i for i in range(4)], [SB + 4 + i for i in range(4)], (16, 32))
    v += cap(round_bf16_pair, SB, SB + 1, SB + 4) + cap(round_bf16_pair, SB + 2, SB + 3, SB + 5)
    v += ["v_add_f32 v%d, s39, v%d" % (SB + i, SB + i) for i in range(4)]
    v += cap(round_bf16_pair, SB, SB + 1, SB + 4) + cap(round_bf16_pair, SB + 2, SB + 3, SB + 5)
    st += items(v, delay=48, needv={"M"})
    st.append(Item("ds_write_b128 v%d, %s offset:%d" % (T + 4, vr(SB, 4), VEC), dtag="V"))
    st.append(Item([], delay=8, needd={"V"}))
    first = True
    for vv, dst in enumerate((GV, SB, S2)):
        for jj in range(4):
            st.append(Item("ds_read_b128 %s, v%d offset:%d" % (vr(dst + jj * 4, 4), VVEC, VEC + vv * 256 + jj * 64), dtag="V2", bar=first, delay=2))
            first = False
    s_mod = S.add(Stream(st, "mod", rate=lambda i: 3))
    st = []
    for tb in range(2):
        for kb in range(2):
            st.append(Item("buffer_load_dwordx4 %s, v%d, %s, %s offen offset:%d" % (
                vr(RES + (tb * 2 + kb) * 4, 4), VX, sq(SX), "s%d" % S8K if tb else "0", kb * 64), at=80, delay=4, vtag="X"))
    v = []
    for q in range(4):
        v += ["v_permlane16_swap_b32 v%d, v%d" % (RES + 4 * q, RES + 4 * q + 2), "v_permlane16_swap_b32 v%d, v%d" % (RES + 4 * q + 1, RES + 4 * q + 3)]
    for i in range(16):
        v += ["v_lshlrev_b32 v%d, 16, v%d" % (XU + 2 * i, RES + i), "v_and_b32 v%d, 0xffff0000, v%d" % (XU + 2 * i + 1, RES + i)]
    st += items(v, delay=70, needv={"X"})
    s_x = S.add(Stream(st, "x", rate=lambda i: 3))

    S("s_mov_b64 vcc, 0")
    S("s_branch L_hot")
    S(".p2align 12")
    S.label("L_hot")
    S.barrier()
    S.reads()
    if P["W5AT"] == "free":
        S.events["w5"] = 0
    S.run(I5, budget=lambda i: 12, vsp=lambda i: P["VSP3"])
    S.drain(s_mod)
    S.drain(s_x)
    S.wait(d={"V2"}, lg=0)
    if STM == "p3d":
        stamp(S, 1)
    if P["W5AT"] == "loop":
        S.events["w5"] = S.i
        S.pump(P["W5N"], "W")
    ACC = ACC3
    for i in range(16):
        S("v_pk_fma_f32 %s, %s, %s, %s" % (vr(XU + 2 * i, 2), vr(ACC + 2 * i, 2), vr(GV + (2 * i) % 16, 2), vr(XU + 2 * i, 2)))
    for i in range(8):
        for tb in range(2):
            x = vr(XU + tb * 16 + 2 * i, 2)
            if i == 0:
                S("v_pk_mul_f32 %s, %s, %s" % (vr(E + 4 + 2 * tb, 2), x, x))
            else:
                S("v_pk_fma_f32 %s, %s, %s, %s" % (vr(E + 4 + 2 * tb, 2), x, x, vr(E + 4 + 2 * tb, 2)))
                S("v_pk_add_f32 %s, %s, %s" % (vr(E + 2 * tb, 2), vr(E + 2 * tb, 2) if i > 1 else vr(XU + tb * 16, 2), x))
    for tb in range(2):
        S("v_add_f32 v%d, v%d, v%d" % (E + 2 * tb, E + 2 * tb, E + 2 * tb + 1))
        S("v_add_f32 v%d, v%d, v%d" % (E + 2 * tb + 1, E + 4 + 2 * tb, E + 5 + 2 * tb))
    S.emit(cap(xsum, [E, E + 1, E + 2, E + 3], [E + 4, E + 5, E + 6, E + 7], (16, 32)))
    S("v_cndmask_b32_e64 v%d, v%d, v%d, s[34:35]" % (E + 4, E + 2, E))
    S("v_cndmask_b32_e64 v%d, v%d, v%d, s[34:35]" % (E + 5, E + 3, E + 1))
    S("v_and_b32 v%d, -2, v%d" % (E + 4, E + 4))
    S("v_and_b32 v%d, 0x7fffffff, v%d" % (E + 5, E + 5))
    S("s_mov_b32 exec_hi, 0")
    S("buffer_store_dwordx2 %s, v%d, %s, s%d offen sc1" % (vr(E + 4, 2), VS1, sq(SW), SSW))
    S("s_mov_b64 exec, -1")
    if STM == "p3d":
        stamp(S, 2)
    if P["W5AT"] == "pub":
        S.events["w5"] = S.i
        S.pump(P["W5N"], "W")
    for i in range(16):
        S("v_cvt_pk_bf16_f32 v%d, v%d, v%d" % (RES + i, XU + 2 * i, XU + 2 * i + 1))
    for i in range(16):
        S("v_accvgpr_write_b32 a%d, v%d" % (AX1 + i, RES + i))
        S("v_lshlrev_b32 v%d, 16, v%d" % (ACC + 2 * i, RES + i))
        S("v_and_b32 v%d, 0xffff0000, v%d" % (ACC + 2 * i + 1, RES + i))
    if P["WALK"]:
        walk(S, 0)
        S("; @range 0")
    G = E + 16
    poll, ready = S.uid("poll"), S.uid("ready")
    S("s_mov_b32 s33, %d" % SPIN)
    S.label(poll)
    for tb in range(2):
        for i in range(4):
            S("buffer_load_dwordx2 %s, v%d, %s, s%d offen offset:%d sc1" % (vr(G + (tb * 4 + i) * 2, 2), VS2, sq(SW), SSR, i * 1024 + tb * 128))
    S("s_waitcnt vmcnt(0)")
    S("v_max3_u32 v%d, v%d, v%d, v%d" % (E + 8, G, G + 1, G + 2))
    for i in range(3, 15, 2):
        S("v_max3_u32 v%d, v%d, v%d, v%d" % (E + 8, E + 8, G + i, G + i + 1))
    S("v_max_u32 v%d, v%d, v%d" % (E + 8, E + 8, G + 15))
    S("v_cmp_eq_u32 s[%d:%d], -1, v%d" % (SCMP, SCMP + 1, E + 8))
    S("s_cmp_eq_u64 s[%d:%d], 0" % (SCMP, SCMP + 1))
    S("s_cbranch_scc1 %s" % ready)
    S("s_sub_u32 s33, s33, 1")
    S("s_cmp_lg_u32 s33, 0")
    S("s_cbranch_scc1 %s" % poll)
    S.label(ready)
    if STM == "p3d":
        stamp(S, 3)
    if P["DBGX1"]:
        S("s_sub_u32 s30, s%d, %d" % (SH2, WS_H2 - WS_X1))
        S("s_sub_u32 s31, s%d, %d" % (SH2B, WS_H2 - WS_X1))
        for tb in range(2):
            for kb in range(2):
                S("buffer_store_dwordx4 %s, v%d, %s, s%d offen offset:%d" % (vr(RES + (tb * 2 + kb) * 4, 4), VA3, sq(SW), 30 + kb, tb * 1024))
    for tb in range(2):
        g = G + tb * 8
        S("v_pk_add_f32 %s, %s, %s" % (vr(E + 2 * tb, 2), vr(g, 2), vr(g + 2, 2)))
        S("v_pk_add_f32 %s, %s, %s" % (vr(E + 4 + 2 * tb, 2), vr(g + 4, 2), vr(g + 6, 2)))
    for tb in range(2):
        S("v_pk_add_f32 %s, %s, %s" % (vr(E + 2 * tb, 2), vr(E + 2 * tb, 2), vr(E + 4 + 2 * tb, 2)))
    S.emit(cap(xsum, [E, E + 1, E + 2, E + 3], [E + 4, E + 5, E + 6, E + 7], (16, 32)))
    M = [XU, XU + 12]
    for tb in range(2):
        S("v_mul_f32 v%d, 0x%x, v%d" % (M[tb], f32bits(1.0 / 1024), E + 2 * tb))
        S("v_mul_f32 v%d, 0x%x, v%d" % (M[tb] + 4, f32bits(1.0 / 1024), E + 2 * tb + 1))
    for tb in range(2):
        S("v_fma_f32 v%d, -v%d, v%d, v%d" % (M[tb] + 4, M[tb], M[tb], M[tb] + 4))
    for tb in range(2):
        S("v_max_f32 v%d, 0, v%d" % (M[tb] + 4, M[tb] + 4))
    l0, l1 = cap(ln_finish, M[0]), cap(ln_finish, M[1])
    for x, y in zip(l0, l1):
        S(x)
        S(y)
    H = G
    for tb in range(2):
        for i in range(8):
            x = vr(ACC + tb * 16 + 2 * i, 2)
            S("v_pk_add_f32 %s, %s, %s neg_lo:[0,1] neg_hi:[0,1]" % (x, x, vr(M[tb], 2)))
        for i in range(8):
            x = vr(ACC + tb * 16 + 2 * i, 2)
            S("v_pk_mul_f32 %s, %s, %s" % (x, x, vr(M[tb] + 4, 2)))
        for i in range(8):
            x = vr(ACC + tb * 16 + 2 * i, 2)
            S("v_pk_fma_f32 %s, %s, %s, %s" % (x, x, vr(S2 + 2 * i, 2), vr(SB + 2 * i, 2)))
        for i in range(8):
            S("v_cvt_pk_bf16_f32 v%d, v%d, v%d" % (H + tb * 8 + i, ACC + tb * 16 + 2 * i, ACC + tb * 16 + 2 * i + 1))
        for kb in range(2):
            S("buffer_store_dwordx4 %s, v%d, %s, s%d offen offset:%d sc1" % (vr(H + tb * 8 + kb * 4, 4), VA3, sq(SW), SH2 + kb, tb * 1024))
    if STM == "p3":
        stamp(S, 1)
    S.lat, lat = 0, S.lat
    S.barrier()
    S.lat = lat
    S.reads()
    S("s_waitcnt vmcnt(0)")
    S("buffer_store_dword v%d, v%d, %s, s%d offen sc1" % (VTAG, VF0, sq(SW), SF2P))
    lp, rdy = S.uid("spin"), S.uid("rdy")
    S("s_mov_b32 s33, %d" % SPIN)
    S.label(lp)
    S("buffer_load_dword v%d, v%d, %s, s%d offen sc1" % (VP, VFA, sq(SW), SF2C))
    S("s_waitcnt vmcnt(0)")
    S("v_cmp_ne_u32 s[%d:%d], s%d, v%d" % (SCMP, SCMP + 1, STAG, VP))
    S("s_cmp_eq_u64 s[%d:%d], 0" % (SCMP, SCMP + 1))
    S("s_cbranch_scc1 %s" % rdy)
    S("s_sub_u32 s33, s33, 1")
    S("s_cmp_lg_u32 s33, 0")
    S("s_cbranch_scc1 %s" % lp)
    S.label(rdy)
    if STM == "p3":
        stamp(S, 2)
    S.events["h2a"] = S.i
    S.pump(8, "A")

    slow = []

    def pollchk(so, va, at_p, at_c, ev, gen=0, after=()):
        ld = "buffer_load_dword v%d, v%d, %s, s%d offen sc1" % (VP, va, sq(SW), so)
        cmp_ = ["v_subrev_u32 v%d, s%d, v%d" % (VP, STAG, VP), "v_cmp_lt_u32 s[%d:%d], 3, v%d" % (SCMP, SCMP + 1, VP)]
        ls, lb = S.uid("slow"), S.uid("back")
        slow.append((ls, lb, ld, cmp_))
        r = [Item(ld, at=at_p, vtag=("P", ev), after=after),
             Item(cmp_[0], at=at_c - 2, needv={("P", ev)}, delay=P["PLAT"]), Item(cmp_[1]),
             Item(["s_cmp_lg_u64 s[%d:%d], 0" % (SCMP, SCMP + 1), "s_cbranch_scc1 %s" % ls, lb + ":"], delay=1, sets=ev)]
        if gen:
            r.append(Item("s_add_u32 s%d, s%d, 1" % (STAG, STAG)))
        return r

    st = pollchk(SF2C, VFB, I5, I5 + 40, "h2b")
    st += items(["v_and_b32 v%d, 15, v%d" % (VFA, VL), "v_lshlrev_b32 v%d, %d, v%d" % (VFA, FS, VFA)])
    for g_ in "ABCD":
        st += pollchk(SFC, VFA, I6 + P["C" + g_] - P["PLAT"], I6 + P["C" + g_], "chk" + g_, 1, {"flag" + g_})
    S.add(Stream(st, "poll", budget=lambda i: 8))

    def glu(g, u, n, d=None):
        r = ["v_mul_f32 v%d, s%d, v%d" % (g + e, SNL, g + e) for e in range(n)]
        r += ["v_exp_f32 v%d, v%d" % (g + e, g + e) for e in range(n)]
        r += ["v_add_f32 v%d, 1.0, v%d" % (g + e, g + e) for e in range(n)]
        r += ["v_rcp_f32 v%d, v%d" % (g + e, g + e) for e in range(n)]
        r += ["v_mul_f32 v%d, v%d, v%d" % (g + e, g + e, u + e) for e in range(n)]
        r += ["v_cvt_pk_bf16_f32 v%d, v%d, v%d" % ((g if d is None else d) + e, g + 2 * e, g + 2 * e + 1) for e in range(n // 2)]
        return r

    def flag(gen, prev):
        return [Item("buffer_store_dword v%d, v%d, %s, s%d offen sc1" % (VTAG, VF0, sq(SW), SFP), after={"st" + gen}, at=0,
                     needv={"S" + gen}, sets="flag" + gen, delay=0),
                Item("v_add_u32 v%d, 1, v%d" % (VTAG, VTAG), delay=1)]

    doneA = end5[(1, 2, 1)]
    doneB = end5[(1, 2, 2)]
    st = []
    for tb in range(4):
        g = acc5(tb, 0, 2, 0)
        st += items(glu(g, acc5(tb, 1, 2, 0), 8), at=doneA)
        st.append(Item("buffer_store_dwordx4 %s, v%d, %s, s%d offen offset:%d sc1" % (vr(g, 4), VA5, sq(SW), SHA, tb * 1024), vtag="SA",
                       sets="stA" if tb == 3 else None))
    nA = len(st)
    for tb in range(4):
        g = acc5(tb, 0, 2, 2)
        if P["COMPACT"]:
            g0 = acc5(tb & 2, 0, 2, 2)
            st += items(glu(g, acc5(tb, 1, 2, 2), 4, g0 + 2 * (tb & 1)), at=doneB)
            if tb & 1:
                st.append(Item("buffer_store_dwordx4 %s, v%d, %s, s%d offen offset:%d sc1" % (vr(g0, 4), VA5, sq(SW), SHB, (tb & 2) * 1024),
                               vtag="SB", sets="stB" if tb == 3 else None))
            continue
        st += items(glu(g, acc5(tb, 1, 2, 2), 4), at=doneB)
        st.append(Item("buffer_store_dwordx2 %s, v%d, %s, s%d offen offset:%d sc1" % (vr(g, 2), VA5, sq(SW), SHB, tb * 1024), vtag="SB",
                       sets="stB" if tb == 3 else None))
    for pr in range(2):
        for tb in range(4):
            g = acc5(tb, 0, 1, 2 * pr)
            st += items(glu(g, acc5(tb, 1, 1, 2 * pr), 8), at=end5[(1, 1, 2 * pr + 1)])
            st.append(Item("buffer_store_dwordx4 %s, v%d, %s, s%d offen offset:%d sc1" % (vr(g, 4), VA5, sq(SW), SHC + pr, tb * 1024), vtag="S" + "CD"[pr],
                           sets="st" + "CD"[pr] if tb == 3 else None))
    fl = []
    for gen in "ABCD":
        fl.append(Item([], after={"st" + gen}))
        f = flag(gen, None)
        f[0].delay = P["FD_" + gen]
        fl += f
    S.add(Stream(fl, "flag", budget=lambda i: 8))
    if gen2.STAMPS and STM[:2] == "fl":
        g_ = STM[2]
        sti = lambda k: ["s_memtime s[%d:%d]" % (70 + 2 * k, 71 + 2 * k), "s_memrealtime s[%d:%d]" % (80 + 2 * k, 81 + 2 * k)]
        S.add(Stream([Item(sti(0), after={"st" + g_}), Item(sti(1), after={"flag" + g_}), Item(sti(2), at=I6 + P["C" + g_] - 4),
                      Item(sti(3), after={"chk" + g_})], "stamps", budget=lambda i: 64))

    def gb(i):
        for g_ in "ABCD":
            if "st" + g_ not in S.events:
                return P["GB_" + g_]
        return 0
    s_glu = S.add(Stream(st, "glu", rate=gb))

    st = []
    for r in range(7 if P["SPF"] else 14):
        at = I5 + P["PF0"] + (r // P["PFG"]) * P["PFSTEP"]
        if r < 7:
            st.append(Item("s_mov_b32 s36, %d" % (WF_BYTES // 2 + r * 0x80000), at=at))
            st.append(Item(touch(VTD, VTA, ST, "s36"), delay=1, pause=P["PFP"]))
        else:
            st.append(Item("s_add_u32 s36, s37, %d" % ((r - 7) * 0x80000), at=at))
            st.append(Item(touch(VTD, VTA, SD, "s36"), delay=1, pause=P["PFP"]))
    ct = code_touch(S, VP)
    st.append(Item(ct[:2], delay=20))
    st += items(ct[2:])
    S.add(Stream(st, "pf"))

    if P["SPF"]:
        st = [Item([], at=I5 + 4)]
        for k in range(56):
            if k and k % 8 == 0:
                st.append(Item(["s_add_u32 s22, s22, 0x100000", "s_addc_u32 s23, s23, 0"]))
            if P["SPF2"]:
                st.append(Item("s_load_dwordx2 s[66:67], s[22:23], 0x%x" % ((k % 8) << 17), delay=P["SPF"]))
            else:
                st.append(Item("s_load_dword s66, s[22:23], 0x%x" % ((k % 8) << 17), delay=P["SPF"] // 2))
                st.append(Item("s_load_dword s67, s[22:23], 0x%x" % (((k % 8) << 17) + 4), delay=P["SPF"] // 2))
        S.add(Stream(st, "spf", rate=lambda i: 2))
        S.LG = P["LG5"]

    PK, RES, X, GV, INB = 64, 80, 96, 128, 144
    sent = pos6[(27, 1)] + 16
    st = []
    for kb in range(2):
        for tb in range(2):
            q = tb * 2 + kb
            src = 32 + (tb * 4 + 2 * kb) * 4
            st += items(["v_cvt_pk_bf16_f32 v%d, v%d, v%d" % (PK + q * 4 + e, src + 2 * e, src + 2 * e + 1) for e in range(4)],
                        at=sent - (8 if CH else 4) * (1 - kb), after={"flagD"})
            st.append(Item("buffer_store_dwordx4 %s, v%d, %s, s%d offen offset:%d sc1" % (vr(PK + q * 4, 4), VT16, sq(SW), SOUTB, q * 1024)))
    v = ["v_accvgpr_read_b32 v%d, a%d" % (RES + i, AX1 + i) for i in range(16)]
    for i in range(16):
        v += ["v_lshlrev_b32 v%d, 16, v%d" % (X + 2 * i, RES + i), "v_and_b32 v%d, 0xffff0000, v%d" % (X + 2 * i + 1, RES + i)]
    st += items(v)
    st += [Item("ds_read_b128 %s, v%d offset:%d" % (vr(GV + jj * 4, 4), VVEC, VEC + 768 + jj * 64), dtag="GV") for jj in range(4)]
    inld = ["buffer_load_dwordx4 %s, v%d, %s, s%d offen offset:%d sc1" % (vr(PK + i * 4, 4), VT16, sq(SW), SIN, i * 1024) for i in range(4)]
    st += [Item(x, at=IE + P["INPOS"] + 2 * k, vtag="I") for k, x in enumerate(inld)]
    s_fin = S.add(Stream(st, "fin", budget=lambda i: 8))

    hooks = {I5 + 24 * 56 + 3: lambda: S.label("L_k56_seam")}
    if P["COMPACT"]:
        for s in range(8, 12):
            def swp(s=s):
                assert not any(g.tag == ("A", 48 + s) for g in S.aq) and not any(t == ("A", 48 + s) for o, t, p in S.pend)
                S.wait(v={("A", 48 + s)})
                for kk in range(2):
                    for e in range(2):
                        S("v_swap_b32 v%d, v%d" % (vsing(s, 2 * kk) + 2 + e, vsing(s, 2 * kk + 1) + e))
            hooks[pos6[(s, 1)] - 3] = swp
    if gen2.STAMPS:
        sp = {"p3": {I6: 3}, "p6": {pos5[(32 - T5, 2)]: 0, I6: 1, I6 + 8 * 32: 2}, "p6b": {I6: 0, I6 + 5 * 32: 1, I6 + 16 * 32: 2},
              "p5": {I5: 0, I5 + 4 * 56: 1, I5 + 20 * 56 + 1: 2, pos5[(32 - T5, 2)]: 3}}.get(STM, {})
        for k, v_ in sp.items():
            hooks[k] = (lambda v_=v_: stamp(S, v_))
    if P["TR0"] is not None:
        def tr(k):
            if k:
                S("v_writelane_b32 v255, s70, %d" % (k - 1))
            S("s_memtime s[70:71]")
        for k in range(64):
            g = P["TR0"] + k * P["TRS"]
            if g < IE:
                while g in hooks:
                    g += 1
                hooks[g] = (lambda k=k: tr(k))
    S.run(I6, vsp=lambda i: P["VSP5"] if i < I5 + (P["DEEP"] - 6) * 56 else P["VSP5D"], hooks=hooks, pair=lambda i: i >= doneA or P["PAIR"] & 1)
    assert "stA" in S.events and "chkA" in S.events, S.events
    S.run(IE, vsp=lambda i: P["VSP6"], hooks=hooks, pair=lambda i: P["PAIR"] & 2)
    if STM in ("p6", "p6b"):
        stamp(S, 3)
    S.drain(s_fin)
    for s_ in S.streams:
        assert not s_.items, s_.name
    S.wait(d={"GV"}, lg=0)
    for i in range(8):
        for e in (0, 2):
            S("v_pk_fma_f32 %s, %s, %s, %s" % (vr(X + i * 4 + e, 2), vr(i * 4 + e, 2), vr(GV + (i % 4) * 4 + e, 2), vr(X + i * 4 + e, 2)))
    S("s_mov_b32 s33, %d" % SPIN)
    poll, ready, chk = S.uid("poll"), S.uid("ready"), S.uid("chk")
    S("s_branch %s" % chk)
    S.label(poll)
    S.emit(inld)
    S.label(chk)
    TT = 32
    for i in range(4):
        S("s_waitcnt vmcnt(%d)" % (3 - i))
        if i == 0:
            S("v_max3_u32 v%d, v%d, v%d, v%d" % (TT, PK, PK + 1, PK + 2))
            S("v_max_u32 v%d, v%d, v%d" % (TT, TT, PK + 3))
        else:
            S("v_max3_u32 v%d, v%d, v%d, v%d" % (TT, TT, PK + i * 4, PK + i * 4 + 1))
            S("v_max3_u32 v%d, v%d, v%d, v%d" % (TT, TT, PK + i * 4 + 2, PK + i * 4 + 3))
    S("v_cmp_eq_u32 s[%d:%d], -1, v%d" % (SCMP, SCMP + 1, TT))
    S("s_cmp_eq_u64 s[%d:%d], 0" % (SCMP, SCMP + 1))
    S("s_cbranch_scc1 %s" % ready)
    S("s_sub_u32 s33, s33, 1")
    S("s_cmp_lg_u32 s33, 0")
    S("s_cbranch_scc1 %s" % poll)
    S.label(ready)
    for tb in range(2):
        for kb in range(2):
            for jj in (2 * kb, 2 * kb + 1):
                i = tb * 4 + jj
                for e in range(2):
                    S("v_lshlrev_b32 v%d, 16, v%d" % (INB + i * 4 + 2 * e, PK + 2 * i + e))
                    S("v_and_b32 v%d, 0xffff0000, v%d" % (INB + i * 4 + 2 * e + 1, PK + 2 * i + e))
                for e in (0, 2):
                    S("v_pk_fma_f32 %s, %s, %s, %s" % (vr(X + i * 4 + e, 2), vr(INB + i * 4 + e, 2), vr(GV + jj * 4 + e, 2), vr(X + i * 4 + e, 2)))
                S("v_cvt_pk_bf16_f32 v%d, v%d, v%d" % (RES + 2 * i, X + i * 4, X + i * 4 + 1))
                S("v_cvt_pk_bf16_f32 v%d, v%d, v%d" % (RES + 2 * i + 1, X + i * 4 + 2, X + i * 4 + 3))
            r = RES + (tb * 2 + kb) * 4
            S("v_permlane16_swap_b32 v%d, v%d" % (r, r + 2))
            S("v_permlane16_swap_b32 v%d, v%d" % (r + 1, r + 3))
            S("buffer_store_dwordx4 %s, v%d, %s, %s offen offset:%d sc1" % (vr(r, 4), VX, sq(SO), "s%d" % S8K if tb else "0", kb * 64))
    a.label("L_hot_end")
    gen2.stamp_store(a, 5, 32, 20, 5)
    if P["TR0"] is not None:
        srd(a, 64, 20, 0x1000000, gen2.WS_STAMP + 0x100000)
        a("s_lshl_b32 s68, s2, 10")
        a("s_lshl_b32 s69, s3, 8")
        a("s_add_u32 s68, s68, s69")
        a("v_lshlrev_b32 v32, 2, v%d" % VL)
        a("buffer_store_dword v255, v32, s[64:67], s68 offen")
    a("s_endpgm")
    for ls, lb, ld, cmp_ in slow:
        lp = a.uid("spin")
        a.label(ls)
        a("s_mov_b32 s33, %d" % SPIN)
        a.label(lp)
        a(ld)
        a("s_waitcnt vmcnt(0)")
        a(cmp_[0])
        a(cmp_[1])
        a("s_nop 1")
        a("s_cmp_eq_u64 s[%d:%d], 0" % (SCMP, SCMP + 1))
        a("s_cbranch_scc1 %s" % lb)
        a("s_sub_u32 s33, s33, 1")
        a("s_cmp_lg_u32 s33, 0")
        a("s_cbranch_scc1 %s" % lp)
        a("s_branch %s" % lb)
    a.label(end)
    a("s_endpgm")
    a.end_kernel(name, 256, AX1 + 16, 102)
    a.launch(name, 256, 256, LDS_BYTES)
    return S, dict(I5=I5, I6=I6, IE=IE)


def walk(S, k):
    S("s_mov_b64 vcc, -1")
    for q in range(3):
        S("s_cmp_eq_u32 s3, %d" % q)
        S("s_cbranch_scc1 L_wk%d_%d" % (k, q))
    S("s_branch L_wk%d_3" % k)
    S.label("L_wk%d_end" % k)
    S("s_mov_b64 vcc, 0")


def place_stubs(a):
    import subprocess, re, os, tempfile
    L = a.lines
    ks = [int(l.split()[-1]) for l in L if "@range" in l and not l.endswith("-1")]
    d = tempfile.mkdtemp()
    n0 = len(L)
    L += ["L_wk%d_%d:" % (k, q) for k in ks for q in range(4)]
    open(d + "/t.s", "w").write(a.text())
    del L[n0:]
    subprocess.run(["clang", "-x", "assembler", "-target", "amdgcn-amd-amdhsa", "-mcpu=gfx950", "-c", d + "/t.s", "-o", d + "/t.o"], check=True)
    dis = subprocess.run(["llvm-objdump", "-d", "--mcpu=gfx950", d + "/t.o"], capture_output=True, text=True).stdout.split("\n")
    k0 = [i for i, l in enumerate(dis) if l.endswith("<L_hot>:")][0]
    addrs = [int(re.search(r"// ([0-9A-F]+):", l).group(1), 16) for l in dis[k0:] if "//" in l]
    i0, i1 = L.index("L_hot:"), L.index("L_hot_end:")
    out, n, ns, pg, cur, cnt = [], 0, 0, 1, None, {}
    for l in L[i0:i1]:
        if "@range" in l:
            cur = int(l.split()[-1])
            cnt[cur] = 0
            if cur < 0:
                cur = None
        if parse(l) is not None:
            off = addrs[n] - addrs[0] + 4 * ns
            if off >= 4096 * pg:
                pg += 1
                if cur is not None:
                    out += ["L_wk%d_%d:" % (cur, cnt[cur]), "  s_cbranch_vccnz L_wk%d_%d" % (cur, cnt[cur] + 4)]
                    cnt[cur] += 1
                    ns += 1
            n += 1
        out.append(l)
    L[i0:i1] = out
    for i, l in enumerate(L):
        m = re.fullmatch(r"(\s*s_(?:cbranch_\w+|branch)) L_wk(\d+)_(\d+)", l)
        if m and int(m.group(3)) >= cnt[int(m.group(2))]:
            L[i] = "%s L_wk%s_end" % (m.group(1), m.group(2))


HEADER = gen2.HEADER.replace("gen2", "gen3")


def build(stamps=False, verbose=False, **over):
    old = dict(P)
    P.update(over)
    gen2.STAMPS = stamps
    VMCOST[0] = P["VMC"]
    a = Asm()
    gen2.gen_k012b(a)
    S, info = gen_kb(a)
    a.label("L_code_end")
    a("s_endpgm")
    a(".fill 2048, 4, 0xbf810000")
    place_stubs(a)
    if verbose:
        print(info, "nops", S.nops, "events", S.events)
        print("\n".join(S.log))
        print(S.lead_report())
    P.clear()
    P.update(old)
    return a.text(HEADER)


if __name__ == "__main__":
    open("/code/%s.s" % NAME, "w").write(build(False, True))
    open("g3_st.s", "w").write(build(True))
```

```python
import re

TRANS = ("v_exp_f32", "v_rcp_f32", "v_rsq_f32", "v_sqrt_f32", "v_log_f32")


def regs(tok):
    tok = tok.strip()
    m = re.fullmatch(r"-?(?:abs\()?([vas])(\d+)\)?", tok)
    if m:
        return {(m.group(1), int(m.group(2)))}
    m = re.fullmatch(r"([vas])\[(\d+):(\d+)\]", tok)
    if m:
        return {(m.group(1), i) for i in range(int(m.group(2)), int(m.group(3)) + 1)}
    if tok == "vcc":
        return {("s", 106), ("s", 107)}
    if tok in ("exec", "exec_hi", "exec_lo"):
        return {("x", 0)}
    if tok == "m0":
        return {("m", 0)}
    return set()


_pc = {}


def parse(line):
    if line in _pc:
        return _pc[line]
    d = _parse(line)
    _pc[line] = d
    return d


def _parse(line):
    line = line.split(";")[0].strip()
    if not line or line.startswith(".") or line.endswith(":"):
        return None
    p = line.split(None, 1)
    op = p[0]
    ops = []
    if len(p) > 1:
        body = re.sub(r"(op_sel\w*|neg_\w+|quad_perm):\[[^\]]*\]", "", p[1])
        ops = [o.strip().split(" ")[0] for o in body.split(",")]
    d = dict(op=op, text=line, W=set(), R=set(), kind="o")
    R = lambda *idx: set().union(*[regs(ops[i]) for i in idx if i < len(ops)]) if idx else set()
    allr = set().union(*[regs(o) for o in ops]) if ops else set()
    rest = lambda k: set().union(*[regs(o) for o in ops[k:]]) if len(ops) > k else set()
    if op.startswith("v_mfma"):
        d.update(kind="mfma", W=R(0), A=R(1, 2), C=R(3), R=R(1, 2, 3))
    elif op.startswith("v_cmp"):
        d.update(kind="valu", W=R(0), R=R(1, 2))
    elif op.startswith("v_readfirstlane") or op.startswith("v_readlane"):
        d.update(kind="valu", W=R(0), R=R(1), rfl=True)
    elif op.startswith("v_permlane") or op.startswith("v_swap"):
        d.update(kind="valu", W=R(0, 1), R=R(0, 1), perm=op.startswith("v_permlane"))
    elif op.startswith("v_") and "_co_" in op:
        d.update(kind="valu", W=R(0, 1), R=rest(2))
    elif op.startswith("v_"):
        d.update(kind="valu", W=R(0), R=rest(1))
        if op.startswith("v_fmac"):
            d["R"] |= d["W"]
        if "dpp" in op:
            d["dpp"] = True
            d["R"] |= d["W"]
        if op in TRANS:
            d["trans"] = True
    elif op.startswith("buffer_load") or op.startswith("global_load"):
        if line.endswith("lds"):
            d.update(kind="vmem", R=allr | {("m", 0)}, dma=True)
        else:
            d.update(kind="vmem", W=R(0), R=rest(1))
    elif op.startswith("buffer_store") or op.startswith("buffer_atomic"):
        d.update(kind="vmem", R=allr, sdata=R(0) if ("x4" in op or "x3" in op) else set())
    elif op.startswith("ds_read") or op.startswith("ds_add_rtn"):
        d.update(kind="ds", W=R(0), R=rest(1))
    elif op.startswith("ds_"):
        d.update(kind="ds", R=allr)
    elif op.startswith("s_load") or op.startswith("s_mem"):
        d.update(kind="smem", W=R(0), R=rest(1))
    elif op.startswith("s_"):
        nw = op.startswith(("s_cmp", "s_bitcmp", "s_cbranch", "s_branch", "s_waitcnt", "s_nop", "s_barrier"))
        d.update(kind="salu", W=set() if nw else R(0), R=allr if nw else rest(1))
    d["ws"] = (int(ops[0]) + 1) if op == "s_nop" else 1
    return d


def isv(s):
    return {r for r in s if r[0] in "va"}


def iss(s):
    return {r for r in s if r[0] == "s"}


def pair_need(p, c):
    need = 0
    if p["kind"] == "valu":
        if c["kind"] == "mfma" and isv(p["W"]) & c["R"]:
            need = 2
        if c.get("perm") and isv(p["W"]) & c["R"]:
            need = max(need, 2)
        if p.get("perm") and c["kind"] in ("valu", "vmem", "ds") and p["W"] & c["R"]:
            need = max(need, 2)
        if c.get("dpp") and isv(p["W"]) & c["R"]:
            need = max(need, 2)
        if c.get("rfl") and isv(p["W"]) & c["R"]:
            need = max(need, 1)
        if p.get("trans") and c["kind"] == "valu" and not c.get("trans") and p["W"] & c["R"]:
            need = max(need, 1)
        if c["kind"] == "valu" and iss(p["W"]) & c["R"]:
            need = max(need, 2)
        if c["kind"] == "vmem" and iss(p["W"]) & c["R"]:
            need = max(need, 5)
        if c["kind"] in ("salu", "smem") and iss(p["W"]) & c["R"]:
            need = max(need, 2)
    if p["kind"] == "mfma":
        if c["kind"] == "mfma":
            if p["W"] & c["A"]:
                need = 8
            if p["W"] & c["C"] and p["W"] != c["C"]:
                need = max(need, 6)
            if p["W"] & c["W"] and p["W"] != c["C"]:
                need = max(need, 8)
        elif c["kind"] in ("valu", "vmem", "ds") and p["W"] & (c["R"] | c["W"]):
            need = 8
        if c["kind"] == "valu" and p["C"] & c["W"]:
            need = max(need, 3)
    if p["kind"] == "salu" and ("m", 0) in p["W"] and c.get("dma"):
        need = max(need, 1)
    if p.get("sdata") and p["sdata"] & c["W"]:
        need = max(need, 2)
    return need


VMCOST = [8]


def cost_of(ins):
    d = parse(ins)
    if d is None:
        return 0
    if d.get("trans"):
        return 8
    if d["kind"] == "vmem":
        return VMCOST[0]
    if d["kind"] == "mfma":
        return 16
    if d["op"].startswith("v_pk_"):
        return 8
    return 4 * d["ws"]


class Item:
    def __init__(self, ins, at=0, delay=0, after=(), sets=None, needv=(), needd=(), vtag=None, dtag=None, bar=False, pause=0, fn=None):
        self.ins = [ins] if isinstance(ins, str) else list(ins)
        self.at, self.delay, self.after, self.sets = at, delay, set(after), sets
        self.needv, self.needd, self.vtag, self.dtag = set(needv), set(needd), vtag, dtag
        self.fn = fn
        self.pause = pause
        self.bar = bar
        self.cost = sum(cost_of(i) for i in self.ins)


class Stream:
    def __init__(self, items, name="", budget=None, rate=None):
        self.items = list(items)
        self.name = name
        self.last = -10 ** 9
        self.lastbar = -1
        self.budget = budget
        self.rate = rate
        self.credit = 0.0


class Page:
    def __init__(self, key, src, at=0, after=(), glue=False):
        self.glue = glue
        self.key, self.src = key, src
        self.at, self.after = at, set(after)
        self.addr = None
        self.issued = None
        self.visible = False
        self.freed = False
        self.reads = []
        self.nreads = 0
        self.want = self.need = 10 ** 9


class AGroup:
    def __init__(self, tag, ops, at=0, after=()):
        self.tag, self.ops, self.at, self.after = tag, ops, at, set(after)
        self.dl = 10 ** 9


class Sched:
    def __init__(self, a, nf, fragreg, dsbase, page0, npages, m0base):
        self.a = a
        self.hist = []
        self.vq, self.dq = [], []
        self.vdone = self.ddone = -1
        self.nf, self.fragreg, self.dsbase = nf, fragreg, dsbase
        self.free = [page0 + 4096 * i for i in range(npages)]
        self.m0base = m0base
        self.events = {}
        self.streams = []
        self.pend = []
        self.lastvm = -10 ** 9
        self.i = 0
        self.nbar = 0
        self.sreg = {}
        self.LG = 10
        self.LGMIN = 0
        self.nops = 0
        self.log = []
        self.leads = []
        self.vnext = -1e9
        self.vstep = 1.0

    def short(self, ins):
        c = parse(ins)
        if c is None:
            return 0
        dist, worst = 0, 0
        for p in reversed(self.hist[-12:]):
            worst = max(worst, pair_need(p, c) - dist)
            dist += p["ws"]
        return worst

    def ins(self, ins, vtag=None, dtag=None):
        for l in ins.split("\n"):
            l = l.strip()
            if not l:
                continue
            if l.endswith(":"):
                self.a.label(l[:-1])
                continue
            c = parse(l)
            if c is None:
                self.a(l)
                continue
            n = self.short(l)
            if n > 0:
                self.a("s_nop %d" % (n - 1))
                self.hist.append(parse("s_nop %d" % (n - 1)))
                self.nops += n
            self.a(l)
            self.hist.append(c)
            if c["kind"] == "vmem":
                self.vq.append(vtag)
                self.lastvm = self.i
            elif c["kind"] == "ds":
                self.dq.append(dtag)
            elif c["op"] == "s_waitcnt":
                m = re.search(r"vmcnt\((\d+)\)", l)
                if m:
                    self.vdone = max(self.vdone, len(self.vq) - 1 - int(m.group(1)))
                m = re.search(r"lgkmcnt\((\d+)\)", l)
                if m:
                    self.ddone = max(self.ddone, len(self.dq) - 1 - int(m.group(1)))

    __call__ = ins

    def label(self, n):
        self.a.label(n)

    def uid(self, b):
        return self.a.uid(b)

    def emit(self, lst, vtag=None, dtag=None):
        for x in lst:
            self.ins(x, vtag, dtag)

    def _cnt(self, q, done, tags, cap):
        last = -1
        for k in range(len(q) - 1, done, -1):
            if q[k] in tags:
                last = k
                break
        if last < 0:
            return None
        return min(cap, len(q) - 1 - last)

    def wait(self, v=(), d=(), lg=None):
        nv = self._cnt(self.vq, self.vdone, set(v), 63) if v else None
        nd = self._cnt(self.dq, self.ddone, set(d), self.LG if lg is None else lg) if d else None
        if nv is None and nd is None:
            return 0
        self.ins("s_waitcnt" + (" vmcnt(%d)" % nv if nv is not None else "") + (" lgkmcnt(%d)" % nd if nd is not None else ""))
        return 4

    def setup(self, main, frags, pages, agroups, bars, margin=6, lat=60, cuts=()):
        self.main, self.frags = main, frags
        self.pages = {p.key: p for p in pages}
        self.pq = list(pages)
        self.aq = list(agroups)
        self.bars = sorted(bars)
        self.lat = lat
        self.cuts = sorted(cuts)
        order, fu, lu = [], {}, {}
        af = {}
        for i, (t, f, at) in enumerate(main):
            if f is not None:
                if f not in fu:
                    fu[f] = i
                    order.append(f)
                lu[f] = i
            for x in (at if isinstance(at, list) else [at]):
                if x is not None and x not in af:
                    af[x] = i
        self.forder, self.fu, self.lu = order, fu, lu
        self.fbuf = {f: k % self.nf for k, f in enumerate(order)}
        self.rq = []
        for k, f in enumerate(order):
            e = lu[order[k - self.nf]] + 1 if k >= self.nf else 0
            assert e <= fu[f], (f, e, fu[f])
            for r, rd in enumerate(frags[f]):
                self.rq.append((e, f, r))
                p = self.pages[rd[0]]
                p.nreads += 1
                p.want = min(p.want, e)
                p.need = min(p.need, max([e, fu[f] - margin] + [c for c in cuts if c <= fu[f]]))
        for p in pages:
            assert p.nreads, p.key
            b = sorted(x for x in self.bars + self.cuts if x <= p.want)
            p.dl = b[-1] if b else 0
        for g in agroups:
            g.dl = af[g.tag]
        for q in (pages, agroups):
            for k in range(len(q) - 2, -1, -1):
                q[k].dl = min(q[k].dl, q[k + 1].dl)
        self.margin = margin
        self.seenC = set()

    def add(self, st):
        self.streams.append(st)
        return st

    def barrier(self, nxt=None):
        i = self.i
        if nxt is None:
            later = sorted(x for x in self.bars + self.cuts if x > i)
            nxt = later[0] if later else 10 ** 9
        vis = []
        for p in self.pages.values():
            if p.visible:
                continue
            if p.need < nxt:
                if p.issued is None:
                    self.flush_until(p)
                vis.append(p)
            elif p.want < nxt and p.issued is not None and p.issued <= i - self.lat:
                vis.append(p)
        self.wait(v={("W", p.key) for p in vis})
        landed = set(self.vq[:self.vdone + 1])
        vis = [p for p in self.pages.values() if not p.visible and ("W", p.key) in landed]
        done = set(self.dq[:self.ddone + 1])
        self.ins("s_barrier")
        self.nbar += 1
        for p in vis:
            p.visible = True
        for p in self.pages.values():
            if p.visible and not p.freed and len(p.reads) == p.nreads and all(t in done for t in p.reads):
                p.freed = True
                self.free.append(p.addr)

    def ok_after(self, s):
        return all(e in self.events for e in s)

    def pick(self, force=False):
        c = []
        if self.pq:
            p = self.pq[0]
            if len(self.free) > p.glue and p.at <= self.i and self.ok_after(p.after):
                c.append((p.dl, 0, p))
        if self.aq:
            g = self.aq[0]
            if g.at <= self.i and self.ok_after(g.after):
                c.append((g.dl, 1, g))
        if not c:
            return False
        dl, kind, x = min(c, key=lambda t: (t[0], t[1]))
        if kind == 0:
            self.pend = []
            for _ in range(1 + x.glue):
                x = self.pq.pop(0)
                x.addr = self.free.pop(0)
                pre, ld, imm = x.src
                ops = [o for o in pre]
                ops.append("s_add_u32 m0, %s, %d" % (self.m0base, x.addr - imm))
                ops.append(ld)
                self.pend += [(o, ("W", x.key), x) for o in ops]
        else:
            self.aq.pop(0)
            self.pend = [(o, x.tag, None) for o in x.ops]
        self.pdl = dl
        return True

    def pend_step(self):
        o, tag, pg = self.pend.pop(0)
        m = re.fullmatch(r"s_mov_b32 (s\d+), (\S+)", o)
        if m:
            if self.sreg.get(m.group(1)) == m.group(2):
                return 0
            self.sreg[m.group(1)] = m.group(2)
        self.ins(o, vtag=tag)
        if parse(o)["kind"] == "vmem":
            self.leads.append((self.i, "W" if pg is not None else "A", self.pdl - self.i))
            self.vnext = min(max(self.vnext, self.i - 1.0), self.i + 1.0) + self.vstep
            if pg is not None:
                pg.issued = self.i
        return cost_of(o)

    def flush_until(self, p):
        n = 0
        while p.issued is None:
            if not self.pend:
                assert self.pick(), ("page cannot be issued", p.key, self.i, len(self.free))
            self.pend_step()
            n += 1
        self.log.append("gap %d: forced issue up to page %s (%d ops)" % (self.i, p.key, n))

    def take_pages(self, n):
        r = []
        for _ in range(n):
            x = self.pq.pop(0)
            x.addr = self.free.pop(0)
            pre, ld, imm = x.src
            r.append(list(pre) + ["s_add_u32 m0, %s, %d" % (self.m0base, x.addr - imm), ld])
            x.issued = -10 ** 6
            self.vq.append(("W", x.key))
        return r

    def pump(self, n, only=None):
        k = 0
        while k < n:
            if not self.pend:
                sv = None
                if only == "W":
                    sv, self.aq = self.aq, []
                if only == "A":
                    sv, self.pq = self.pq, []
                ok = self.pick()
                if only == "W":
                    self.aq = sv
                if only == "A":
                    self.pq = sv
                if not ok:
                    break
            isvm = parse(self.pend[0][0])["kind"] == "vmem"
            self.pend_step()
            k += isvm
        self.vnext = self.i
        return k

    def read_ready(self):
        if not self.rq:
            return False
        e, f, r = self.rq[0]
        return e <= self.i and self.pages[self.frags[f][r][0]].visible

    def do_read(self):
        e, f, r = self.rq.pop(0)
        pk, kind, off, tmpl, half = self.frags[f][r]
        p = self.pages[pk]
        base, o = self.dsbase(kind, p.addr + off)
        tag = ("F", f, r)
        self.ins(tmpl.format(d=self.fragreg(self.fbuf[f], half), b=base, o=o), dtag=tag)
        p.reads.append(tag)

    def reads(self, n=99):
        k = 0
        while k < n and self.read_ready():
            self.do_read()
            k += 1
        return k

    def item_ready(self, st):
        if not st.items:
            return False
        it = st.items[0]
        if it.at > self.i or st.last + it.delay > self.i or not self.ok_after(it.after):
            return False
        if it.bar and self.nbar <= st.lastbar:
            return False
        if it.needd and self.LGMIN:
            n = self._cnt(self.dq, self.ddone, it.needd, 99)
            if n is not None and n < self.LGMIN:
                return False
        return all(self.short(x) == 0 for x in it.ins[:2])

    def do_item(self, st):
        it = st.items.pop(0)
        c = self.wait(v=it.needv, d=it.needd)
        self.emit(it.ins, vtag=it.vtag, dtag=it.dtag)
        if it.fn:
            it.fn()
        st.last = self.i
        st.lastbar = self.nbar
        if it.pause:
            self.vnext = max(self.vnext, self.i + it.pause)
        if it.sets:
            self.events[it.sets] = self.i
        return c + it.cost

    def drain(self, st, upto=None, every=0, nmax=0, only=None):
        n = 0
        while st.items and not (upto and upto in self.events):
            it = st.items[0]
            assert self.ok_after(it.after), (st.name, it.after)
            if it.bar and self.nbar <= st.lastbar:
                self.barrier()
            self.do_item(st)
            n += 1
            if every and n % every == 0 and nmax > 0:
                vn = self.vnext
                nmax -= self.pump(1, only)
                self.vnext = max(vn, self.vnext)
        if n:
            self.log.append("gap %d: drained %d items of %s" % (self.i, n, st.name))

    def run(self, end, budget=lambda i: 8, vsp=lambda i: 5, urgent=24, hooks={}, pair=lambda i: False):
        while self.i < end:
            i = self.i
            if i in hooks:
                hooks[i]()
            B = budget(i)
            if i in self.bars:
                self.barrier()
                B -= 8
            tmpl, f, at = self.main[i]
            if not self.pend:
                self.pick()
            vm_now = False
            if self.pend:
                isvm = parse(self.pend[0][0])["kind"] == "vmem"
                self.vstep = vsp(i)
                due = i - self.lastvm >= 2 and (self.pdl - i < urgent or i >= self.vnext)
                if isvm and due and B >= 8:
                    vm_now = True
            late = self.read_ready() and self.fu[self.rq[0][1]] - i <= self.margin
            if vm_now and not late:
                B -= self.pend_step()
            else:
                n = 0
                while self.read_ready() and (B >= 4 and n < 2 or self.fu[self.rq[0][1]] - i <= 2):
                    if n == 1 and not pair(i) and i - self.rq[0][0] < 2 and self.fu[self.rq[0][1]] - i > self.margin:
                        break
                    self.do_read()
                    B -= 4
                    n += 1
            while self.pend and B >= 4 and parse(self.pend[0][0])["kind"] != "vmem":
                B -= self.pend_step()
            for st in self.streams:
                lim = B if st.budget is None else B + st.budget(i)
                if st.rate and st.items and st.items[0].at <= i and self.ok_after(st.items[0].after):
                    st.credit = min(st.credit + st.rate(i), max(24, 2 * st.rate(i)))
                while self.item_ready(st) and (lim >= st.items[0].cost or (lim >= 8 and st.items[0].cost > 8)
                                               or (st.items[0].cost and st.credit + max(lim, 0) >= 2 * st.items[0].cost)):
                    c = self.do_item(st)
                    lim -= c
                    B -= c
                    st.credit = max(st.credit - c, -32)
            ats = [x for x in (at if isinstance(at, list) else [at]) if x is not None]
            for x in ats:
                while any(g.tag == x for g in self.aq) or any(t == x for o, t, p in self.pend):
                    if not self.pend:
                        assert self.pick(), ("operand cannot be issued", x, i)
                    self.pend_step()
                    self.log.append("gap %d: late operand %s" % (i, x))
            if f is not None:
                while any(r[1] == f for r in self.rq[:4]):
                    assert self.read_ready(), ("fragment not readable", f, i)
                    self.do_read()
                self.wait(v=ats, d={("F", f, r) for r in range(len(self.frags[f]))})
                t = tmpl.format(W=self.fragreg(self.fbuf[f], None))
            else:
                self.wait(v=ats)
                t = tmpl
            self.ins(t)
            self.i += 1


    def lead_report(self, step=64):
        r = []
        for k in range(0, self.i, step):
            w = [l for i, t, l in self.leads if k <= i < k + step and t == "W"]
            x = [l for i, t, l in self.leads if k <= i < k + step and t == "A"]
            r.append("%d:%dW%s/%dA%s" % (k, len(w), ">%d" % min(w) if w else "", len(x), ">%d" % min(x) if x else ""))
        return " ".join(r)
```

```python
import gen2
from gen2 import NAME, f32bits, srd, xsum, xred, round_bf16_pair, ln_finish, mfma, touch, lines
from asmlib import *
from sched import *

WS_MOD, MODP, WS_STAT, WS_FLAG = 0, 6144 * 4, 0x40000, 0x80000
WS_H1, WS_O, WS_H2, WS_XCH, WS_HH, WS_X1 = 0x100000, 0x500000, 0x900000, 0xD00000, 0x1100000, 0x2000000
WS_SIZE = 0x2800000
WS_STAMP = 0x3000000
ACT_BYTES, WF_BYTES, KBS, NLOG2E, SPIN, FS = 2048 * 1024 * 2, 1024 * 3584 * 2, 0x20000, 0xbfb8aa3b, 0x40000, 6
FL_HH, FL_O, FL_H2, FL_H1, FL_EPOCH = [WS_FLAG + (x << FS) for x in (0, 1024, 3072, 4096, 5300)]
OOB = 0x40000000

P = dict(
    TQ=8, T5=10, T6=4, NA=12, NF=11, BAR2=26, BAR5=56, BAR6=32, BAR3=16,
    LGMIN=8, XB=6, BUD2=12, BUD3=12, VSP2=4, VSP3=3, VSP5=6, VSP5D=6, VSP6=4, LG=13,
    GB_A=16, GB_B=6, GB_C=7, GB_D=3, ATR=24,
    FD_A=48, FD_B=60, FD_C=60, FD_D=60, FD_OA=44, FD_OB=40,
    CA=-50, CB=6 * 32, CC=10 * 32, CD=18 * 32, PLAT=40, COA=-60, OPRE=16, OEV=5, QUIETA=0, QUIETB=40, COB=90, CH1=30,
    PF0=60, PFSTEP=84, PFN=11, INPOS=-12, NF1=2, W5AT=128, W5N=0,
    LEAD5=224, LEADA=224, DEEP=22, PAIR=2, VMC=8,
    SPQ=17, SP5=22, N0=36, N0L=0, N0M=24, TU="Le.Gl.Gl.Gl", P2U=12, CT0=1, WALK=3,
    MARK=0, TR0=None, TRS=56, DBG=0,
)

MISC = 12288
NPAGES = 37
LDS_BYTES = MISC + NPAGES * 4096
X0, VEC, SILT = 8192, 10240, 11264

VL, VA5, VW1, VW2, VDS = 224, 225, 226, 227, 228
VA3, VW3, VW6S, VFA, VP, VTAG, VF0, VTA, VTD, VX, VVEC, VT16, VA6, VW6K, VFB = range(240, 255)
VDQ, VDH, VWQ, VWQ2, VAQ, VH, VFL, VXW, VXO, BP, HK, HP, VX0, VXR = 176, 182, 185, 186, 187, 188, 189, 191, 192, 193, 196, 200, 208, 209
VM, VS1, VS2, VST = 210, 211, 212, 213
VDG, VWM2, VGR, GD2 = 214, 217, 218, 220
SIL2 = [24, 28, 32, 36, 40, 44, 96, 100]
HF = 112
SW, SWO, SG, SU, SD, SX, SO, ST, SQ = 4, 8, 12, 16, 44, 48, 52, 56, 80
SMD, SC = 60, 64
SA_, SWF, SM0, SNL = 40, 41, 42, 43
SHA, SHB, SHC, SHC2 = 64, 65, 20, 21
R0, R1 = 0, 1
S8K, SCB, SCMP, SMK = 38, 39, 68, 24
SOA, SFOP = 78, 79
SFOC, SEXP = 88, 89
SFP, SFC, SF2P, SF2C, SSR, SSW, SIN, SOUTB, SH2, SH2B, STAG, SMS = 90, 91, 92, 93, 94, 95, 96, 97, 98, 99, 100, 101
CMP = "s[%d:%d]" % (SCMP, SCMP + 1)


def sq(s):
    return "s[%d:%d]" % (s, s + 3)


def srd_fin(a, d, nbytes):
    a("s_mov_b32 s%d, 0x%x" % (d + 2, nbytes))
    a("s_mov_b32 s%d, 0x20000" % (d + 3))


def cap(fn, *args):
    b = Asm()
    fn(b, *args)
    return [x for x in lines(b) if not x.startswith("s_nop")]


def items(lst, **kw):
    r = [Item(x) for x in lst]
    if r and kw:
        r[0] = Item(lst[0], **kw)
    return r


def code_touch(S, vo, vd, lane=VL):
    lab = S.uid("pc")
    return ["s_getpc_b64 s[30:31]", lab + ":",
            "s_lshr_b32 s32, s2, 4", "s_lshl_b32 s32, s32, 2", "s_add_u32 s32, s32, s3", "s_lshl_b32 s32, s32, 13",
            "v_lshlrev_b32 v%d, 7, v%d" % (vo, lane), "v_add_u32 v%d, s32, v%d" % (vo, vo),
            "v_min_u32 v%d, L_code_end-%s-4, v%d" % (vo, lab, vo),
            "global_load_dword v%d, v%d, s[30:31]" % (vd, vo)]


TR = "ds_read_b64_tr_b16 {d}, v{b} offset:{o}"


def acc2(hd, tb, seg, fb):
    return hd * 48 + (tb * 6 + seg * 2 + fb) * 4


def acc5(tb, m, grp, jj):
    if grp == 2:
        return ((tb * 2 + m) * 2 + jj) * 4 if jj < 2 else 64 + (tb * 2 + m) * 4
    return 96 + ((tb * 2 + m) * 4 + jj) * 4


def wo_row(p):
    return 64 * (p & 15) + 32 * (p >> 4)


def wd_row(p):
    if p < 16:
        return 448 * (p >> 2) + (64, 192, 224, 352)[p & 3]
    if p < 24:
        q = p - 16
        return 448 * (q >> 1) + (96, 320)[q & 1]
    t, h = (p - 24) & 15, (p - 24) >> 4
    return 448 * (t >> 2) + 128 * (t & 3) + 32 * h


def walk(S, k):
    S("s_mov_b64 vcc, -1")
    for q in range(3):
        S("s_cmp_eq_u32 s3, %d" % q)
        S("s_cbranch_scc1 L_wk%d_%d" % (k, q))
    S("s_branch L_wk%d_3" % k)
    S.label("L_wk%d_end" % k)
    S("s_mov_b64 vcc, 0")


def gen(a, name):
    TQ, T5, T6, NA, NF = P["TQ"], P["T5"], P["T6"], P["NA"], P["NF"]
    AWF = NA * 16
    AX1 = AWF + NF * 4
    assert AX1 + 16 <= 252 and TQ <= 8

    def fragreg(buf, half):
        return ar(AWF + buf * 4, 4) if half is None else ar(AWF + buf * 4 + 2 * half, 2)

    def dsbase(kind, addr):
        w = addr >> 16
        r = VDH + w if kind == "h" else VDG + w if kind == "g" else (VDQ + 2 * w + kind[1] if isinstance(kind, tuple) else VDS + 4 * w + kind)
        return r, addr - (w << 16)

    a.begin_kernel(name)
    S = Sched(a, NF, fragreg, dsbase, MISC, NPAGES, "s%d" % SM0)
    S.LG = P["LG"]
    end = S.uid("end")

    mk = dict(n=0, pend=[], names={})

    def mark(nm, now=False):
        if not P["MARK"]:
            return
        k = mk["names"].setdefault(nm, len(mk["names"]))
        assert k < 32
        S("; @mark %d %s" % (k, nm))
        b = 70 + 4 * (mk["n"] & 1)
        mk["n"] += 1
        for pb, pk in [x for x in mk["pend"] if x[0] == b]:
            S("v_writelane_b32 v255, s%d, %d" % (pb, 2 * pk))
            S("v_writelane_b32 v255, s%d, %d" % (pb + 2, 2 * pk + 1))
        mk["pend"] = [x for x in mk["pend"] if x[0] != b]
        S("s_nop 3")
        S("s_memtime s[%d:%d]" % (b, b + 1))
        S("s_memrealtime s[%d:%d]" % (b + 2, b + 3))
        mk["pend"].append((b, k))
        if now:
            S("s_waitcnt lgkmcnt(0)")
            for pb, pk in mk["pend"]:
                S("v_writelane_b32 v255, s%d, %d" % (pb, 2 * pk))
                S("v_writelane_b32 v255, s%d, %d" % (pb + 2, 2 * pk + 1))
            mk["pend"] = []

    main, frags, pages, ags = [], {}, [], []
    seen = set()
    G3, G5, G6 = 16, 32, 64

    def vsing(s, q):
        return 96 + ((s - 8) * 2 + (q >> 1)) * 16 + (q & 1) * 4

    def areg(gs, q):
        if G6 + 8 <= gs < G6 + 12:
            return vr(vsing(gs - G6, q), 4)
        return ar((gs % NA) * 16 + q * 4, 4)

    def mm(acc, f, gs, x, swap=False):
        c = vr(acc, 4) if (acc, f[0]) in seen else "0"
        seen.add((acc, f[0]))
        main.append((mfma(vr(acc, 4), x, "{W}", c) if swap else mfma(vr(acc, 4), "{W}", x, c), f, ("A", gs)))

    def page(key, srd_, v, soff, njj, imm=0, nt=False, **kw):
        pages.append(Page(key, (["s_mov_b32 s%d, %d" % (SWF, soff)],
                                "buffer_load_dwordx4 v%d, %s, s%d offen offset:%d%s lds" % (v, sq(srd_), SWF, imm, " nt" if nt else ""), imm), **kw))
        for jj in range(njj):
            frags[key + (jj,)] = [(key, jj, hf * 2048, TR, hf) for hf in range(2)]

    for u in range(16):
        for seg in (1, 2, 0):
            for hd in range(2):
                key = (2, u, seg, hd)
                page(key, SQ, VWQ2 if seg == 2 else VWQ, u * 64 * 6144, 0, imm=(seg & 1) * 2048 + hd * 64, glue=(hd == 0))
                for fb in range(2):
                    for kk in range(2):
                        frags[key + (fb, kk)] = [(key, ("q", fb), (2 * kk + hf) * 1024, TR, hf) for hf in range(2)]
                frags[key + ("h",)] = [(key, "h", hf * 1024, TR, hf) for hf in range(2)]
    u2 = [(hd, u) for u in range(16 - TQ) for hd in range(2)] + [(hd, u) for hd in range(2) for u in range(16 - TQ, 16)]
    pos2, end2, hend = {}, {}, {}
    for i in range(8):
        page((1, i), SMD, VWM2, i * 32 * 12288, 0, nt=True)
        frags[(1, i, "g")] = [((1, i), "g", hf * 2048, TR, hf) for hf in range(2)]
    for hd, u in u2:
        pos2[(hd, u)] = len(main)
        if (hd, u) == (1, P["P2U"]):
            IP2 = len(main)
            for i in range(8):
                mm(GD2, (1, i, "g"), u, vr(SIL2[i], 4))
        for uh in ([u] if u < 14 else ([14, 15] if u == 14 else [])):
            for seg in (1, 2):
                mm(96 + hd * 8 + (seg - 1) * 4, (2, uh, seg, hd, "h"), uh, vr(HF + uh * 4, 4), seg == 2)
            hend[hd] = len(main)
        for seg in (1, 2, 0):
            for fb in range(2):
                for tb in range(2):
                    for kk in range(2):
                        mm(acc2(hd, tb, seg, fb), (2, u, seg, hd, fb, kk), u, areg(u, kk * 2 + tb), seg == 2)
            end2[(hd, seg)] = len(main)
    I3 = len(main)
    ACC3 = 0
    for s in range(16):
        for kk in range(2):
            page((3, 2 * s + kk), SWO, VW3, wo_row(2 * s + kk) * 2048, 4)
        for jj in range(4):
            for tb in range(2):
                for kk in range(2):
                    mm(ACC3 + (tb * 4 + jj) * 4, (3, 2 * s + kk, jj), G3 + s, areg(G3 + s, kk * 2 + tb))
    I5 = len(main)
    u5 = [(s, g) for s in range(0, 32 - T5, 2) for g in (2, 1)] + [(s, g) for g in (2, 3, 4) for s in range(32 - T5, 32, 2)]
    pos5, end5 = {}, {}
    for s0, g in u5:
        pos5[(s0, g)] = len(main)
        pg = 2 if g == 2 else 1
        if g != 4:
            for m in range(2):
                for s in (s0, s0 + 1):
                    page((5, s, m, pg), (SG, SU)[m], VW1 if pg == 1 else VW2, s * 32 * 7168, 4 if pg == 1 else 3, at=I3 + P["W5AT"])
        js = {1: [(m, jj) for m in range(2) for jj in range(4)], 2: [(0, 0), (0, 1), (1, 0), (1, 1), (0, 2), (1, 2)],
              3: [(m, jj) for m in range(2) for jj in (0, 1)], 4: [(m, jj) for m in range(2) for jj in (2, 3)]}[g]
        for m, jj in js:
            for tb in range(4):
                for s in (s0, s0 + 1):
                    mm(acc5(tb, m, pg, jj), (5, s, m, pg, jj), G5 + s, areg(G5 + s, tb))
            end5[(m, pg, jj)] = len(main)
    I6 = len(main)
    u6 = [(s, h) for s in range(28 - T6) for h in (1, 0)] + [(s, h) for h in (1, 0) for s in range(28 - T6, 28)]
    pos6 = {}
    for s, h in u6:
        pos6[(s, h)] = len(main)
        for kk in range(2):
            page((6, 2 * s + kk, h), SD, VW6S if h else VW6K, wd_row(2 * s + kk) * 2048, 4)
        for jj in range(4):
            for tb in range(2):
                for kk in range(2):
                    mm(h * 32 + (tb * 4 + jj) * 4, (6, 2 * s + kk, h, jj), G6 + s, areg(G6 + s, kk * 2 + tb))
    IE = len(main)
    lastA = {}
    for i, (t, f, at) in enumerate(main):
        lastA[at[1]] = i
    NF1 = P["NF1"]
    for gs in range(G6 + 28):
        at = lastA[gs - NA] + 1 if gs >= NA else 0
        if G5 <= gs < G6:
            s = gs - G5
            ops = ["s_mov_b32 s%d, %d" % (SA_, WS_H2 + s * KBS)]
            ops += ["buffer_load_dwordx4 %s, v%d, %s, s%d offen offset:%d sc1" % (areg(gs, tb), VA5, sq(SW), SA_, tb * 1024) for tb in range(4)]
            aft = {"h2a" if s < 2 * NF1 else "h2b"}
        else:
            s, v, base = (gs, VAQ, WS_H1) if gs < G3 else ((gs - G3, VA3, WS_O) if gs < G5 else (gs - G6, VA6, WS_HH))
            ops = []
            for kk in range(2):
                ops.append("s_mov_b32 s%d, %d" % (SA_, base + (2 * s + kk) * KBS))
                if gs < G3 and kk == 0:
                    ops.append("buffer_load_dwordx4 %s, v%d, %s, s%d offen sc1" % (vr(HF + s * 4, 4), VH, sq(SW), SA_))
                ops += ["buffer_load_dwordx4 %s, v%d, %s, s%d offen offset:%d sc1" % (areg(gs, kk * 2 + tb), v, sq(SW), SA_, tb * 1024) for tb in range(2)]
            if gs < G3:
                aft = {"h1a" if s < 4 else "h1b"}
            elif gs < G5:
                aft = {"chkOA" if s < 8 else "chkOB"}
            else:
                aft = {"chkA"} if s < 8 else ({"chkB", "stC"} if s < 12 else ({"chkC"} if s < 20 else {"chkD"}))
        ags.append(AGroup(("A", gs), ops, at=at, after=aft))
    bars = sorted(pos2.values())[1:] if P["BAR2"] == 26 else sorted(pos2.values())[1::2]
    if TQ and P["XB"]:
        bars = [b + P["XB"] if b == pos2[(1, 16 - TQ)] else b for b in bars]
    bars += list(range(I3 + P["BAR3"], I5, P["BAR3"])) + list(range(I5 + 18, I6, P["BAR5"])) + list(range(I6 + 2, IE - 16, P["BAR6"]))
    S.setup(main, frags, pages, ags, bars, cuts=(0, I5))
    for p in pages:
        if p.key[0] == 5:
            p.at = max(p.at, p.want - (P["LEAD5"] if p.want < I5 + P["DEEP"] * 56 else 10000), min(p.want - P["LEAD5"], I5 + (P["DEEP"] - 6) * 56))
    for g in ags:
        if G5 <= g.tag[1] < G6 - T5:
            g.at = max(g.at, g.dl - P["LEADA"])
    pre = S.take_pages(P["N0"])
    GPG = MISC + (NPAGES - 8) * 4096
    N0G = min(P["N0"], NPAGES - 8)

    slow = []

    def spin_here(ld, cmp_, first=None):
        lp, ok = S.uid("spin"), S.uid("ok")
        S("s_mov_b32 s33, %d" % SPIN)
        S.label(lp)
        S.emit(ld)
        S.emit(cmp_)
        S("s_cmp_eq_u64 %s, 0" % CMP)
        S("s_cbranch_scc1 %s" % ok)
        S("s_sub_u32 s33, s33, 1")
        S("s_cmp_lg_u32 s33, 0")
        S("s_cbranch_scc1 %s" % lp)
        S.label(ok)

    def flag_cmp(gen_):
        r = ["v_subrev_u32 v%d, s%d, v%d" % (VP, STAG, VP)]
        if gen_:
            r.append("v_subrev_u32 v%d, %d, v%d" % (VP, gen_, VP))
        return r + ["v_cmp_lt_u32 %s, %d, v%d" % (CMP, 7 - gen_, VP)]

    def flag_st(so, gen_):
        return ["v_add_u32 v%d, %d, v%d" % (VTD, gen_, VTAG), "buffer_store_dword v%d, v%d, %s, s%d offen sc1" % (VTD, VF0, sq(SW), so)]

    def check_items(ld, cmp_, at_p, at_c, ev, after=(), lat=None):
        ls, lb = S.uid("slow"), S.uid("back")
        slow.append((ls, lb, ld, cmp_))
        r = [Item(x, at=at_p, vtag=("P", ev), after=after) for x in ld]
        r += items(cmp_, at=at_c - 2, needv={("P", ev)}, delay=P["PLAT"] if lat is None else lat)
        r.append(Item(["s_cmp_lg_u64 %s, 0" % CMP, "s_cbranch_scc1 %s" % ls, lb + ":"], delay=1, sets=ev))
        return r

    def pollchk(so, va, at_c, ev, gen_, after=(), lat=None):
        lat = P["PLAT"] if lat is None else lat
        return check_items(["buffer_load_dword v%d, v%d, %s, s%d offen sc1" % (VP, va, sq(SW), so)], flag_cmp(gen_), at_c - lat, at_c, ev, after, lat)

    def tag_cmp(quads, t):
        r = []
        regs_ = [q + e for q in quads for e in range(4)]
        for k, x in enumerate(regs_):
            r.append("v_xor_b32 v%d, s%d, v%d" % (x, TB0 + (k & 3), x))
            if k == 1:
                r.append("v_or_b32 v%d, v%d, v%d" % (t, regs_[0], x))
            elif k & 1:
                r.append("v_or3_b32 v%d, v%d, v%d, v%d" % (t, t, regs_[k - 1], x))
        return r + ["v_and_b32 v%d, 0xff, v%d" % (t, t), "v_cmp_ne_u32 %s, 0, v%d" % (CMP, t)]
    TB0 = 84
    tag_sh = ["s_bfe_u32 s%d, s%d, 0x%x" % (TB0 + e, STAG, 0x80000 | (8 * e)) for e in range(4)]

    def wq_addr():
        S("v_lshrrev_b32 v%d, 4, v%d" % (VWT, VL))
        S("s_movk_i32 s30, 6144")
        S("v_mul_u32_u24 v%d, s30, v%d" % (VWT, VWT))
        S("v_and_b32 v%d, 15, v%d" % (T, VL))
        S("v_min_u32 v%d, 11, v%d" % (T, T))
        S("v_and_b32 v%d, 3, v%d" % (T + 1, T))
        S("v_lshl_add_u32 v%d, v%d, 7, v%d" % (VWT, T + 1, VWT))
        S("v_lshrrev_b32 v%d, 2, v%d" % (T, T))
        S("v_lshl_add_u32 v%d, v%d, 11, v%d" % (VWT, T, VWT))
        S("s_lshr_b32 s32, s2, 4")
        S("s_lshl_b32 s30, s3, 4")
        S("s_add_u32 s32, s32, s30")
        S("s_mul_i32 s32, s32, %d" % (4 * 6144))
        S("s_bfe_u32 s30, s2, 0x20001")
        S("s_lshl_b32 s30, s30, 9")
        S("s_add_u32 s32, s32, s30")
        S("v_add_u32 v%d, s32, v%d" % (VWT, VWT))

    def wq_touch(slot):
        n = 0
        for k, sl in enumerate(P["TU"].split(".")):
            if sl == slot:
                S("s_mov_b32 s30, %d" % (k * 256 * 6144))
                S(touch(JUNK, VWT, SQ, "s30"))
                n += 1
        return n

    lrole1, join1, lrole2, join2 = S.uid("l1"), S.uid("j1"), S.uid("l2"), S.uid("j2")
    S("s_cmp_ge_u32 s2, 256")
    S("s_cbranch_scc1 %s" % end)
    for s_, ka in ((SW, KA_WS), (SX, KA_X), (SC, KA_C), (SMD, KA_WMOD)):
        S("s_load_dwordx2 s[%d:%d], s[0:1], %d" % (s_, s_ + 1, ka))
    if P["MARK"]:
        S("v_mov_b32 v255, 0")
    mark("start")
    T = 200
    JUNK, VWT = 223, 199
    S("v_lshrrev_b32 v%d, 6, v0" % T)
    S("v_and_b32 v%d, 63, v0" % VL)
    S("v_readfirstlane_b32 s3, v%d" % T)
    if P["CT0"]:
        S.emit(code_touch(S, T, JUNK))
    S("v_lshlrev_b32 v%d, 4, v%d" % (VT16, VL))
    S("s_lshr_b32 s36, s2, 4")
    S("s_lshl_b32 s36, s36, 3")
    S("s_and_b32 s30, s2, 7")
    S("s_add_u32 s36, s36, s30")
    S("s_lshl_b32 s%d, s3, 10" % SM0)
    ROW, CHK = 206, 207
    S("v_lshrrev_b32 v%d, 3, v0" % ROW)
    S("v_and_b32 v%d, 6, v%d" % (CHK, ROW))
    S("v_and_b32 v%d, 7, v%d" % (T + 2, VL))
    S("v_xor_b32 v%d, v%d, v%d" % (CHK, CHK, T + 2))
    GC, CD, VG, SIL, GW, GD = 220, 196, 5, 16, 48, 80
    S("s_and_b32 s35, s2, 3")
    S("s_movk_i32 s30, 12288")
    S("v_mul_u32_u24 v%d, s30, v%d" % (VWM2, ROW))
    S("v_lshl_add_u32 v%d, v%d, 4, v%d" % (VWM2, CHK, VWM2))
    S("s_mul_i32 s30, s35, %d" % (256 * 12288))
    S("v_add_u32 v%d, s30, v%d" % (VWM2, VWM2))
    S("s_lshr_b32 s34, s36, 2")
    S("s_lshl_b32 s31, s34, 7")
    S("v_lshlrev_b32 v%d, 1, v0" % GC)
    S("s_lshl_b32 s30, s35, 9")
    VI, VD, VMG = 1, 222, 4
    XD, XF, MD, T2, ML = 8, 40, 104, 114, 120
    S("v_bfe_u32 v%d, v%d, 4, 1" % (T2, VL))
    S("v_lshlrev_b32 v%d, 5, v%d" % (VD, T2))
    S("v_lshrrev_b32 v%d, 5, v%d" % (T2, VL))
    S("v_lshl_add_u32 v%d, v%d, 4, v%d" % (VD, T2, VD))
    S("v_and_b32 v%d, 15, v%d" % (T2, VL))
    S("v_lshl_add_u32 v%d, v%d, 11, v%d" % (VI, T2, VD))
    S("s_lshl_b32 s33, s36, 15")
    S("s_lshl_b32 s32, s3, 7")
    S("s_add_u32 s33, s33, s32")
    srd_fin(S, SC, 2048)
    srd_fin(S, SMD, 1024 * 6144 * 2)
    srd_fin(S, SX, ACT_BYTES)
    srd_fin(S, SW, WS_SIZE)
    S("s_bitcmp1_b32 s2, 3")
    S("s_waitcnt lgkmcnt(0)")
    S("buffer_load_ushort v%d, v%d, %s, s30 offen" % (CD, GC, sq(SC)))
    S("s_cbranch_scc1 %s" % lrole1)
    for i in range(8):
        S("s_add_u32 m0, s%d, %d" % (SM0, GPG + i * 4096))
        if i:
            S("s_add_u32 s31, s31, %d" % (32 * 12288))
        S("buffer_load_dwordx4 v%d, %s, s31 offen nt lds" % (VWM2, sq(SMD)))
    S("s_branch %s" % join1)
    S.label(lrole1)
    for j in range(4):
        for i in range(2):
            S("buffer_load_dwordx4 %s, v%d, %s, s33 offen offset:%d" % (vr(XD + (2 * j + i) * 4, 4), VI, sq(SX), 512 * j + 64 * i))
    S.label(join1)
    mark("ld1", True)
    S("s_load_dword s%d, s[%d:%d], 0x%x" % (STAG, SW, SW + 1, FL_EPOCH))
    for s_, ka in ((SQ, KA_WQKV), (SWO, KA_WO), (SG, KA_WG), (SU, KA_WU), (SD, KA_WD), (SO, KA_OUT)):
        S("s_load_dwordx2 s[%d:%d], s[0:1], %d" % (s_, s_ + 1, ka))
    wq_addr()
    S("s_and_b32 s22, s2, 1")
    S("s_lshl_b32 s22, s22, 3")
    S("s_bfe_u32 s30, s2, 0x30003")
    S("s_add_u32 s22, s22, s30")
    S("s_bfe_u32 s23, s2, 0x20001")
    S("s_lshl_b32 s23, s23, 2")
    S("s_lshr_b32 s30, s2, 6")
    S("s_add_u32 s23, s23, s30")
    S("v_lshrrev_b32 v%d, 2, v0" % T)
    S("s_movk_i32 s30, 6144")
    S("v_mul_u32_u24 v%d, s30, v%d" % (T, T))
    S("v_bfe_u32 v%d, v%d, 4, 1" % (T + 1, VL))
    S("v_lshlrev_b32 v%d, 1, v%d" % (T + 2, T + 1))
    S("v_and_b32 v%d, 3, v%d" % (T + 3, VL))
    S("v_xor_b32 v%d, v%d, v%d" % (T + 2, T + 2, T + 3))
    S("v_lshl_add_u32 v%d, v%d, 4, v%d" % (T, T + 2, T))
    S("s_lshl_b32 s30, s23, 7")
    S("v_add_u32 v%d, s30, v%d" % (VWQ, T))
    S("v_add_u32 v%d, 4096, v%d" % (VWQ2, VWQ))
    S("v_lshrrev_b32 v%d, 2, v%d" % (T, VL))
    S("v_lshlrev_b32 v%d, 6, v%d" % (T, T))
    S("v_lshl_add_u32 v%d, v%d, 5, v%d" % (T, T + 1, T))
    S("v_lshl_add_u32 v%d, v%d, 3, v%d" % (VDQ, T + 3, T))
    S("v_xor_b32 v%d, 32, v%d" % (VDQ + 1, VDQ))
    S("s_and_b32 s30, s3, 1")
    S("s_lshl_b32 s30, s30, 5")
    S("v_xor_b32 v%d, s30, v%d" % (VDH, VDQ))
    S("s_lshr_b32 s31, s3, 1")
    S("s_lshl_b32 s30, s31, 11")
    S("v_add_u32 v%d, s30, v%d" % (VDH, VDH))
    for w in (1, 2):
        for fb in range(2):
            S("v_add_u32 v%d, 0x%x, v%d" % (VDQ + 2 * w + fb, w << 16, VDQ + fb))
        S("v_add_u32 v%d, 0x%x, v%d" % (VDH + w, w << 16, VDH))
    S("s_lshl_b32 s30, s22, 13")
    S("s_lshl_b32 s32, s3, 11")
    S("s_add_u32 s30, s30, s32")
    S("v_add_u32 v%d, s30, v%d" % (VAQ, VT16))
    S("s_lshl_b32 s32, s22, 3")
    S("s_max_u32 s32, s32, 1")
    S("s_sub_u32 s32, s32, 1")
    S("s_lshl_b32 s30, s32, 10")
    S("s_lshl_b32 s31, s31, 17")
    S("s_add_u32 s30, s30, s31")
    S("v_add_u32 v%d, s30, v%d" % (VH, VT16))
    S("s_lshl_b32 s30, s22, 3")
    S("s_lshl_b32 s31, s3, 1")
    S("s_add_u32 s30, s30, s31")
    S("s_lshl_b32 s30, s30, 2")
    S("s_lshl_b32 s32, s32, 2")
    S("v_add_u32 v%d, s32, v%d" % (T, T + 3))
    S("v_add_u32 v%d, s30, v%d" % (VFL, VL))
    S("v_cmp_lt_u32 vcc, 7, v%d" % VL)
    S("v_cndmask_b32 v%d, v%d, v%d, vcc" % (VFL, VFL, T))
    S("v_lshlrev_b32 v%d, %d, v%d" % (VFL, FS, VFL))
    S("v_add_u32 v%d, 0x%x, v%d" % (VFL, FL_H1, VFL))
    S("v_cmp_ne_u32 vcc, 0, v%d" % VL)
    S("v_mov_b32 v%d, 0x%x" % (T, OOB))
    S("v_cndmask_b32 v%d, 0, v%d, vcc" % (VF0, T))
    S("v_lshrrev_b32 v%d, 2, v%d" % (T, VL))
    S("v_lshlrev_b32 v%d, 7, v%d" % (T, T))
    S("v_bfe_u32 v%d, v%d, 3, 2" % (T + 1, VL))
    S("v_lshl_add_u32 v%d, v%d, 5, v%d" % (T, T + 1, T))
    S("v_lshl_add_u32 v%d, v%d, 3, v%d" % (VDS, T + 3, T))
    S("s_waitcnt lgkmcnt(0)")
    S("s_add_u32 s%d, s%d, 0x9e3779b8" % (STAG, STAG))
    S("s_and_b32 s%d, s%d, -8" % (STAG, STAG))
    S("v_mov_b32 v%d, s%d" % (VTAG, STAG))
    srd_fin(S, SQ, 1024 * 6144)
    S.emit(tag_sh)
    nge = 0
    for k, sl in enumerate(P["TU"].split(".")):
        if sl in ("Ge", "Le"):
            S("s_bitcmp%d_b32 s2, 3" % (sl == "Le"))
            S("s_cselect_b32 s30, %d, 0x%x" % (k * 256 * 6144, OOB) if k == 0 else "s_cselect_b32 s30, 0, 0x%x" % OOB)
            if k:
                S("s_add_u32 s30, s30, %d" % (k * 256 * 6144))
            S(touch(JUNK, VWT, SQ, "s30"))
            nge += 1
    S("s_mul_i32 s35, s35, %d" % MODP)
    S("s_lshl_b32 s30, s3, 6")
    S("s_add_u32 s35, s35, s30")
    S("s_lshl_b32 s30, s34, 8")
    S("s_add_u32 s66, s35, s30")
    S("s_lshr_b32 s30, s2, 2")
    S("s_lshl_b32 s31, s30, 8")
    S("s_add_u32 s35, s35, s31")
    S("s_add_u32 s35, s35, 8192")
    S("s_lshl_b32 s30, s30, 7")
    S("s_add_u32 s30, s30, 4096")
    S("v_add_u32 v%d, s30, v%d" % (VWM2, VWM2))
    S("v_lshrrev_b32 v%d, 4, v%d" % (T + 1, VL))
    S("v_lshlrev_b32 v%d, 4, v%d" % (VVEC, T + 1))
    S("v_and_b32 v%d, 15, v%d" % (T + 2, VL))
    S("v_cmp_ne_u32 vcc, 0, v%d" % (T + 2))
    S("v_mov_b32 v6, 0x%x" % OOB)
    S("v_cndmask_b32 v6, v%d, v6, vcc" % VVEC)
    S("v_add_u32 v%d, s35, v6" % VGR)
    S("s_lshl_b32 s30, s3, 5")
    S("v_xor_b32 v%d, s30, v%d" % (VDG, VDS))
    for w in (1, 2):
        S("v_add_u32 v%d, 0x%x, v%d" % (VDG + w, w << 16, VDG))
    S("s_lshl_b32 s%d, s36, 2" % R0)
    S("s_add_u32 s%d, s%d, s3" % (R0, R0))
    S("s_lshl_b32 s%d, s%d, %d" % (R0, R0, FS))
    S("s_add_u32 s%d, s%d, 0x%x" % (R0, R0, FL_H1))
    S("s_lshl_b32 s%d, s3, 18" % R1)
    S("s_lshl_b32 s30, s36, 10")
    S("s_add_u32 s%d, s%d, s30" % (R1, R1))
    S("s_add_u32 s%d, s%d, 0x%x" % (R1, R1, WS_H1))
    S("v_lshrrev_b32 v%d, 5, v0" % T)
    S("v_lshlrev_b32 v%d, 6, v%d" % (T, T))
    S("v_bfe_u32 v%d, v0, 2, 2" % (T + 1))
    S("v_lshl_add_u32 v%d, v%d, 4, v%d" % (T, T + 1, T))
    S("v_bfe_u32 v%d, v0, 4, 1" % (T + 1))
    S("v_lshl_add_u32 v%d, v%d, 3, v%d" % (T, T + 1, T))
    S("v_lshl_add_u32 v%d, v%d, 1, v%d" % (T, T + 3, T))
    S("s_waitcnt vmcnt(%d)" % (8 + nge))
    S("v_lshlrev_b32 v%d, 16, v%d" % (CD, CD))
    S("v_mul_f32 v%d, 0x%x, v%d" % (CD + 1, NLOG2E, CD))
    S("v_exp_f32 v%d, v%d" % (CD + 1, CD + 1))
    S("v_add_f32 v%d, 1.0, v%d" % (CD + 1, CD + 1))
    S("v_rcp_f32 v%d, v%d" % (CD + 1, CD + 1))
    S("v_mul_f32 v%d, v%d, v%d" % (CD, CD, CD + 1))
    S("v_cvt_pk_bf16_f32 v%d, v%d, v%d" % (CD, CD, CD))
    S("ds_write_b16 v%d, v%d offset:%d" % (T, CD, SILT))
    T = 200
    srd_fin(S, SWO, 1024 * 1024 * 2)
    srd_fin(S, SG, WF_BYTES)
    srd_fin(S, SU, WF_BYTES)
    srd_fin(S, SD, WF_BYTES)
    srd_fin(S, SO, ACT_BYTES)
    S("s_lshl_b32 s30, s23, 17")
    S("s_add_u32 s%d, s30, 0x%x" % (SOA, WS_O))
    S("s_lshl_b32 s30, s22, 2")
    S("s_add_u32 s30, s30, s3")
    S("s_lshl_b32 s30, s30, 4")
    S("s_add_u32 s30, s30, s23")
    S("s_lshl_b32 s30, s30, %d" % FS)
    S("s_add_u32 s%d, s30, 0x%x" % (SFOP, FL_O))
    S("s_lshl_b32 s30, s22, 14")
    S("s_lshl_b32 s31, s23, 10")
    S("s_add_u32 s30, s30, s31")
    S("s_lshl_b32 s31, s3, 8")
    S("s_add_u32 s30, s30, s31")
    S("s_add_u32 s%d, s30, 0x%x" % (SEXP, WS_STAT))
    S("s_xor_b32 s30, s3, 2")
    S("s_lshl_b32 s30, s30, 11")
    S("v_add_u32 v%d, s30, v%d" % (VXW, VT16))
    S("v_xor_b32 v%d, 0x1000, v%d" % (VXO, VXW))
    S("s_and_b32 s30, s3, 1")
    S("s_lshl_b32 s30, s30, 3")
    S("s_add_u32 s30, s30, %d" % X0)
    S("v_add_u32 v%d, s30, v%d" % (VX0, VT16))
    S("s_sub_u32 s30, s3, 1")
    S("s_xor_b32 s30, s30, 2")
    S("s_lshl_b32 s30, s30, 11")
    S("s_cmp_eq_u32 s3, 0")
    S("s_cselect_b32 s30, %d, s30" % X0)
    S("v_add_u32 v%d, s30, v%d" % (VXR, VT16))
    S("s_or_b32 s33, s22, s3")
    S("s_and_b32 s24, s2, 1")
    S("s_lshr_b32 s29, s2, 3")
    S("s_bfe_u32 s25, s2, 0x20001")
    S("s_lshl_b32 s25, s25, 2")
    S("s_and_b32 s30, s29, 3")
    S("s_add_u32 s25, s25, s30")
    S("s_lshr_b32 s26, s29, 2")
    S("s_lshl_b32 s26, s26, 1")
    S("s_add_u32 s26, s26, s24")
    S("s_lshl_b32 s30, s25, 13")
    S("s_lshl_b32 s31, s3, 11")
    S("s_add_u32 s30, s30, s31")
    S("v_add_u32 v%d, s30, v%d" % (VA3, VT16))
    S("v_lshlrev_b32 v%d, 11, v%d" % (T + 2, ROW))
    S("v_lshl_add_u32 v%d, v%d, 4, v%d" % (T + 2, CHK, T + 2))
    S("s_lshl_b32 s30, s26, 7")
    S("v_add_u32 v%d, s30, v%d" % (VW3, T + 2))
    S("s_mul_i32 s30, s24, %d" % (1792 * 2048))
    S("v_add_u32 v%d, s30, v%d" % (VW6K, VW3))
    S("v_xor_b32 v%d, 128, v%d" % (VW6S, VW6K))
    S("s_mul_i32 s30, s24, %d" % (56 * KBS))
    S("v_add_u32 v%d, s30, v%d" % (VA6, VA3))
    S("s_lshl_b32 s27, s24, 2")
    S("s_and_b32 s30, s29, 3")
    S("s_add_u32 s27, s27, s30")
    S("s_bfe_u32 s28, s2, 0x20001")
    S("s_lshl_b32 s28, s28, 3")
    S("s_lshr_b32 s30, s29, 2")
    S("s_add_u32 s28, s28, s30")
    S("s_lshl_b32 s30, s27, 14")
    S("s_lshl_b32 s31, s3, 12")
    S("s_add_u32 s30, s30, s31")
    S("v_add_u32 v%d, s30, v%d" % (VA5, VT16))
    S("s_movk_i32 s30, 7168")
    S("v_mul_u32_u24 v%d, s30, v%d" % (T + 2, ROW))
    S("v_lshl_add_u32 v%d, v%d, 4, v%d" % (T + 2, CHK, T + 2))
    S("s_lshr_b32 s30, s28, 2")
    S("s_mul_i32 s30, s30, 896")
    S("s_and_b32 s31, s28, 3")
    S("s_lshl_b32 s32, s31, 8")
    S("s_add_u32 s32, s32, s30")
    S("v_add_u32 v%d, s32, v%d" % (VW1, T + 2))
    S("s_lshl_b32 s31, s31, 3")
    S("s_lshr_b32 s32, 0x%x, s31" % (4 | 12 << 8 | 14 << 16 | 22 << 24))
    S("s_and_b32 s32, s32, 255")
    S("s_lshl_b32 s32, s32, 5")
    S("s_add_u32 s32, s32, s30")
    S("v_mov_b32 v%d, s32" % (T + 3))
    S("s_lshr_b32 s32, 0x%x, s31" % (6 | 7 << 8 | 20 << 16 | 21 << 24))
    S("s_and_b32 s32, s32, 255")
    S("s_lshl_b32 s32, s32, 5")
    S("s_add_u32 s32, s32, s30")
    S("s_sub_u32 s32, s32, 64")
    S("v_mov_b32 v%d, s32" % (T + 4))
    S("v_cmp_lt_u32 vcc, 3, v%d" % CHK)
    S("v_cndmask_b32 v%d, v%d, v%d, vcc" % (T + 3, T + 3, T + 4))
    S("v_mov_b32 v%d, 0x%x" % (T + 4, OOB))
    S("v_cmp_lt_u32 vcc, 5, v%d" % CHK)
    S("v_cndmask_b32 v%d, v%d, v%d, vcc" % (T + 3, T + 3, T + 4))
    S("v_add_u32 v%d, v%d, v%d" % (VW2, T + 3, T + 2))
    for jj in range(1, 4):
        S("v_xor_b32 v%d, %d, v%d" % (VDS + jj, jj << 5, VDS))
    for w in (1, 2):
        for jj in range(4):
            S("v_add_u32 v%d, 0x%x, v%d" % (VDS + 4 * w + jj, w << 16, VDS + jj))
    S("s_lshr_b32 s30, s28, 4")
    S("s_mul_i32 s30, s30, 56")
    S("s_and_b32 s31, s28, 15")
    S("s_add_u32 s32, s30, s31")
    S("s_lshl_b32 s32, s32, 17")
    S("s_add_u32 s%d, s32, %d" % (SHA, WS_HH))
    S("s_lshr_b32 s32, s31, 1")
    S("s_add_u32 s32, s32, s30")
    S("s_lshl_b32 s32, s32, 17")
    S("s_and_b32 s31, s31, 1")
    S("s_lshl_b32 s31, s31, 10")
    S("s_add_u32 s32, s32, s31")
    S("s_add_u32 s%d, s32, %d" % (SHB, WS_HH + 16 * KBS))
    S("s_add_u32 s%d, s%d, %d" % (SHC, SHA, 24 * KBS))
    S("s_add_u32 s%d, s%d, %d" % (SHC2, SHA, 40 * KBS))
    S("s_lshl_b32 s30, s27, 2")
    S("s_add_u32 s30, s30, s3")
    S("s_lshl_b32 s30, s30, 5")
    S("s_lshl_b32 s31, s30, %d" % FS)
    S("s_add_u32 s%d, s31, %d" % (SF2C, FL_H2))
    S("s_add_u32 s30, s30, s28")
    S("s_lshl_b32 s30, s30, %d" % FS)
    S("s_add_u32 s%d, s30, %d" % (SFP, FL_HH))
    S("s_lshl_b32 s30, s25, 1")
    S("s_lshr_b32 s31, s3, 1")
    S("s_add_u32 s30, s30, s31")
    S("s_lshl_b32 s30, s30, 1")
    S("s_add_u32 s30, s30, s24")
    S("s_lshl_b32 s30, s30, %d" % (4 + FS))
    S("s_add_u32 s%d, s30, %d" % (SFC, FL_HH))
    S("s_lshl_b32 s30, s25, 2")
    S("s_add_u32 s30, s30, s3")
    S("s_lshl_b32 s30, s30, %d" % (4 + FS))
    S("s_add_u32 s%d, s30, %d" % (SFOC, FL_O))
    S("s_lshl_b32 s31, s26, %d" % FS)
    S("s_add_u32 s30, s30, s31")
    S("s_add_u32 s%d, s30, %d" % (SF2P, FL_H2))
    S("v_and_b32 v%d, 31, v%d" % (VFB, VL))
    S("v_lshlrev_b32 v%d, %d, v%d" % (VFB, FS, VFB))
    S("v_and_b32 v%d, %d, v%d" % (VFA, 15 << FS, VFB))
    S("s_lshl_b32 s30, s25, 14")
    S("s_lshl_b32 s31, s3, 8")
    S("s_add_u32 s30, s30, s31")
    S("s_add_u32 s%d, s30, %d" % (SSR, WS_STAT))
    S("s_lshl_b32 s31, s26, 10")
    S("s_add_u32 s%d, s%d, s31" % (SSW, SSR))
    S("s_lshl_b32 s30, s2, 2")
    S("s_add_u32 s30, s30, s3")
    S("s_lshl_b32 s22, s30, 7")
    S("s_xor_b32 s31, s30, 4")
    S("s_lshl_b32 s30, s30, 12")
    S("s_lshl_b32 s31, s31, 12")
    S("s_add_u32 s%d, s30, %d" % (SIN, WS_XCH))
    S("s_add_u32 s%d, s31, %d" % (SOUTB, WS_XCH))
    S("s_lshl_b32 s30, s26, 18")
    S("s_add_u32 s%d, s30, %d" % (SH2, WS_H2))
    S("s_add_u32 s%d, s30, %d" % (SH2B, WS_H2 + KBS))
    S("s_mov_b32 s%d, 0x8000" % S8K)
    S("s_mov_b32 s%d, 0x%x" % (SNL, NLOG2E))
    S("v_and_b32 v%d, 15, v%d" % (T, VL))
    S("v_lshlrev_b32 v%d, 11, v%d" % (VX, T))
    S("v_bfe_u32 v%d, v%d, 4, 1" % (T + 2, VL))
    S("v_lshl_add_u32 v%d, v%d, 5, v%d" % (VX, T + 2, VX))
    S("v_lshrrev_b32 v%d, 5, v%d" % (T + 2, VL))
    S("v_lshl_add_u32 v%d, v%d, 4, v%d" % (VX, T + 2, VX))
    S("s_lshl_b32 s30, s25, 18")
    S("s_lshl_b32 s31, s3, 16")
    S("s_add_u32 s30, s30, s31")
    S("s_lshl_b32 s31, s26, 7")
    S("s_add_u32 s30, s30, s31")
    S("v_add_u32 v%d, s30, v%d" % (VX, VX))
    S("v_lshrrev_b32 v%d, 4, v%d" % (T + 1, VL))
    S("v_lshlrev_b32 v%d, 4, v%d" % (VVEC, T + 1))
    S("s_bitcmp1_b32 s3, 0")
    S("s_cselect_b32 s%d, s%d, s%d" % (ST, SU, SG))
    S("s_cselect_b32 s%d, s%d, s%d" % (ST + 1, SU + 1, SG + 1))
    srd_fin(S, ST, WF_BYTES)
    S("s_lshr_b32 s30, s2, 6")
    S("s_lshl_b32 s30, s30, 5")
    S("s_and_b32 s31, s2, 31")
    S("s_add_u32 s30, s30, s31")
    S("s_lshl_b32 s30, s30, 1")
    S("s_lshr_b32 s31, s3, 1")
    S("s_add_u32 s30, s30, s31")
    S("s_lshl_b32 s30, s30, 11")
    S("s_add_u32 s31, s28, 1")
    S("s_bitcmp1_b32 s31, 1")
    S("s_cselect_b32 s30, 0x%x, s30" % OOB)
    S("v_lshrrev_b32 v%d, 2, v%d" % (VTA, VL))
    S("v_lshlrev_b32 v%d, 7, v%d" % (VTA, VTA))
    S("v_add_u32 v%d, s30, v%d" % (VTA, VTA))
    S("s_movk_i32 s30, %d" % MODP)
    S("v_mul_u32_u24 v%d, s30, v%d" % (VM, T + 1))
    S("v_lshl_add_u32 v%d, v%d, 4, v%d" % (VM, T, VM))
    S("s_lshl_b32 s30, s26, 8")
    S("s_lshl_b32 s31, s3, 12")
    S("s_add_u32 s30, s30, s31")
    S("s_add_u32 s%d, s30, %d" % (SMS, WS_MOD + 8192))
    S("v_lshlrev_b32 v%d, 4, v%d" % (VST, T))
    S("s_lshl_b32 s30, s3, 8")
    S("v_add_u32 v%d, s30, v%d" % (VST, VST))
    S("v_lshlrev_b32 v%d, 3, v%d" % (VS1, VL))
    S("v_lshlrev_b32 v%d, 12, v%d" % (VS2, T + 1))
    S("v_lshl_add_u32 v%d, v%d, 3, v%d" % (VS2, T, VS2))
    S("v_cmp_gt_u32 s[34:35], 16, v%d" % VL)
    S("s_cmp_eq_u32 s3, 2")
    S("s_cselect_b32 s%d, 1.0, 0" % SCB)
    S("v_and_b32 v%d, 14, v%d" % (T + 2, VL))
    S("v_lshlrev_b32 v%d, 2, v%d" % (T + 1, T + 1))
    S("v_cmp_le_u32 s[%d:%d], v%d, v%d" % (SMK, SMK + 1, T + 1, T + 2))
    S("v_add_u32 v%d, 2, v%d" % (T + 1, T + 1))
    S("v_cmp_le_u32 s[%d:%d], v%d, v%d" % (SMK + 2, SMK + 3, T + 1, T + 2))
    S("v_and_b32 v%d, 1, v%d" % (T + 2, VL))
    S("v_cmp_eq_u32 s[%d:%d], 1, v%d" % (SMK + 4, SMK + 5, T + 2))
    S("v_lshlrev_b32 v%d, 4, v%d" % (BP + 2, T + 2))
    S("s_cmp_eq_u32 s33, 0")
    S("s_cselect_b32 s33, 0x%x, 0" % f32bits(-1e30))
    S("v_mov_b32 v%d, s33" % T)
    for q_ in range(2):
        S("v_cndmask_b32_e64 v%d, v%d, 0, s[%d:%d]" % (BP + q_, T, SMK + 2 * q_, SMK + 2 * q_ + 1))
    S("s_add_u32 s23, s22, 60")
    S("s_add_u32 s36, s23, s%d" % SWO)
    S("s_addc_u32 s37, s%d, 0" % (SWO + 1))
    mark("setup", True)
    S("s_bitcmp1_b32 s2, 3")
    S("s_cbranch_scc1 %s" % lrole2)

    S("v_add_u32 v%d, 0x%x, v%d" % (VG, GPG, VDG))
    S("v_mov_b32 v7, 0xff")
    S("s_waitcnt lgkmcnt(0)")
    S("s_barrier")
    for i in range(8):
        S("ds_read_b128 %s, v%d offset:%d" % (vr(SIL + 4 * i, 4), VVEC, SILT + i * 64))
    S("s_waitcnt vmcnt(%d)" % nge)
    mark("gland", True)
    S("s_barrier")
    for i in range(8):
        for hf in range(2):
            S("ds_read_b64_tr_b16 %s, v%d offset:%d" % (vr(GW + 4 * i + 2 * hf, 2), VG, i * 4096 + hf * 2048))
    for i in range(8):
        S("s_waitcnt lgkmcnt(%d)" % (14 - 2 * i))
        S(mfma(vr(GD, 4), vr(GW + 4 * i, 4), vr(SIL + 4 * i, 4), "0" if i == 0 else None))
    for e in range(4):
        S("v_bfi_b32 v%d, v7, s%d, v%d" % (GD + e, TB0 + e, GD + e))
    S("buffer_store_dwordx4 %s, v6, %s, s66 offen sc1" % (vr(GD, 4), sq(SW)))
    mark("gpub", True)
    if not P["CT0"]:
        S.emit(code_touch(S, 8, JUNK))
    wq_touch("Gl")
    for g in pre[:N0G]:
        S.emit(g)
    wq_touch("Gz")
    if P["N0"] > N0G:
        S("s_barrier")
        for g in pre[N0G:]:
            S.emit(g)
    mark("gp2", True)
    S("s_branch %s" % join2)

    S.label(lrole2)
    nle = nge
    for g in pre[:P["N0L"]]:
        S.emit(g)
    S("s_lshl_b32 s33, s3, 11")
    S("v_lshlrev_b32 v%d, 1, v%d" % (VD, VD))
    S("v_add_u32 v%d, s33, v%d" % (VD, VD))
    S("v_add_u32 v3, s33, v%d" % VT16)
    S("v_lshrrev_b32 v%d, 4, v%d" % (VMG, VL))
    S("v_lshlrev_b32 v%d, 10, v%d" % (VMG, VMG))
    S("v_and_b32 v%d, 15, v%d" % (T2, VL))
    S("v_lshl_add_u32 v%d, v%d, 4, v%d" % (VMG, T2, VMG))
    S("s_lshl_b32 s33, s3, 8")
    S("v_add_u32 v%d, s33, v%d" % (VMG, VMG))
    S("v_add_u32 v%d, 4096, v%d" % (VMG + 1, VMG))
    S("v_mul_u32_u24 v6, 48, v%d" % T2)
    S("s_lshl_b32 s33, s3, 3")
    S("v_add_u32 v7, s33, v6")
    for q in range(8):
        S("s_waitcnt vmcnt(%d)" % (7 - q + P["N0L"] + nle))
        for i in range(4 * q, 4 * q + 4):
            S("v_lshlrev_b32 v%d, 16, v%d" % (XF + 2 * i, XD + i))
            S("v_and_b32 v%d, 0xffff0000, v%d" % (XF + 2 * i + 1, XD + i))
        for h in range(2):
            x0, x1 = vr(XF + 8 * q + 4 * h, 2), vr(XF + 8 * q + 4 * h + 2, 2)
            if q == 0:
                S("v_pk_add_f32 %s, %s, %s" % (vr(T2 + 2 * h, 2), x0, x1))
            else:
                S("v_pk_add_f32 %s, %s, %s" % (vr(T2, 2), vr(T2, 2), x0))
                S("v_pk_add_f32 %s, %s, %s" % (vr(T2 + 2, 2), vr(T2 + 2, 2), x1))
    mark("xland", True)
    for g in pre[P["N0L"]:P["N0L"] + P["N0M"]]:
        S.emit(g)
    S("v_pk_add_f32 %s, %s, %s" % (vr(T2, 2), vr(T2, 2), vr(T2 + 2, 2)))
    S("v_add_f32 v%d, v%d, v%d" % (T2, T2, T2 + 1))
    S.emit(cap(xsum, [T2], [T2 + 1], (16, 32)))
    S("v_mul_f32 v%d, 0x%x, v%d" % (MD, f32bits(1.0 / 256), T2))
    S("v_mov_b32 v%d, v%d" % (MD + 1, MD))
    for i in range(32):
        t = T2 + 2 * (i & 1)
        d = vr(MD + 4 + 2 * (i & 1), 2)
        S("v_pk_add_f32 %s, %s, %s neg_lo:[0,1] neg_hi:[0,1]" % (d, vr(XF + 2 * i, 2), vr(MD, 2)))
        if i < 2:
            S("v_pk_mul_f32 %s, %s, %s" % (vr(t, 2), d, d))
        else:
            S("v_pk_fma_f32 %s, %s, %s, %s" % (vr(t, 2), d, d, vr(t, 2)))
    S("v_pk_add_f32 %s, %s, %s" % (vr(T2, 2), vr(T2, 2), vr(T2 + 2, 2)))
    S("v_add_f32 v%d, v%d, v%d" % (MD + 1, T2, T2 + 1))
    S.emit(cap(xsum, [MD + 1], [T2 + 1], (16, 32)))
    S("ds_write_b64 v7, %s offset:%d" % (vr(MD, 2), X0))
    S("s_waitcnt lgkmcnt(0)")
    S("s_barrier")
    G = ML
    for q in range(2):
        S("ds_read_b128 %s, v6 offset:%d" % (vr(G + 4 * q, 4), X0 + 16 * q))
    S("s_waitcnt lgkmcnt(0)")
    S("v_pk_add_f32 %s, %s, %s" % (vr(T2, 2), vr(G, 2), vr(G + 2, 2)))
    S("v_pk_add_f32 %s, %s, %s" % (vr(T2 + 2, 2), vr(G + 4, 2), vr(G + 6, 2)))
    S("v_pk_add_f32 %s, %s, %s" % (vr(T2, 2), vr(T2, 2), vr(T2 + 2, 2)))
    S("v_mul_f32 v%d, 0x3e800000, v%d" % (MD, T2))
    for q in range(4):
        S("v_sub_f32 v%d, v%d, v%d" % (G + 2 * q, G + 2 * q, MD))
    S("v_mul_f32 v%d, v%d, v%d" % (T2 + 2, G, G))
    for q in range(1, 4):
        S("v_fmac_f32 v%d, v%d, v%d" % (T2 + 2, G + 2 * q, G + 2 * q))
    S("v_mul_f32 v%d, 0x%x, v%d" % (MD + 4, f32bits(1.0 / 1024), T2 + 1))
    S("v_fmac_f32 v%d, 0x3e800000, v%d" % (MD + 4, T2 + 2))
    modld = []
    for p_ in range(4):
        modld.append("s_mov_b32 s30, %d" % (WS_MOD + p_ * MODP))
        for v_ in range(2):
            modld.append("buffer_load_dwordx4 %s, v%d, %s, s30 offen sc1" % (vr(ML + (v_ * 4 + p_) * 4, 4), VMG + v_, sq(SW)))
    S.emit(modld)
    S.emit(cap(ln_finish, MD))
    for i in range(32):
        S("v_pk_add_f32 %s, %s, %s neg_lo:[0,1] neg_hi:[0,1]" % (vr(XF + 2 * i, 2), vr(XF + 2 * i, 2), vr(MD, 2)))
    for i in range(32):
        S("v_pk_mul_f32 %s, %s, %s" % (vr(XF + 2 * i, 2), vr(XF + 2 * i, 2), vr(MD + 4, 2)))
    mark("lnorm", True)
    lp, ok, chk = S.uid("mod"), S.uid("mok"), S.uid("mchk")
    S("s_mov_b32 s33, %d" % SPIN)
    S("s_branch %s" % chk)
    S.label(lp)
    S.emit(modld)
    S.label(chk)
    S("s_waitcnt vmcnt(0)")
    S.emit(tag_cmp([ML + 4 * q for q in range(8)], T2))
    S("s_cmp_eq_u64 %s, 0" % CMP)
    S("s_cbranch_scc1 %s" % ok)
    S("s_sub_u32 s33, s33, 1")
    S("s_cmp_lg_u32 s33, 0")
    S("s_cbranch_scc1 %s" % lp)
    S.label(ok)
    mark("lmod", True)
    for v_ in range(2):
        b_ = ML + v_ * 16
        for e in (0, 2):
            S("v_pk_add_f32 %s, %s, %s" % (vr(b_ + e, 2), vr(b_ + e, 2), vr(b_ + 4 + e, 2)))
            S("v_pk_add_f32 %s, %s, %s" % (vr(b_ + 8 + e, 2), vr(b_ + 8 + e, 2), vr(b_ + 12 + e, 2)))
    for v_ in range(2):
        b_ = ML + v_ * 16
        for e in (0, 2):
            S("v_pk_add_f32 %s, %s, %s" % (vr(b_ + e, 2), vr(b_ + e, 2), vr(b_ + 8 + e, 2)))
    for v_ in range(2):
        for e in (0, 2):
            S.emit(cap(round_bf16_pair, ML + v_ * 16 + e, ML + v_ * 16 + e + 1, ML + v_ * 16 + 4 + e))
    S("ds_write_b128 v3, %s" % vr(ML, 4))
    for e in range(4):
        S("v_add_f32 v%d, 1.0, v%d" % (ML + 16 + e, ML + 16 + e))
    for e in (0, 2):
        S.emit(cap(round_bf16_pair, ML + 16 + e, ML + 16 + e + 1, ML + 20 + e))
    S("ds_write_b128 v3, %s offset:1024" % vr(ML + 16, 4))
    TBF = [144, 160, 128]

    def tbl(q):
        for vv in range(2):
            for h in range(2):
                S("ds_read_b128 %s, v%d offset:%d" % (vr(TBF[q % 3] + 8 * vv + 4 * h, 4), VD, vv * 1024 + q * 128 + h * 16), dtag=("T", q))
    tbl(0)
    tbl(1)
    for q in range(8):
        if q + 2 < 8:
            tbl(q + 2)
        S.wait(d={("T", q)}, lg=15)
        tb_ = TBF[q % 3]
        for e in range(4):
            x = vr(XF + 8 * q + 2 * e, 2)
            S("v_pk_fma_f32 %s, %s, %s, %s" % (x, x, vr(tb_ + 8 + 2 * e, 2), vr(tb_ + 2 * e, 2)))
        for e in range(4):
            S("v_cvt_pk_bf16_f32 v%d, v%d, v%d" % (XD + 4 * q + e, XF + 8 * q + 2 * e, XF + 8 * q + 2 * e + 1))
        S("s_add_u32 s33, s%d, %d" % (R1, (8 * (q >> 1) + (q & 1)) * KBS))
        S("v_permlane16_swap_b32 v%d, v%d" % (XD + 4 * q, XD + 4 * q + 2))
        S("v_permlane16_swap_b32 v%d, v%d" % (XD + 4 * q + 1, XD + 4 * q + 3))
        S("buffer_store_dwordx4 %s, v%d, %s, s33 offen sc1" % (vr(XD + 4 * q, 4), VT16, sq(SW)))
    mark("lst", True)
    S("s_waitcnt vmcnt(6)")
    S.emit(flag_st(R0, 0))
    mark("lfl1", True)
    S("s_waitcnt vmcnt(1)")
    S.emit(flag_st(R0, 1))
    for g in pre[P["N0L"] + P["N0M"]:]:
        S.emit(g)
    S.label(join2)
    S("s_mov_b64 vcc, 0")
    if P["WALK"] & 1:
        walk(S, 0)
    if P["WALK"] & 4:
        walk(S, 1)
    S("s_branch L_hot")
    S(".p2align 12")
    S.label("L_hot")
    if P["WALK"] & 1:
        S("; @range 0")
    mark("join", True)
    h1ld = ["buffer_load_dword v%d, v%d, %s, 0 offen sc1" % (VP, VFL, sq(SW))]
    spin_here(h1ld + ["s_waitcnt vmcnt(0)"], flag_cmp(0))
    mark("h1a", True)
    S.events["h1a"] = 0
    S.pump(10, "A")
    S.barrier()
    S.reads()

    s_poll2 = S.add(Stream(check_items(h1ld, flag_cmp(1), 0, P["CH1"], "h1b", lat=P["CH1"] - 2)
                 + pollchk(SFOC, VFA, I3 + P["COA"], "chkOA", 0, {"flagOA"})
                 + pollchk(SFOC, VFA, I3 + P["COB"], "chkOB", 1, {"flagOB"}, lat=30), "poll2", budget=lambda i: 8))
    PZ = HP
    st = items(["v_mov_b32 v%d, -1" % PZ, "v_lshlrev_b32 v%d, 2, v%d" % (PZ + 4, VL)], at=460)
    st.append(Item("buffer_store_dword v%d, v%d, %s, s%d offen sc1" % (PZ, PZ + 4, sq(SW), SEXP), vtag="SOA", sets="poison"))
    S.add(Stream(st, "poison", rate=lambda i: 2))

    def att(hd):
        QP, KP, VV = HF, HF + 8, HF + 20
        SC_, TT = hd * 48, hd * 48 + 16
        HA = 96 + hd * 8
        pk = lambda dst, src: ["v_cvt_pk_bf16_f32 v%d, v%d, v%d" % (dst, src, src + 1), "v_cvt_pk_bf16_f32 v%d, v%d, v%d" % (dst + 1, src + 2, src + 3)]
        M = lambda q: "s[%d:%d]" % (SMK + 2 * q, SMK + 2 * q + 1)
        D = ("X", hd)
        r = [Item("ds_write_b128 v%d, %s offset:%d" % (VXO, vr(HA + 4 * q, 4), q * 1024), at=hend[hd], dtag=(D, 0), after={"poison"}) for q in range(2)]
        r.append(Item([], needd={(D, 0)}))
        r += [Item("ds_read_b128 %s, v%d offset:%d" % (vr(HP + 4 * q, 4), VXW, q * 1024), dtag=(D, 1), bar=(q == 0)) for q in range(2)]
        r += items(["v_add_f32 v%d, v%d, v%d" % (HP + e, HP + e, HA + e) for e in range(8)], needd={(D, 1)})
        r += items(pk(HK, HP) + pk(HK + 2, HP + 4))
        r += [Item("ds_write_b64 v%d, %s offset:%d" % (VX0, vr(HK + 2 * q, 2), q * 1024), dtag=(D, 2)) for q in range(2)]
        r += items(pk(KP + 8, acc2(hd, 1, 1, 0)) + pk(KP + 10, acc2(hd, 1, 1, 1)), at=end2[(hd, 1)])
        r.append(Item("ds_write_b128 v%d, %s" % (VXW, vr(KP + 8, 4)), dtag=(D, 2)))
        r += items(pk(KP + 4, acc2(hd, 0, 1, 0)) + pk(KP + 6, acc2(hd, 0, 1, 1)))
        r += items(pk(VV + 4, acc2(hd, 1, 2, 0)) + pk(VV + 10, acc2(hd, 1, 2, 1)), at=end2[(hd, 2)])
        r += [Item("ds_write_b64 v%d, %s offset:%d" % (VXW, vr(VV + db * 6 + 4, 2), 1024 + db * 8), dtag=(D, 2)) for db in range(2)]
        r += items(pk(VV + 2, acc2(hd, 0, 2, 0)) + pk(VV + 8, acc2(hd, 0, 2, 1)))
        r += items(pk(QP + 4, acc2(hd, 1, 0, 0)) + pk(QP + 6, acc2(hd, 1, 0, 1)) + pk(QP, acc2(hd, 0, 0, 0)) + pk(QP + 2, acc2(hd, 0, 0, 1)), at=end2[(hd, 0)])
        r.append(Item([], needd={(D, 2)}, sets="pack%d" % hd))
        r.append(Item("ds_read_b128 %s, v%d" % (vr(KP, 4), VXR), dtag=(D, 3), bar=True))
        r += [Item("ds_read_b64 %s, v%d offset:%d" % (vr(VV + db * 6, 2), VXR, 1024 + db * 8), dtag=(D, 3)) for db in range(2)]
        units = [1, 0]
        for ui, tb in enumerate(units):
            q = vr(QP + tb * 4, 4)
            r.append(Item(mfma(vr(SC_ + ui * 8 + 4, 4), vr(KP + (tb + 1) * 4, 4), q, "0")))
            r.append(Item(mfma(vr(SC_ + ui * 8, 4), vr(KP + tb * 4, 4), q, "0"), needd={(D, 3)} if tb == 0 else ()))
        U = range(2)
        v = ["s_mov_b32 s33, 0x%x" % f32bits(32 ** -0.5 * 1.4426950408889634)]
        for ui in U:
            v += ["v_cndmask_b32_e64 v%d, v%d, v%d, %s" % (SC_ + ui * 8 + 2 * h, SC_ + ui * 8 + 2 * h, SC_ + ui * 8 + 2 * h + 1, M(2)) for h in range(4)]
        for ui in U:
            v += ["v_cndmask_b32_e64 v%d, v%d, v%d, %s" % (SC_ + ui * 8 + q_, SC_ + ui * 8 + 2 * q_, SC_ + ui * 8 + 4 + 2 * q_, M(q_)) for q_ in range(2)]
        r += items(v[1:])
        r.append(Item([v[0]] + ["v_mul_f32 v%d, s33, v%d" % (SC_ + q_, SC_ + q_) for q_ in range(2)]
                      + ["v_fma_f32 v%d, v%d, s33, v%d" % (SC_ + 8 + q_, SC_ + 8 + q_, BP + q_) for q_ in range(2)]))
        v = ["v_max_f32 v%d, v%d, v%d" % (TT + ui, SC_ + ui * 8, SC_ + ui * 8 + 1) for ui in U]
        v += cap(xred, [TT + i for i in U], [TT + 4 + i for i in U], (16, 32), "v_max_f32")
        v += ["v_sub_f32 v%d, v%d, v%d" % (SC_ + ui * 8 + q_, SC_ + ui * 8 + q_, TT + ui) for ui in U for q_ in range(2)]
        v += ["v_exp_f32 v%d, v%d" % (SC_ + ui * 8 + q_, SC_ + ui * 8 + q_) for ui in U for q_ in range(2)]
        v += ["v_add_f32 v%d, v%d, v%d" % (TT + ui, SC_ + ui * 8, SC_ + ui * 8 + 1) for ui in U]
        v += cap(xred, [TT + i for i in U], [TT + 4 + i for i in U], (16, 32), "v_add_f32")
        v += ["v_rcp_f32 v%d, v%d" % (TT + ui, TT + ui) for ui in U]
        v += ["v_mul_f32 v%d, v%d, v%d" % (SC_ + ui * 8 + q_, SC_ + ui * 8 + q_, TT + ui) for ui in U for q_ in range(2)]
        v += ["v_cvt_pk_bf16_f32 v%d, v%d, 0" % (SC_ + ui * 8 + q_, SC_ + ui * 8 + q_) for ui in U for q_ in range(2)]
        v += ["v_lshlrev_b32 v%d, v%d, v%d" % (SC_ + ui * 8 + q_, BP + 2, SC_ + ui * 8 + q_) for ui in U for q_ in range(2)]
        for ui in U:
            for q_ in range(2):
                v.append("v_cndmask_b32_e64 v%d, v%d, 0, %s" % (QP + ui * 4 + q_, SC_ + ui * 8 + q_, M(q_)))
                v.append("v_cndmask_b32_e64 v%d, 0, v%d, %s" % (QP + ui * 4 + 2 + q_, SC_ + ui * 8 + q_, M(q_)))
        for ui, tb in enumerate(units):
            v += [mfma(vr(SC_ + ui * 8 + db * 4, 4), vr(VV + db * 6 + tb * 2, 4), vr(QP + ui * 4, 4), "0") for db in range(2)]
        r += items(v)
        n = "AB"[hd]
        for ui, tb in enumerate(units):
            r += items(["v_cvt_pk_bf16_f32 v%d, v%d, v%d" % (KP + ui * 4 + i, SC_ + ui * 8 + 2 * i, SC_ + ui * 8 + 2 * i + 1) for i in range(4)])
            r.append(Item("buffer_store_dwordx4 %s, v%d, %s, s%d offen offset:%d sc1" % (vr(KP + ui * 4, 4), VAQ, sq(SW), SOA, tb * 1024),
                          vtag="SO" + n, sets="stO" + n if ui else None, pause=P["QUIET" + n] if ui else 0))
        r.append(Item("s_add_u32 s%d, s%d, %d" % (SOA, SOA, 16 * KBS)))
        return r

    s_att = S.add(Stream(att(0) + att(1), "att", rate=lambda i: P["ATR"]))
    st = [Item("ds_read_b128 %s, v%d offset:%d" % (vr(SIL2[i], 4), VVEC, SILT + i * 64), dtag="SIL", after={"pack0"}, sets="sil" if i == 7 else None) for i in range(8)]
    st += items(["v_mov_b32 v%d, 0xff" % VWM2] + ["v_bfi_b32 v%d, v%d, s%d, v%d" % (GD2 + e, VWM2, TB0 + e, GD2 + e) for e in range(4)], at=IP2 + 8)
    st.append(Item("buffer_store_dwordx4 %s, v%d, %s, 0 offen sc1" % (vr(GD2, 4), VGR, sq(SW))))
    for tb in range(2):
        for kb in range(2):
            st.append(Item("buffer_load_dwordx4 %s, v%d, %s, %s offen offset:%d" % (
                vr(32 + (tb * 2 + kb) * 4, 4), VX, sq(SX), "s%d" % S8K if tb else "0", kb * 64), delay=4, vtag="X"))
    S.add(Stream(st, "p2", rate=lambda i: 4))
    fl = []
    for k, n in enumerate(("OA", "OB")):
        f = flag_st(SFOP, k)
        fl += [Item([], after={"st" + n}), Item(f, delay=P["FD_" + n], needv={"S" + n}, sets="flag" + n)]
    for k, n in enumerate("ABCD"):
        f = flag_st(SFP, k)
        fl += [Item([], after={"st" + n}), Item(f, delay=P["FD_" + n], needv={"S" + n}, sets="flag" + n)]
    S.add(Stream(fl, "flag", budget=lambda i: 8))

    def spf(n, at, step, last):
        r = []
        for k in range(n):
            if k and k % 8 == 0:
                r.append(Item(["s_add_u32 s36, s36, 0x100000", "s_addc_u32 s37, s37, 0"]))
            r.append(Item("s_load_dwordx2 s[66:67], s[36:37], 0x%x" % ((k % 8) << 17), at=at, delay=step))
        assert at + n * step <= last, (at + n * step, last)
        return r

    def spf_base(sb, half=False):
        if half:
            return [Item(["s_lshr_b32 s36, s22, 8", "s_lshl_b32 s36, s36, 7", "s_add_u32 s36, s36, 60",
                          "s_add_u32 s36, s36, s%d" % sb, "s_addc_u32 s37, s%d, 0" % (sb + 1)])]
        return [Item(["s_add_u32 s36, s23, s%d" % sb, "s_addc_u32 s37, s%d, 0" % (sb + 1)])]

    NGU = (14 - P["PFN"]) * 8
    st = spf(16, 30, P["SPQ"], I3 - 100) + spf_base(ST, True)
    for k in range(NGU):
        if k and k % 16 == 0:
            st.append(Item(["s_add_u32 s36, s36, 0x100000", "s_addc_u32 s37, s37, 0"]))
        st.append(Item("s_load_dwordx2 s[66:67], s[36:37], 0x%x" % ((k % 16) << 16), delay=P["SPQ"]))
    assert 30 + (16 + NGU) * P["SPQ"] <= I3 - 90, 30 + (16 + NGU) * P["SPQ"] - I3
    st += spf_base(SD) + spf(56, I5 + 4, P["SP5"], I6)
    S.add(Stream(st, "spf", rate=lambda i: 2))

    if P["MARK"] & 2:
        S.add(Stream([Item([], after={"stOA"}, fn=lambda: mark("stOA")), Item([], after={"flagOA"}, fn=lambda: mark("flOA")),
                      Item([], at=I3 + P["COA"] - 4, fn=lambda: mark("bcOA")), Item([], after={"chkOA"}, fn=lambda: mark("ckOA")),
                      Item([], at=I3 + P["FD_OB"] - 3, fn=lambda: mark("bfOB")), Item([], after={"flagOB"}, fn=lambda: mark("flOB")),
                      Item([], at=I3 + P["COB"] - 4, fn=lambda: mark("bcOB")), Item([], after={"chkOB"}, fn=lambda: mark("ckOB"))],
                     "marks", budget=lambda i: 99))

    def p2go():
        assert "sil" in S.events
        S.wait(d={"SIL"})
    hooks = {IP2: p2go}
    if P["MARK"]:
        for g, nm in ((pos2[(0, 16 - TQ)] if TQ else I3 - 208, "q2"), (pos2[(1, 16 - TQ)] if TQ else I3 - 104, "q3"), (I3 + 128, "p3b"),
                      (I5 + 224, "p5s4"), (pos5[(32 - T5, 2)], "p5t"), (I6, "p6"), (I6 + 384, "p6s12"))[:3 if P["MARK"] & 2 else 9]:
            hooks[g] = (lambda nm=nm: mark(nm))
    if P["TR0"] is not None:
        def tr(k):
            if k:
                S("v_writelane_b32 v255, s70, %d" % (k - 1))
            S("s_memtime s[70:71]")
        for k in range(64):
            g = P["TR0"] + k * P["TRS"]
            if g < IE:
                hooks[g] = (lambda k=k: tr(k))
    for s in range(8, 12):
        def swp(s=s):
            tg = ("A", G6 + s)
            assert not any(g.tag == tg for g in S.aq) and not any(t == tg for o, t, p in S.pend)
            S.wait(v={tg})
            for kk in range(2):
                for e in range(2):
                    S("v_swap_b32 v%d, v%d" % (vsing(s, 2 * kk) + 2 + e, vsing(s, 2 * kk + 1) + e))
        g = pos6[(s, 1)] - 3
        while g in hooks:
            g -= 1
        hooks[g] = swp

    S.LGMIN = P["LGMIN"]
    S.run(I3, budget=lambda i: P["BUD2"], vsp=lambda i: P["VSP2"], hooks=hooks, pair=lambda i: True)
    S.LGMIN = 0
    mark("qend")
    S.drain(s_poll2, "chkOA")
    S.drain(s_att, every=P["OEV"], nmax=P["OPRE"], only="A")
    mark("attB")

    RES, GV, SB, S2, XU, E = 32, 64, 96, 144, 160, 80
    mld = ["buffer_load_dwordx4 %s, v%d, %s, s%d offen sc1" % (vr(SB, 4), VM, sq(SW), SMS)]
    st = check_items(mld, tag_cmp([SB], SB + 4), I3 + 100, I3 + 140, "mod2", after={"chkOB"})

    v = cap(xsum, [SB + i for i in range(4)], [SB + 4 + i for i in range(4)], (16, 32))
    v += cap(round_bf16_pair, SB, SB + 1, SB + 4) + cap(round_bf16_pair, SB + 2, SB + 3, SB + 5)
    v += ["v_add_f32 v%d, s%d, v%d" % (SB + i, SCB, SB + i) for i in range(4)]
    v += cap(round_bf16_pair, SB, SB + 1, SB + 4) + cap(round_bf16_pair, SB + 2, SB + 3, SB + 5)
    st += items(v)
    st.append(Item("ds_write_b128 v%d, %s offset:%d" % (VST, vr(SB, 4), VEC), dtag="V"))
    st.append(Item([], delay=6, needd={"V"}))
    first = True
    for vv, dst in enumerate((GV, SB, S2)):
        for jj in range(4):
            st.append(Item("ds_read_b128 %s, v%d offset:%d" % (vr(dst + jj * 4, 4), VVEC, VEC + vv * 256 + jj * 64), dtag="V2", bar=first, delay=1))
            first = False
    s_mod = S.add(Stream(st, "mod", rate=lambda i: 6))
    st = []
    v = []
    for q in range(4):
        v += ["v_permlane16_swap_b32 v%d, v%d" % (RES + 4 * q, RES + 4 * q + 2), "v_permlane16_swap_b32 v%d, v%d" % (RES + 4 * q + 1, RES + 4 * q + 3)]
    for i in range(16):
        v += ["v_lshlrev_b32 v%d, 16, v%d" % (XU + 2 * i, RES + i), "v_and_b32 v%d, 0xffff0000, v%d" % (XU + 2 * i + 1, RES + i)]
    st += items(v, at=I3 + 50, needv={"X"})
    s_x = S.add(Stream(st, "x", rate=lambda i: 4))
    S.run(I5, budget=lambda i: P["BUD3"], vsp=lambda i: P["VSP3"], hooks=hooks, pair=lambda i: True)
    S.drain(s_mod)
    S.drain(s_x)
    S.wait(d={"V2"}, lg=0)
    mark("p3end")
    ACC = ACC3
    for i in range(16):
        S("v_pk_fma_f32 %s, %s, %s, %s" % (vr(XU + 2 * i, 2), vr(ACC + 2 * i, 2), vr(GV + (2 * i) % 16, 2), vr(XU + 2 * i, 2)))
    for i in range(8):
        for tb in range(2):
            x = vr(XU + tb * 16 + 2 * i, 2)
            if i == 0:
                S("v_pk_mul_f32 %s, %s, %s" % (vr(E + 4 + 2 * tb, 2), x, x))
            else:
                S("v_pk_fma_f32 %s, %s, %s, %s" % (vr(E + 4 + 2 * tb, 2), x, x, vr(E + 4 + 2 * tb, 2)))
                S("v_pk_add_f32 %s, %s, %s" % (vr(E + 2 * tb, 2), vr(E + 2 * tb, 2) if i > 1 else vr(XU + tb * 16, 2), x))
    for tb in range(2):
        S("v_add_f32 v%d, v%d, v%d" % (E + 2 * tb, E + 2 * tb, E + 2 * tb + 1))
        S("v_add_f32 v%d, v%d, v%d" % (E + 2 * tb + 1, E + 4 + 2 * tb, E + 5 + 2 * tb))
    S.emit(cap(xsum, [E, E + 1, E + 2, E + 3], [E + 4, E + 5, E + 6, E + 7], (16, 32)))
    S("v_cndmask_b32_e64 v%d, v%d, v%d, s[34:35]" % (E + 4, E + 2, E))
    S("v_cndmask_b32_e64 v%d, v%d, v%d, s[34:35]" % (E + 5, E + 3, E + 1))
    S("v_and_b32 v%d, -2, v%d" % (E + 4, E + 4))
    S("v_and_b32 v%d, 0x7fffffff, v%d" % (E + 5, E + 5))
    S("s_mov_b32 exec_hi, 0")
    S("buffer_store_dwordx2 %s, v%d, %s, s%d offen sc1" % (vr(E + 4, 2), VS1, sq(SW), SSW))
    S("s_mov_b64 exec, -1")
    S.pump(P["W5N"], "W")
    for i in range(16):
        S("v_cvt_pk_bf16_f32 v%d, v%d, v%d" % (RES + i, XU + 2 * i, XU + 2 * i + 1))
    for i in range(16):
        S("v_accvgpr_write_b32 a%d, v%d" % (AX1 + i, RES + i))
        S("v_lshlrev_b32 v%d, 16, v%d" % (ACC + 2 * i, RES + i))
        S("v_and_b32 v%d, 0xffff0000, v%d" % (ACC + 2 * i + 1, RES + i))
    if P["WALK"] & 2:
        walk(S, 1)
    S("; @range %d" % (1 if P["WALK"] & 6 else -1))
    G = 112
    ld = ["buffer_load_dwordx2 %s, v%d, %s, s%d offen offset:%d sc1" % (vr(G + (tb * 4 + i) * 2, 2), VS2, sq(SW), SSR, i * 1024 + tb * 128)
          for tb in range(2) for i in range(4)]
    cm = ["v_max3_u32 v%d, v%d, v%d, v%d" % (E + 8, G, G + 1, G + 2)]
    cm += ["v_max3_u32 v%d, v%d, v%d, v%d" % (E + 8, E + 8, G + i, G + i + 1) for i in range(3, 15, 2)]
    cm += ["v_max_u32 v%d, v%d, v%d" % (E + 8, E + 8, G + 15), "v_cmp_eq_u32 %s, -1, v%d" % (CMP, E + 8)]
    spin_here(ld + ["s_waitcnt vmcnt(0)"], cm)
    mark("stats")
    if P["DBG"]:
        S("s_add_u32 s30, s%d, %d" % (SH2, WS_X1 - WS_H2))
        S("s_add_u32 s31, s%d, %d" % (SH2B, WS_X1 - WS_H2))
        for tb in range(2):
            for kb in range(2):
                S("buffer_store_dwordx4 %s, v%d, %s, s%d offen offset:%d" % (vr(RES + (tb * 2 + kb) * 4, 4), VA3, sq(SW), 30 + kb, tb * 1024))
    for tb in range(2):
        g = G + tb * 8
        S("v_pk_add_f32 %s, %s, %s" % (vr(E + 2 * tb, 2), vr(g, 2), vr(g + 2, 2)))
        S("v_pk_add_f32 %s, %s, %s" % (vr(E + 4 + 2 * tb, 2), vr(g + 4, 2), vr(g + 6, 2)))
    for tb in range(2):
        S("v_pk_add_f32 %s, %s, %s" % (vr(E + 2 * tb, 2), vr(E + 2 * tb, 2), vr(E + 4 + 2 * tb, 2)))
    S.emit(cap(xsum, [E, E + 1, E + 2, E + 3], [E + 4, E + 5, E + 6, E + 7], (16, 32)))
    M = [XU, XU + 12]
    for tb in range(2):
        S("v_mul_f32 v%d, 0x%x, v%d" % (M[tb], f32bits(1.0 / 1024), E + 2 * tb))
        S("v_mul_f32 v%d, 0x%x, v%d" % (M[tb] + 4, f32bits(1.0 / 1024), E + 2 * tb + 1))
    for tb in range(2):
        S("v_fma_f32 v%d, -v%d, v%d, v%d" % (M[tb] + 4, M[tb], M[tb], M[tb] + 4))
    for tb in range(2):
        S("v_max_f32 v%d, 0, v%d" % (M[tb] + 4, M[tb] + 4))
    for x, y in zip(cap(ln_finish, M[0]), cap(ln_finish, M[1])):
        S(x)
        S(y)
    H = G
    for tb in range(2):
        for i in range(8):
            x = vr(ACC + tb * 16 + 2 * i, 2)
            S("v_pk_add_f32 %s, %s, %s neg_lo:[0,1] neg_hi:[0,1]" % (x, x, vr(M[tb], 2)))
        for i in range(8):
            x = vr(ACC + tb * 16 + 2 * i, 2)
            S("v_pk_mul_f32 %s, %s, %s" % (x, x, vr(M[tb] + 4, 2)))
        for i in range(8):
            x = vr(ACC + tb * 16 + 2 * i, 2)
            S("v_pk_fma_f32 %s, %s, %s, %s" % (x, x, vr(S2 + 2 * i, 2), vr(SB + 2 * i, 2)))
        for i in range(8):
            S("v_cvt_pk_bf16_f32 v%d, v%d, v%d" % (H + tb * 8 + i, ACC + tb * 16 + 2 * i, ACC + tb * 16 + 2 * i + 1))
        for kb in range(2):
            S("buffer_store_dwordx4 %s, v%d, %s, s%d offen offset:%d sc1" % (vr(H + tb * 8 + kb * 4, 4), VA3, sq(SW), SH2 + kb, tb * 1024))
    S("v_and_b32 v%d, %d, v%d" % (E, (16 | (NF1 - 1)) << FS, VFB))
    S.lat, lat = 0, S.lat
    S.barrier()
    S.lat = lat
    S.reads()
    S("s_waitcnt vmcnt(0)")
    S.emit(flag_st(SF2P, 0))
    mark("h2st")
    spin_here(["buffer_load_dword v%d, v%d, %s, s%d offen sc1" % (VP, E, sq(SW), SF2C), "s_waitcnt vmcnt(0)"], flag_cmp(0))
    mark("h2a")
    S.events["h2a"] = S.i
    S.pump(8, "A")

    st = pollchk(SF2C, VFB, I5 + 40, "h2b", 0)
    st += items(["v_lshrrev_b32 v%d, 4, v%d" % (VFB, VL), "v_lshl_add_u32 v%d, v%d, %d, v%d" % (VFB, VFB, 6 + FS, VFA),
                 "s_lshl_b32 s32, s3, %d" % (8 + FS), "s_add_u32 s32, s32, 0x%x" % FL_O], at=I5 + 300)
    st.append(Item(["s_cmp_eq_u32 s2, 0", "s_cselect_b32 s32, s32, s%d" % SFOP, "s_cselect_b32 s31, -1, 0"]))
    st += items(["v_and_b32 v%d, s31, v%d" % (VFB, VFB)])
    st += pollchk(32, VFB, I5 + 380, "seen", 0)
    st.append(Item(["s_or_b32 s32, s2, s3", "s_cselect_b32 s32, 0x%x, 0x%x" % (OOB, FL_EPOCH)] if False else
                   ["s_or_b32 s32, s2, s3", "s_cselect_b32 s32, 0x%x, 0" % OOB, "s_add_u32 s32, s32, 0x%x" % FL_EPOCH]))
    st.append(Item("buffer_store_dword v%d, v%d, %s, s32 offen sc1" % (VTAG, VF0, sq(SW)), bar=True))
    st += items(["v_add_u32 v%d, s%d, v%d" % (VFA, SFC, VFA), "s_xor_b32 s32, s%d, 0x%x" % (SFP, 512 << FS), "v_mov_b32 v%d, s32" % VFB,
                 "v_cndmask_b32_e64 v%d, v%d, v%d, s[34:35]" % (VFA, VFB, VFA), "s_mov_b32 s%d, 0" % SFC])
    st += items(["v_accvgpr_write_b32 a%d, -1" % (252 + e) for e in range(4)])
    for i in range(4):
        st.append(Item("buffer_store_dwordx4 a[252:255], v%d, %s, s%d offen offset:%d sc1" % (VT16, sq(SW), SIN, i * 1024), delay=60))
    ct = code_touch(S, VP, VW3)
    st.append(Item(ct, at=I5 + 1000))
    for k, g_ in enumerate("ABCD"):
        st += pollchk(SFC, VFA, I6 + P["C" + g_], "chk" + g_, k, {"flag" + g_})
    S.add(Stream(st, "poll", budget=lambda i: 8))

    def glu(g, u, n, d=None):
        r = ["v_mul_f32 v%d, s%d, v%d" % (g + e, SNL, g + e) for e in range(n)]
        r += ["v_exp_f32 v%d, v%d" % (g + e, g + e) for e in range(n)]
        r += ["v_add_f32 v%d, 1.0, v%d" % (g + e, g + e) for e in range(n)]
        r += ["v_rcp_f32 v%d, v%d" % (g + e, g + e) for e in range(n)]
        r += ["v_mul_f32 v%d, v%d, v%d" % (g + e, g + e, u + e) for e in range(n)]
        r += ["v_cvt_pk_bf16_f32 v%d, v%d, v%d" % ((g if d is None else d) + e, g + 2 * e, g + 2 * e + 1) for e in range(n // 2)]
        return r

    doneA = end5[(1, 2, 1)]
    st = []
    for tb in range(4):
        g = acc5(tb, 0, 2, 0)
        st += items(glu(g, acc5(tb, 1, 2, 0), 8), at=doneA)
        st.append(Item("buffer_store_dwordx4 %s, v%d, %s, s%d offen offset:%d sc1" % (vr(g, 4), VA5, sq(SW), SHA, tb * 1024), vtag="SA",
                       sets="stA" if tb == 3 else None))
    for tb in range(4):
        g, g0 = acc5(tb, 0, 2, 2), acc5(tb & 2, 0, 2, 2)
        st += items(glu(g, acc5(tb, 1, 2, 2), 4, g0 + 2 * (tb & 1)), at=end5[(1, 2, 2)])
        if tb & 1:
            st.append(Item("buffer_store_dwordx4 %s, v%d, %s, s%d offen offset:%d sc1" % (vr(g0, 4), VA5, sq(SW), SHB, (tb & 2) * 1024),
                           vtag="SB", sets="stB" if tb == 3 else None))
    for pr in range(2):
        for tb in range(4):
            g = acc5(tb, 0, 1, 2 * pr)
            st += items(glu(g, acc5(tb, 1, 1, 2 * pr), 8), at=end5[(1, 1, 2 * pr + 1)])
            st.append(Item("buffer_store_dwordx4 %s, v%d, %s, s%d offen offset:%d sc1" % (vr(g, 4), VA5, sq(SW), SHC + pr, tb * 1024), vtag="S" + "CD"[pr],
                           sets="st" + "CD"[pr] if tb == 3 else None))

    def gb(i):
        for g_ in "ABCD":
            if "st" + g_ not in S.events:
                return P["GB_" + g_]
        return 0
    S.add(Stream(st, "glu", rate=gb))

    st = []
    for r in range(P["PFN"]):
        st.append(Item("s_mov_b32 s%d, %d" % (SOA, (14 - P["PFN"] + r) * 0x80000), at=I5 + P["PF0"] + r * P["PFSTEP"]))
        st.append(Item(touch(VW3, VTA, ST, "s%d" % SOA), delay=1))
    S.add(Stream(st, "pf"))

    PK, RES, X, GV, INB = 64, 80, 96, 128, 144
    sent = pos6[(27, 1)] + 16
    st = []
    for kb in range(2):
        for tb in range(2):
            q = tb * 2 + kb
            src = 32 + (tb * 4 + 2 * kb) * 4
            st += items(["v_cvt_pk_bf16_f32 v%d, v%d, v%d" % (PK + q * 4 + e, src + 2 * e, src + 2 * e + 1) for e in range(4)],
                        at=sent - 8 * (1 - kb), after={"flagD"})
            st.append(Item("buffer_store_dwordx4 %s, v%d, %s, s%d offen offset:%d sc1" % (vr(PK + q * 4, 4), VT16, sq(SW), SOUTB, q * 1024)))
    v = ["v_accvgpr_read_b32 v%d, a%d" % (RES + i, AX1 + i) for i in range(16)]
    for i in range(16):
        v += ["v_lshlrev_b32 v%d, 16, v%d" % (X + 2 * i, RES + i), "v_and_b32 v%d, 0xffff0000, v%d" % (X + 2 * i + 1, RES + i)]
    st += items(v)
    st += [Item("ds_read_b128 %s, v%d offset:%d" % (vr(GV + jj * 4, 4), VVEC, VEC + 768 + jj * 64), dtag="GV") for jj in range(4)]
    inld = ["buffer_load_dwordx4 %s, v%d, %s, s%d offen offset:%d sc1" % (vr(PK + i * 4, 4), VT16, sq(SW), SIN, i * 1024) for i in range(4)]
    st += [Item(x, at=IE + P["INPOS"] + 2 * k, vtag="I") for k, x in enumerate(inld)]
    s_fin = S.add(Stream(st, "fin", budget=lambda i: 8))

    S.run(I6, vsp=lambda i: P["VSP5"] if i < I5 + (P["DEEP"] - 6) * 56 else P["VSP5D"], hooks=hooks, pair=lambda i: i >= doneA or P["PAIR"] & 1)
    assert "stA" in S.events and "chkA" in S.events, S.events
    S.run(IE, vsp=lambda i: P["VSP6"], hooks=hooks, pair=lambda i: P["PAIR"] & 2)
    mark("p6end")
    S.drain(s_fin)
    for s_ in S.streams:
        assert not s_.items, s_.name
    S.wait(d={"GV"}, lg=0)
    for i in range(8):
        for e in (0, 2):
            S("v_pk_fma_f32 %s, %s, %s, %s" % (vr(X + i * 4 + e, 2), vr(i * 4 + e, 2), vr(GV + (i % 4) * 4 + e, 2), vr(X + i * 4 + e, 2)))
    S("s_mov_b32 s33, %d" % SPIN)
    poll, ready, chk = S.uid("poll"), S.uid("ready"), S.uid("chk")
    S("s_branch %s" % chk)
    S.label(poll)
    S.emit(inld)
    S.label(chk)
    TT = 32
    for i in range(4):
        S("s_waitcnt vmcnt(%d)" % (3 - i))
        if i == 0:
            S("v_max3_u32 v%d, v%d, v%d, v%d" % (TT, PK, PK + 1, PK + 2))
            S("v_max_u32 v%d, v%d, v%d" % (TT, TT, PK + 3))
        else:
            S("v_max3_u32 v%d, v%d, v%d, v%d" % (TT, TT, PK + i * 4, PK + i * 4 + 1))
            S("v_max3_u32 v%d, v%d, v%d, v%d" % (TT, TT, PK + i * 4 + 2, PK + i * 4 + 3))
    S("v_cmp_eq_u32 %s, -1, v%d" % (CMP, TT))
    S("s_cmp_eq_u64 %s, 0" % CMP)
    S("s_cbranch_scc1 %s" % ready)
    S("s_sub_u32 s33, s33, 1")
    S("s_cmp_lg_u32 s33, 0")
    S("s_cbranch_scc1 %s" % poll)
    S.label(ready)
    for tb in range(2):
        for kb in range(2):
            for jj in (2 * kb, 2 * kb + 1):
                i = tb * 4 + jj
                for e in range(2):
                    S("v_lshlrev_b32 v%d, 16, v%d" % (INB + i * 4 + 2 * e, PK + 2 * i + e))
                    S("v_and_b32 v%d, 0xffff0000, v%d" % (INB + i * 4 + 2 * e + 1, PK + 2 * i + e))
                for e in (0, 2):
                    S("v_pk_fma_f32 %s, %s, %s, %s" % (vr(X + i * 4 + e, 2), vr(INB + i * 4 + e, 2), vr(GV + jj * 4 + e, 2), vr(X + i * 4 + e, 2)))
                S("v_cvt_pk_bf16_f32 v%d, v%d, v%d" % (RES + 2 * i, X + i * 4, X + i * 4 + 1))
                S("v_cvt_pk_bf16_f32 v%d, v%d, v%d" % (RES + 2 * i + 1, X + i * 4 + 2, X + i * 4 + 3))
            r = RES + (tb * 2 + kb) * 4
            S("v_permlane16_swap_b32 v%d, v%d" % (r, r + 2))
            S("v_permlane16_swap_b32 v%d, v%d" % (r + 1, r + 3))
            S("buffer_store_dwordx4 %s, v%d, %s, %s offen offset:%d sc1" % (vr(r, 4), VX, sq(SO), "s%d" % S8K if tb else "0", kb * 64))
    a.label("L_hot_end")
    if P["MARK"] or P["TR0"] is not None:
        S("s_waitcnt vmcnt(0)")
        mark("end", True)
        srd(a, 64, SW, 0x1000000, WS_STAMP + 0x100000)
        a("s_lshl_b32 s68, s2, 10")
        a("s_lshl_b32 s69, s3, 8")
        a("s_add_u32 s68, s68, s69")
        a("v_lshlrev_b32 v32, 2, v%d" % VL)
        a("buffer_store_dword v255, v32, s[64:67], s68 offen")
    a("s_endpgm")
    for ls, lb, ld, cmp_ in slow:
        lp = a.uid("spin")
        S.label(ls)
        S("s_mov_b32 s33, %d" % SPIN)
        S.label(lp)
        S.emit(ld)
        S("s_waitcnt vmcnt(0)")
        S.emit(cmp_)
        S("s_cmp_eq_u64 %s, 0" % CMP)
        S("s_cbranch_scc1 %s" % lb)
        S("s_sub_u32 s33, s33, 1")
        S("s_cmp_lg_u32 s33, 0")
        S("s_cbranch_scc1 %s" % lp)
        S("s_branch %s" % lb)
    a.label(end)
    a("s_endpgm")
    a.end_kernel(name, 256, 256, 102)
    a.launch(name, 256, 256, LDS_BYTES)
    return S, dict(I3=I3, I5=I5, I6=I6, IE=IE)


HEADER = gen2.HEADER.replace("gen2", "gen4")


def build(verbose=False, **over):
    import gen3
    old = dict(P)
    P.update(over)
    VMCOST[0] = P["VMC"]
    a = Asm()
    S, info = gen(a, "blk_kernel")
    a.label("L_code_end")
    a("s_endpgm")
    gen3.place_stubs(a)
    if verbose:
        print(info, "nops", S.nops, "events", S.events)
        print("\n".join(S.log))
        print(S.lead_report())
    P.clear()
    P.update(old)
    return a.text(HEADER)


if __name__ == "__main__":
    open("/code/%s.s" % NAME, "w").write(build(True))
```

```python
import gen2
from gen2 import NAME, f32bits, srd, xsum, xred, wave_lane, round_bf16_pair, ln_finish, mfma, touch, lines, flat
from asmlib import *
from sched import *

WS_MOD, MODP, WS_STAT, WS_FLAG = gen2.WS_MOD, gen2.MODP, gen2.WS_STAT, gen2.WS_FLAG
WS_H1, WS_O, WS_HH, WS_H2, WS_XCH = gen2.WS_H1, gen2.WS_O, gen2.WS_HH, gen2.WS_H2, gen2.WS_XCH
WS_X1 = gen2.WS_X1
WS_SIZE = 0x2800000
ACT_BYTES, HH_BYTES, WF_BYTES, KBS, NLOG2E, SPIN, FS = gen2.ACT_BYTES, gen2.HH_BYTES, gen2.WF_BYTES, gen2.KBS, gen2.NLOG2E, gen2.SPIN, gen2.FS

P = dict(
    T5=10, T6=4, NA=12, NF=12, BAR5=56, BAR6=32, BAR3=16,
    VSP3=2, VSP5=6, VSP6=4, LG=10,
    GB_A=16, GB_B=6, GB_C=7, GB_D=3,
    FD_A=48, FD_B=60, FD_C=60, FD_D=60,
    CA=-50, CB=6 * 32, CC=10 * 32, CD=18 * 32, PLAT=40,
    PFSTEP=112, INPOS=-12, NF1=2, PRE3=6, W5AT="pub", W5N=12,
    LEAD5=224, LEADA=224, DEEP=22,
    CHAIN=1, COMPACT=1, SPF=22, SPF2=1, LG5=13, PF0=60, PFG=1, PFP=0, WALK=1, WOFF=0, IPF=0, IPD=2048, PFT=1, PAIR=2, VMC=8, VSP5D=6, TR0=None, TRS=56,
    STM="p3", DBGX1=False,
)

MISC = 8192
NPAGES = 38
LDS_BYTES = MISC + NPAGES * 4096
VEC = 0

VL, VA5, VW1, VW2, VDS = 224, 225, 226, 227, 228
VA3, VW3, VW6S, VFA, VP, VTAG, VF0, VTA, VTD, VX, VVEC, VT16, VA6, VW6K, VFB = 240, 241, 242, 243, 244, 245, 246, 247, 248, 249, 250, 251, 252, 253, 254
SW, SWO, SG, SU, SD, SX, SO, ST = 4, 8, 12, 16, 44, 48, 52, 56
SA_, SWF, SM0, SNL = 40, 41, 42, 43
SHA, SHB, SHC, SHC2 = 60, 61, 62, 63
SFP, SFC, SF2P, SF2C, SSR, SSW, SIN, SOUTB, SH2, SH2B, STAG = 90, 91, 92, 93, 94, 95, 96, 97, 98, 99, 100
S8K = 38
SCMP = 68


def stamp(S, idx):
    if gen2.STAMPS:
        S("s_memtime s[%d:%d]" % (70 + 2 * idx, 71 + 2 * idx))
        S("s_memrealtime s[%d:%d]" % (80 + 2 * idx, 81 + 2 * idx))
        S("s_waitcnt lgkmcnt(0)")


def sq(s):
    return "s[%d:%d]" % (s, s + 3)


def srd_fin(a, d, nbytes):
    a("s_mov_b32 s%d, 0x%x" % (d + 2, nbytes))
    a("s_mov_b32 s%d, 0x20000" % (d + 3))


def cap(fn, *args):
    b = Asm()
    fn(b, *args)
    return [x for x in lines(b) if not x.startswith("s_nop")]


def items(lst, **kw):
    r = [Item(x) for x in lst]
    if r and kw:
        r[0] = Item(lst[0], **kw)
    return r


def code_touch(S, vo):
    lab = S.uid("pc")
    return ["s_getpc_b64 s[30:31]", lab + ":",
            "s_lshr_b32 s32, s2, 3", "s_lshl_b32 s32, s32, 2", "s_add_u32 s32, s32, s3", "s_lshl_b32 s32, s32, 13",
            "v_lshlrev_b32 v%d, 7, v%d" % (vo, VL), "v_add_u32 v%d, s32, v%d" % (vo, vo),
            "v_min_u32 v%d, L_code_end-%s-4, v%d" % (vo, lab, vo),
            "global_load_dword v%d, v%d, s[30:31]" % (VTD, vo)]


TR = "ds_read_b64_tr_b16 {d}, v{b} offset:{o}"


def acc5(tb, m, grp, jj):
    if grp == 2:
        return ((tb * 2 + m) * 2 + jj) * 4 if jj < 2 else 64 + (tb * 2 + m) * 4
    return 96 + ((tb * 2 + m) * 4 + jj) * 4


def wd_row(p):
    if p < 16:
        return 448 * (p >> 2) + (64, 192, 224, 352)[p & 3]
    if p < 24:
        q = p - 16
        return 448 * (q >> 1) + (96, 320)[q & 1]
    t, h = (p - 24) & 15, (p - 24) >> 4
    return 448 * (t >> 2) + 128 * (t & 3) + 32 * h


def gen_kb(a, name="k5_kernel"):
    T5, T6, NA, NF = P["T5"], P["T6"], P["NA"], P["NF"]
    AWF = NA * 16
    AX1 = AWF + NF * 4
    assert AX1 + 16 <= 256
    STM = P["STM"]

    def fragreg(buf, half):
        return ar(AWF + buf * 4, 4) if half is None else ar(AWF + buf * 4 + 2 * half, 2)

    def dsbase(kind, addr):
        w = addr >> 16
        return VDS + 4 * w + kind, addr - (w << 16)

    a.begin_kernel(name)
    S = Sched(a, NF, fragreg, dsbase, MISC, NPAGES, "s%d" % SM0)
    S.LG = P["LG"]
    end = S.uid("end")

    main, frags, pages, ags = [], {}, [], []
    seen = set()

    def vsing(s, q):
        return 96 + ((s - 8) * 2 + (q >> 1)) * 16 + (q & 1) * 4

    def areg(gs, q):
        if P["COMPACT"] and 56 <= gs < 60:
            return vr(vsing(gs - 48, q), 4)
        return ar((gs % NA) * 16 + q * 4, 4)

    def mm(acc, f, gs, q):
        c = vr(acc, 4) if (acc, f[0]) in seen else "0"
        seen.add((acc, f[0]))
        main.append((mfma(vr(acc, 4), "{W}", areg(gs, q), c), f, ("A", gs)))

    def page(key, srd_, v, soff, njj, **kw):
        pages.append(Page(key, (["s_mov_b32 s%d, %d" % (SWF, soff)],
                                "buffer_load_dwordx4 v%d, %s, s%d offen lds" % (v, sq(srd_), SWF), 0), **kw))
        for jj in range(njj):
            frags[key + (jj,)] = [(key, jj, hf * 2048, TR, hf) for hf in range(2)]

    ACC3 = 0
    CH = P["CHAIN"]
    for s in range(16):
        for kk in range(2):
            page((3, 2 * s + kk), SWO, VW3, (2 * s + kk) * 32 * 2048, 4)
        for kk, jj, tb in ([(kk, jj, tb) for jj in range(4) for tb in range(2) for kk in range(2)] if CH else
                           [(kk, jj, tb) for kk in range(2) for jj in range(4) for tb in range(2)]):
            mm(ACC3 + (tb * 4 + jj) * 4, (3, 2 * s + kk, jj), s, kk * 2 + tb)
    I5 = len(main)
    ks = 2 if CH else 1
    assert T5 % ks == 0
    u5 = [(s, g) for s in range(0, 32 - T5, ks) for g in (2, 1)] + [(s, g) for g in (2, 3, 4) for s in range(32 - T5, 32, ks)]
    pos5, end5 = {}, {}
    for s0, g in u5:
        pos5[(s0, g)] = len(main)
        pg = 2 if g == 2 else 1
        if g != 4:
            for m in range(2):
                for s in range(s0, s0 + ks):
                    page((5, s, m, pg), (SG, SU)[m], VW1 if pg == 1 else VW2, s * 32 * 7168, 4 if pg == 1 else 3, after={"w5"})
        js = {1: [(m, jj) for m in range(2) for jj in range(4)], 2: [(0, 0), (0, 1), (1, 0), (1, 1), (0, 2), (1, 2)],
              3: [(m, jj) for m in range(2) for jj in (0, 1)], 4: [(m, jj) for m in range(2) for jj in (2, 3)]}[g]
        for m, jj in js:
            for tb in range(4):
                for s in range(s0, s0 + ks):
                    mm(acc5(tb, m, pg, jj), (5, s, m, pg, jj), 16 + s, tb)
            end5[(m, pg, jj)] = len(main)
    I6 = len(main)
    u6 = [(s, h) for s in range(28 - T6) for h in (1, 0)] + [(s, h) for h in (1, 0) for s in range(28 - T6, 28)]
    pos6 = {}
    for s, h in u6:
        pos6[(s, h)] = len(main)
        for kk in range(2):
            page((6, 2 * s + kk, h), SD, VW6S if h else VW6K, wd_row(2 * s + kk) * 2048, 4)
        for kk, jj, tb in ([(kk, jj, tb) for jj in range(4) for tb in range(2) for kk in range(2)] if CH else
                           [(kk, jj, tb) for kk in range(2) for jj in range(4) for tb in range(2)]):
            mm(h * 32 + (tb * 4 + jj) * 4, (6, 2 * s + kk, h, jj), 48 + s, kk * 2 + tb)
    IE = len(main)
    lastA = {}
    for i, (t, f, at) in enumerate(main):
        lastA[at[1]] = i
    NF1 = P["NF1"]
    for gs in range(76):
        at = lastA[gs - NA] + 1 if gs >= NA else 0
        if gs < 16 or gs >= 48:
            s, v, base, fl = (gs, VA3, WS_O, "") if gs < 16 else (gs - 48, VA6, WS_HH, " sc1")
            ops = []
            for kk in range(2):
                ops.append("s_mov_b32 s%d, %d" % (SA_, base + (2 * s + kk) * KBS))
                ops += ["buffer_load_dwordx4 %s, v%d, %s, s%d offen offset:%d%s" % (areg(gs, kk * 2 + tb), v, sq(SW), SA_, tb * 1024, fl) for tb in range(2)]
            aft = set() if gs < 16 else {"chkA" if s < 8 else ("chkB" if s < 12 else ("chkC" if s < 20 else "chkD"))}
        else:
            s = gs - 16
            ops = ["s_mov_b32 s%d, %d" % (SA_, WS_H2 + s * KBS)]
            ops += ["buffer_load_dwordx4 %s, v%d, %s, s%d offen offset:%d sc1" % (areg(gs, tb), VA5, sq(SW), SA_, tb * 1024) for tb in range(4)]
            aft = {"h2a" if s < 2 * NF1 else "h2b"}
        if P["COMPACT"] and 56 <= gs < 60:
            aft.add("stC")
        ags.append(AGroup(("A", gs), ops, at=at, after=aft))
    bars = list(range(P["BAR3"], I5, P["BAR3"])) + list(range(I5 + 18, I6, P["BAR5"])) + list(range(I6 + 2, IE - 16, P["BAR6"]))
    S.setup(main, frags, pages, ags, bars, cuts=(0, I5))
    for p in pages:
        if p.key[0] == 5:
            p.at = max(p.at, p.want - (P["LEAD5"] if p.want < I5 + P["DEEP"] * 56 else 10000), min(p.want - P["LEAD5"], I5 + (P["DEEP"] - 6) * 56))
    for g in ags:
        if 16 <= g.tag[1] < 48 - T5:
            g.at = max(g.at, g.dl - P["LEADA"])

    S("s_cmp_ge_u32 s2, 256")
    S("s_cbranch_scc1 %s" % end)
    stamp(S, 0)
    for s_, ka in ((SW, KA_WS), (SWO, KA_WO), (SX, KA_X), (SG, KA_WG), (SU, KA_WU), (SD, KA_WD), (SO, KA_OUT), (20, KA_WS)):
        S("s_load_dwordx2 s[%d:%d], s[0:1], %d" % (s_, s_ + 1, ka))
    T = 80
    S("v_lshrrev_b32 v%d, 6, v0" % T)
    S("v_and_b32 v%d, 63, v0" % VL)
    S("v_readfirstlane_b32 s3, v%d" % T)
    S("v_lshlrev_b32 v%d, 4, v%d" % (VT16, VL))
    S("s_and_b32 s24, s2, 1")
    S("s_lshr_b32 s29, s2, 3")
    S("s_bfe_u32 s25, s2, 0x20001")
    S("s_lshl_b32 s25, s25, 2")
    S("s_and_b32 s30, s29, 3")
    S("s_add_u32 s25, s25, s30")
    S("s_lshr_b32 s26, s29, 2")
    S("s_lshl_b32 s26, s26, 1")
    S("s_add_u32 s26, s26, s24")
    S("s_lshl_b32 s30, s25, 13")
    S("s_lshl_b32 s31, s3, 11")
    S("s_add_u32 s30, s30, s31")
    S("v_add_u32 v%d, s30, v%d" % (VA3, VT16))
    S("v_lshrrev_b32 v%d, 3, v%d" % (T, VL))
    S("v_and_b32 v%d, 6, v%d" % (T + 1, T))
    S("v_and_b32 v%d, 7, v%d" % (T + 2, VL))
    S("v_xor_b32 v%d, v%d, v%d" % (T + 1, T + 1, T + 2))
    S("s_lshl_b32 s30, s3, 3")
    S("v_add_u32 v%d, s30, v%d" % (T, T))
    S("v_lshlrev_b32 v%d, 11, v%d" % (T + 2, T))
    S("v_lshl_add_u32 v%d, v%d, 4, v%d" % (T + 2, T + 1, T + 2))
    S("s_lshl_b32 s30, s26, 7")
    S("v_add_u32 v%d, s30, v%d" % (VW3, T + 2))
    S("s_lshl_b32 s%d, s3, 10" % SM0)
    S("s_waitcnt lgkmcnt(0)")
    srd_fin(S, SWO, 1024 * 1024 * 2)
    srd_fin(S, SW, WS_SIZE)
    S.pump(P["PRE3"] * 3)
    srd_fin(S, SX, ACT_BYTES)
    srd_fin(S, SG, WF_BYTES)
    srd_fin(S, SU, WF_BYTES)
    srd_fin(S, SD, WF_BYTES)
    srd_fin(S, SO, ACT_BYTES)
    S("s_mul_i32 s30, s24, %d" % (1792 * 2048))
    S("v_add_u32 v%d, s30, v%d" % (VW6K, VW3))
    S("v_xor_b32 v%d, 128, v%d" % (VW6S, VW6K))
    S("s_mul_i32 s30, s24, %d" % (56 * KBS))
    S("v_add_u32 v%d, s30, v%d" % (VA6, VA3))
    S("s_lshl_b32 s27, s24, 2")
    S("s_and_b32 s30, s29, 3")
    S("s_add_u32 s27, s27, s30")
    S("s_bfe_u32 s28, s2, 0x20001")
    S("s_lshl_b32 s28, s28, 3")
    S("s_lshr_b32 s30, s29, 2")
    S("s_add_u32 s28, s28, s30")
    S("s_lshl_b32 s30, s27, 14")
    S("s_lshl_b32 s31, s3, 12")
    S("s_add_u32 s30, s30, s31")
    S("v_add_u32 v%d, s30, v%d" % (VA5, VT16))
    S("s_movk_i32 s30, 7168")
    S("v_mul_u32_u24 v%d, s30, v%d" % (T + 2, T))
    S("v_lshl_add_u32 v%d, v%d, 4, v%d" % (T + 2, T + 1, T + 2))
    S("s_lshr_b32 s30, s28, 2")
    S("s_mul_i32 s30, s30, 896")
    S("s_and_b32 s31, s28, 3")
    S("s_lshl_b32 s32, s31, 8")
    S("s_add_u32 s32, s32, s30")
    S("v_add_u32 v%d, s32, v%d" % (VW1, T + 2))
    S("s_lshl_b32 s31, s31, 3")
    S("s_lshr_b32 s32, 0x%x, s31" % (4 | 12 << 8 | 14 << 16 | 22 << 24))
    S("s_and_b32 s32, s32, 255")
    S("s_lshl_b32 s32, s32, 5")
    S("s_add_u32 s32, s32, s30")
    S("s_lshr_b32 s33, 0x%x, s31" % (6 | 7 << 8 | 20 << 16 | 21 << 24))
    S("s_and_b32 s33, s33, 255")
    S("s_lshl_b32 s33, s33, 5")
    S("s_add_u32 s33, s33, s30")
    S("s_sub_u32 s33, s33, 64")
    S("v_mov_b32 v%d, s32" % (T + 3))
    S("v_mov_b32 v%d, s33" % (T + 4))
    S("v_cmp_lt_u32 vcc, 3, v%d" % (T + 1))
    S("v_cndmask_b32 v%d, v%d, v%d, vcc" % (T + 3, T + 3, T + 4))
    S("v_mov_b32 v%d, 0x40000000" % (T + 4))
    S("v_cmp_lt_u32 vcc, 5, v%d" % (T + 1))
    S("v_cndmask_b32 v%d, v%d, v%d, vcc" % (T + 3, T + 3, T + 4))
    S("v_add_u32 v%d, v%d, v%d" % (VW2, T + 3, T + 2))
    S("v_lshrrev_b32 v%d, 2, v%d" % (T, VL))
    S("v_lshlrev_b32 v%d, 7, v%d" % (T, T))
    S("v_bfe_u32 v%d, v%d, 3, 2" % (T + 1, VL))
    S("v_lshl_add_u32 v%d, v%d, 5, v%d" % (T, T + 1, T))
    S("v_and_b32 v%d, 3, v%d" % (T + 1, VL))
    S("v_lshl_add_u32 v%d, v%d, 3, v%d" % (VDS, T + 1, T))
    for jj in range(1, 4):
        S("v_xor_b32 v%d, %d, v%d" % (VDS + jj, jj << 5, VDS))
    for w in (1, 2):
        for jj in range(4):
            S("v_add_u32 v%d, 0x%x, v%d" % (VDS + 4 * w + jj, w << 16, VDS + jj))
    S("s_lshr_b32 s30, s28, 4")
    S("s_mul_i32 s30, s30, 56")
    S("s_and_b32 s31, s28, 15")
    S("s_add_u32 s32, s30, s31")
    S("s_lshl_b32 s32, s32, 17")
    S("s_add_u32 s%d, s32, %d" % (SHA, WS_HH))
    S("s_lshr_b32 s32, s31, 1")
    S("s_add_u32 s32, s32, s30")
    S("s_lshl_b32 s32, s32, 17")
    S("s_and_b32 s33, s31, 1")
    S("s_lshl_b32 s33, s33, %d" % (10 if P["COMPACT"] else 3))
    S("s_add_u32 s32, s32, s33")
    S("s_add_u32 s%d, s32, %d" % (SHB, WS_HH + 16 * KBS))
    S("s_add_u32 s%d, s%d, %d" % (SHC, SHA, 24 * KBS))
    S("s_add_u32 s%d, s%d, %d" % (SHC2, SHA, 40 * KBS))
    S("s_lshl_b32 s30, s27, 2")
    S("s_add_u32 s30, s30, s3")
    S("s_lshl_b32 s30, s30, 5")
    S("s_lshl_b32 s31, s30, %d" % FS)
    S("s_add_u32 s%d, s31, %d" % (SF2C, WS_FLAG + (3072 << FS)))
    S("s_add_u32 s30, s30, s28")
    S("s_lshl_b32 s30, s30, %d" % FS)
    S("s_add_u32 s%d, s30, %d" % (SFP, WS_FLAG))
    S("s_lshl_b32 s30, s25, 1")
    S("s_lshr_b32 s31, s3, 1")
    S("s_add_u32 s30, s30, s31")
    S("s_lshl_b32 s30, s30, 1")
    S("s_add_u32 s30, s30, s24")
    S("s_lshl_b32 s30, s30, %d" % (4 + FS))
    S("s_add_u32 s%d, s30, %d" % (SFC, WS_FLAG))
    S("s_lshl_b32 s30, s25, 2")
    S("s_add_u32 s30, s30, s3")
    S("s_lshl_b32 s30, s30, 4")
    S("s_add_u32 s30, s30, s26")
    S("s_lshl_b32 s30, s30, %d" % FS)
    S("s_add_u32 s%d, s30, %d" % (SF2P, WS_FLAG + (3072 << FS)))
    S("s_mov_b32 s%d, 1" % STAG)
    S("v_mov_b32 v%d, s%d" % (VTAG, STAG))
    S("v_cmp_ne_u32 vcc, 0, v%d" % VL)
    S("v_mov_b32 v%d, 0x40000000" % T)
    S("v_cndmask_b32 v%d, 0, v%d, vcc" % (VF0, T))
    S("v_and_b32 v%d, 31, v%d" % (VFB, VL))
    S("v_and_b32 v%d, %d, v%d" % (VFA, 16 | (NF1 - 1), VFB))
    S("v_lshlrev_b32 v%d, %d, v%d" % (VFA, FS, VFA))
    S("v_lshlrev_b32 v%d, %d, v%d" % (VFB, FS, VFB))
    S("s_lshl_b32 s30, s25, 14")
    S("s_lshl_b32 s31, s3, 8")
    S("s_add_u32 s30, s30, s31")
    S("s_add_u32 s%d, s30, %d" % (SSR, WS_STAT))
    S("s_lshl_b32 s31, s26, 10")
    S("s_add_u32 s%d, s%d, s31" % (SSW, SSR))
    S("s_lshl_b32 s30, s2, 2")
    S("s_add_u32 s30, s30, s3")
    S("s_xor_b32 s31, s30, 4")
    S("s_lshl_b32 s30, s30, 13")
    S("s_lshl_b32 s31, s31, 13")
    S("s_add_u32 s%d, s30, %d" % (SIN, WS_XCH))
    S("s_add_u32 s%d, s31, %d" % (SOUTB, WS_XCH))
    S("s_lshl_b32 s30, s26, 18")
    S("s_add_u32 s%d, s30, %d" % (SH2, WS_H2))
    S("s_add_u32 s%d, s30, %d" % (SH2B, WS_H2 + KBS))
    S("s_mov_b32 s%d, 0x8000" % S8K)
    S("s_mov_b32 s%d, 0x%x" % (SNL, NLOG2E))
    S("v_and_b32 v%d, 15, v%d" % (T, VL))
    S("v_lshlrev_b32 v%d, 11, v%d" % (VX, T))
    S("v_bfe_u32 v%d, v%d, 4, 1" % (T + 2, VL))
    S("v_lshl_add_u32 v%d, v%d, 5, v%d" % (VX, T + 2, VX))
    S("v_lshrrev_b32 v%d, 5, v%d" % (T + 2, VL))
    S("v_lshl_add_u32 v%d, v%d, 4, v%d" % (VX, T + 2, VX))
    S("s_lshl_b32 s30, s25, 18")
    S("s_lshl_b32 s31, s3, 16")
    S("s_add_u32 s30, s30, s31")
    S("s_lshl_b32 s31, s26, 7")
    S("s_add_u32 s30, s30, s31")
    S("v_add_u32 v%d, s30, v%d" % (VX, VX))
    S("v_lshrrev_b32 v%d, 4, v%d" % (VVEC, VL))
    S("v_lshlrev_b32 v%d, 4, v%d" % (VVEC, VVEC))
    S("s_bitcmp1_b32 s3, 0")
    S("s_cselect_b32 s%d, s%d, s%d" % (ST, SU, SG))
    S("s_cselect_b32 s%d, s%d, s%d" % (ST + 1, SU + 1, SG + 1))
    S("s_cselect_b32 s37, %d, 0" % (WF_BYTES // 2))
    srd_fin(S, ST, WF_BYTES)
    if P["PFT"]:
        S("s_lshr_b32 s30, s2, 6")
        S("s_lshl_b32 s30, s30, 5")
        S("s_and_b32 s31, s2, 31")
        S("s_add_u32 s30, s30, s31")
        S("s_lshl_b32 s30, s30, 1")
        S("s_lshr_b32 s31, s3, 1")
        S("s_add_u32 s30, s30, s31")
        S("s_lshl_b32 s30, s30, 11")
        S("s_add_u32 s31, s28, 1")
        S("s_bitcmp1_b32 s31, 1")
        S("s_cselect_b32 s30, 0x40000000, s30")
        S("v_lshrrev_b32 v%d, 2, v%d" % (VTA, VL))
    else:
        S("s_lshl_b32 s30, s2, 1")
        S("s_lshr_b32 s31, s3, 1")
        S("s_add_u32 s30, s30, s31")
        S("s_lshl_b32 s30, s30, 10")
        S("v_lshrrev_b32 v%d, 3, v%d" % (VTA, VL))
    S("v_lshlrev_b32 v%d, 7, v%d" % (VTA, VTA))
    S("v_add_u32 v%d, s30, v%d" % (VTA, VTA))

    S.emit(["s_lshl_b32 s22, s2, 2", "s_add_u32 s22, s22, s3", "s_lshl_b32 s22, s22, 7", "s_add_u32 s22, s22, 60",
            "s_add_u32 s22, s22, s%d" % SD, "s_addc_u32 s23, s%d, 0" % (SD + 1)])
    def ipf():
        return ["s_getpc_b64 s[22:23]", "s_load_dword s101, s[22:23], %d" % P["IPD"]]
    if P["IPF"]:
        S.add(Stream([Item(x, at=g) for g in range(0, IE - 60, P["IPF"]) for x in ipf()], "ipf", budget=lambda i: 4))

    RES, GV, SB, S2, XU, E = 48, 64, 96, 112, 128, 160
    VM, VS1, VS2 = 88, 89, 90
    S("v_lshrrev_b32 v%d, 4, v%d" % (VM, VL))
    S("s_movk_i32 s30, %d" % MODP)
    S("v_mul_u32_u24 v%d, s30, v%d" % (VM, VM))
    S("v_and_b32 v%d, 15, v%d" % (T, VL))
    S("v_lshl_add_u32 v%d, v%d, 4, v%d" % (VM, T, VM))
    S("s_lshl_b32 s30, s26, 8")
    S("s_lshl_b32 s31, s3, 12")
    S("s_add_u32 s30, s30, s31")
    S("s_add_u32 s36, s30, %d" % (WS_MOD + 8192))
    S("v_lshlrev_b32 v%d, 4, v%d" % (T + 4, T))
    S("s_lshl_b32 s30, s3, 8")
    S("v_add_u32 v%d, s30, v%d" % (T + 4, T + 4))
    S("v_lshlrev_b32 v%d, 3, v%d" % (VS1, VL))
    S("v_lshrrev_b32 v%d, 4, v%d" % (VS2, VL))
    S("v_lshlrev_b32 v%d, 12, v%d" % (VS2, VS2))
    S("v_lshl_add_u32 v%d, v%d, 3, v%d" % (VS2, T, VS2))
    S("v_cmp_gt_u32 s[34:35], 16, v%d" % VL)
    S("s_cmp_eq_u32 s3, 2")
    S("s_cselect_b32 s39, 1.0, 0")

    st = [Item("buffer_load_dwordx4 %s, v%d, %s, s36 offen" % (vr(SB, 4), VM, sq(SW)), at=24, vtag="M")]
    v = cap(xsum, [SB + i for i in range(4)], [SB + 4 + i for i in range(4)], (16, 32))
    v += cap(round_bf16_pair, SB, SB + 1, SB + 4) + cap(round_bf16_pair, SB + 2, SB + 3, SB + 5)
    v += ["v_add_f32 v%d, s39, v%d" % (SB + i, SB + i) for i in range(4)]
    v += cap(round_bf16_pair, SB, SB + 1, SB + 4) + cap(round_bf16_pair, SB + 2, SB + 3, SB + 5)
    st += items(v, delay=48, needv={"M"})
    st.append(Item("ds_write_b128 v%d, %s offset:%d" % (T + 4, vr(SB, 4), VEC), dtag="V"))
    st.append(Item([], delay=8, needd={"V"}))
    first = True
    for vv, dst in enumerate((GV, SB, S2)):
        for jj in range(4):
            st.append(Item("ds_read_b128 %s, v%d offset:%d" % (vr(dst + jj * 4, 4), VVEC, VEC + vv * 256 + jj * 64), dtag="V2", bar=first, delay=2))
            first = False
    s_mod = S.add(Stream(st, "mod", rate=lambda i: 3))
    st = []
    for tb in range(2):
        for kb in range(2):
            st.append(Item("buffer_load_dwordx4 %s, v%d, %s, %s offen offset:%d" % (
                vr(RES + (tb * 2 + kb) * 4, 4), VX, sq(SX), "s%d" % S8K if tb else "0", kb * 64), at=80, delay=4, vtag="X"))
    v = []
    for q in range(4):
        v += ["v_permlane16_swap_b32 v%d, v%d" % (RES + 4 * q, RES + 4 * q + 2), "v_permlane16_swap_b32 v%d, v%d" % (RES + 4 * q + 1, RES + 4 * q + 3)]
    for i in range(16):
        v += ["v_lshlrev_b32 v%d, 16, v%d" % (XU + 2 * i, RES + i), "v_and_b32 v%d, 0xffff0000, v%d" % (XU + 2 * i + 1, RES + i)]
    st += items(v, delay=70, needv={"X"})
    s_x = S.add(Stream(st, "x", rate=lambda i: 3))

    S("s_mov_b64 vcc, 0")
    S("s_branch L_hot")
    S(".p2align 12")
    S.label("L_hot")
    S.barrier()
    S.reads()
    if P["W5AT"] == "free":
        S.events["w5"] = 0
    S.run(I5, budget=lambda i: 12, vsp=lambda i: P["VSP3"])
    S.drain(s_mod)
    S.drain(s_x)
    S.wait(d={"V2"}, lg=0)
    if STM == "p3d":
        stamp(S, 1)
    if P["W5AT"] == "loop":
        S.events["w5"] = S.i
        S.pump(P["W5N"], "W")
    ACC = ACC3
    for i in range(16):
        S("v_pk_fma_f32 %s, %s, %s, %s" % (vr(XU + 2 * i, 2), vr(ACC + 2 * i, 2), vr(GV + (2 * i) % 16, 2), vr(XU + 2 * i, 2)))
    for i in range(8):
        for tb in range(2):
            x = vr(XU + tb * 16 + 2 * i, 2)
            if i == 0:
                S("v_pk_mul_f32 %s, %s, %s" % (vr(E + 4 + 2 * tb, 2), x, x))
            else:
                S("v_pk_fma_f32 %s, %s, %s, %s" % (vr(E + 4 + 2 * tb, 2), x, x, vr(E + 4 + 2 * tb, 2)))
                S("v_pk_add_f32 %s, %s, %s" % (vr(E + 2 * tb, 2), vr(E + 2 * tb, 2) if i > 1 else vr(XU + tb * 16, 2), x))
    for tb in range(2):
        S("v_add_f32 v%d, v%d, v%d" % (E + 2 * tb, E + 2 * tb, E + 2 * tb + 1))
        S("v_add_f32 v%d, v%d, v%d" % (E + 2 * tb + 1, E + 4 + 2 * tb, E + 5 + 2 * tb))
    S.emit(cap(xsum, [E, E + 1, E + 2, E + 3], [E + 4, E + 5, E + 6, E + 7], (16, 32)))
    S("v_cndmask_b32_e64 v%d, v%d, v%d, s[34:35]" % (E + 4, E + 2, E))
    S("v_cndmask_b32_e64 v%d, v%d, v%d, s[34:35]" % (E + 5, E + 3, E + 1))
    S("v_and_b32 v%d, -2, v%d" % (E + 4, E + 4))
    S("v_and_b32 v%d, 0x7fffffff, v%d" % (E + 5, E + 5))
    S("s_mov_b32 exec_hi, 0")
    S("buffer_store_dwordx2 %s, v%d, %s, s%d offen sc1" % (vr(E + 4, 2), VS1, sq(SW), SSW))
    S("s_mov_b64 exec, -1")
    if STM == "p3d":
        stamp(S, 2)
    if P["W5AT"] == "pub":
        S.events["w5"] = S.i
        S.pump(P["W5N"], "W")
    for i in range(16):
        S("v_cvt_pk_bf16_f32 v%d, v%d, v%d" % (RES + i, XU + 2 * i, XU + 2 * i + 1))
    for i in range(16):
        S("v_accvgpr_write_b32 a%d, v%d" % (AX1 + i, RES + i))
        S("v_lshlrev_b32 v%d, 16, v%d" % (ACC + 2 * i, RES + i))
        S("v_and_b32 v%d, 0xffff0000, v%d" % (ACC + 2 * i + 1, RES + i))
    if P["WALK"]:
        walk(S, 0)
        S("; @range 0")
    G = E + 16
    poll, ready = S.uid("poll"), S.uid("ready")
    S("s_mov_b32 s33, %d" % SPIN)
    S.label(poll)
    for tb in range(2):
        for i in range(4):
            S("buffer_load_dwordx2 %s, v%d, %s, s%d offen offset:%d sc1" % (vr(G + (tb * 4 + i) * 2, 2), VS2, sq(SW), SSR, i * 1024 + tb * 128))
    S("s_waitcnt vmcnt(0)")
    S("v_max3_u32 v%d, v%d, v%d, v%d" % (E + 8, G, G + 1, G + 2))
    for i in range(3, 15, 2):
        S("v_max3_u32 v%d, v%d, v%d, v%d" % (E + 8, E + 8, G + i, G + i + 1))
    S("v_max_u32 v%d, v%d, v%d" % (E + 8, E + 8, G + 15))
    S("v_cmp_eq_u32 s[%d:%d], -1, v%d" % (SCMP, SCMP + 1, E + 8))
    S("s_cmp_eq_u64 s[%d:%d], 0" % (SCMP, SCMP + 1))
    S("s_cbranch_scc1 %s" % ready)
    S("s_sub_u32 s33, s33, 1")
    S("s_cmp_lg_u32 s33, 0")
    S("s_cbranch_scc1 %s" % poll)
    S.label(ready)
    if STM == "p3d":
        stamp(S, 3)
    if P["DBGX1"]:
        S("s_sub_u32 s30, s%d, %d" % (SH2, WS_H2 - WS_X1))
        S("s_sub_u32 s31, s%d, %d" % (SH2B, WS_H2 - WS_X1))
        for tb in range(2):
            for kb in range(2):
                S("buffer_store_dwordx4 %s, v%d, %s, s%d offen offset:%d" % (vr(RES + (tb * 2 + kb) * 4, 4), VA3, sq(SW), 30 + kb, tb * 1024))
    for tb in range(2):
        g = G + tb * 8
        S("v_pk_add_f32 %s, %s, %s" % (vr(E + 2 * tb, 2), vr(g, 2), vr(g + 2, 2)))
        S("v_pk_add_f32 %s, %s, %s" % (vr(E + 4 + 2 * tb, 2), vr(g + 4, 2), vr(g + 6, 2)))
    for tb in range(2):
        S("v_pk_add_f32 %s, %s, %s" % (vr(E + 2 * tb, 2), vr(E + 2 * tb, 2), vr(E + 4 + 2 * tb, 2)))
    S.emit(cap(xsum, [E, E + 1, E + 2, E + 3], [E + 4, E + 5, E + 6, E + 7], (16, 32)))
    M = [XU, XU + 12]
    for tb in range(2):
        S("v_mul_f32 v%d, 0x%x, v%d" % (M[tb], f32bits(1.0 / 1024), E + 2 * tb))
        S("v_mul_f32 v%d, 0x%x, v%d" % (M[tb] + 4, f32bits(1.0 / 1024), E + 2 * tb + 1))
    for tb in range(2):
        S("v_fma_f32 v%d, -v%d, v%d, v%d" % (M[tb] + 4, M[tb], M[tb], M[tb] + 4))
    for tb in range(2):
        S("v_max_f32 v%d, 0, v%d" % (M[tb] + 4, M[tb] + 4))
    l0, l1 = cap(ln_finish, M[0]), cap(ln_finish, M[1])
    for x, y in zip(l0, l1):
        S(x)
        S(y)
    H = G
    for tb in range(2):
        for i in range(8):
            x = vr(ACC + tb * 16 + 2 * i, 2)
            S("v_pk_add_f32 %s, %s, %s neg_lo:[0,1] neg_hi:[0,1]" % (x, x, vr(M[tb], 2)))
        for i in range(8):
            x = vr(ACC + tb * 16 + 2 * i, 2)
            S("v_pk_mul_f32 %s, %s, %s" % (x, x, vr(M[tb] + 4, 2)))
        for i in range(8):
            x = vr(ACC + tb * 16 + 2 * i, 2)
            S("v_pk_fma_f32 %s, %s, %s, %s" % (x, x, vr(S2 + 2 * i, 2), vr(SB + 2 * i, 2)))
        for i in range(8):
            S("v_cvt_pk_bf16_f32 v%d, v%d, v%d" % (H + tb * 8 + i, ACC + tb * 16 + 2 * i, ACC + tb * 16 + 2 * i + 1))
        for kb in range(2):
            S("buffer_store_dwordx4 %s, v%d, %s, s%d offen offset:%d sc1" % (vr(H + tb * 8 + kb * 4, 4), VA3, sq(SW), SH2 + kb, tb * 1024))
    if STM == "p3":
        stamp(S, 1)
    S.lat, lat = 0, S.lat
    S.barrier()
    S.lat = lat
    S.reads()
    S("s_waitcnt vmcnt(0)")
    S("buffer_store_dword v%d, v%d, %s, s%d offen sc1" % (VTAG, VF0, sq(SW), SF2P))
    lp, rdy = S.uid("spin"), S.uid("rdy")
    S("s_mov_b32 s33, %d" % SPIN)
    S.label(lp)
    S("buffer_load_dword v%d, v%d, %s, s%d offen sc1" % (VP, VFA, sq(SW), SF2C))
    S("s_waitcnt vmcnt(0)")
    S("v_cmp_ne_u32 s[%d:%d], s%d, v%d" % (SCMP, SCMP + 1, STAG, VP))
    S("s_cmp_eq_u64 s[%d:%d], 0" % (SCMP, SCMP + 1))
    S("s_cbranch_scc1 %s" % rdy)
    S("s_sub_u32 s33, s33, 1")
    S("s_cmp_lg_u32 s33, 0")
    S("s_cbranch_scc1 %s" % lp)
    S.label(rdy)
    if STM == "p3":
        stamp(S, 2)
    S.events["h2a"] = S.i
    S.pump(8, "A")

    slow = []

    def pollchk(so, va, at_p, at_c, ev, gen=0, after=()):
        ld = "buffer_load_dword v%d, v%d, %s, s%d offen sc1" % (VP, va, sq(SW), so)
        cmp_ = ["v_subrev_u32 v%d, s%d, v%d" % (VP, STAG, VP), "v_cmp_lt_u32 s[%d:%d], 3, v%d" % (SCMP, SCMP + 1, VP)]
        ls, lb = S.uid("slow"), S.uid("back")
        slow.append((ls, lb, ld, cmp_))
        r = [Item(ld, at=at_p, vtag=("P", ev), after=after),
             Item(cmp_[0], at=at_c - 2, needv={("P", ev)}, delay=P["PLAT"]), Item(cmp_[1]),
             Item(["s_cmp_lg_u64 s[%d:%d], 0" % (SCMP, SCMP + 1), "s_cbranch_scc1 %s" % ls, lb + ":"], delay=1, sets=ev)]
        if gen:
            r.append(Item("s_add_u32 s%d, s%d, 1" % (STAG, STAG)))
        return r

    st = pollchk(SF2C, VFB, I5, I5 + 40, "h2b")
    st += items(["v_and_b32 v%d, 15, v%d" % (VFA, VL), "v_lshlrev_b32 v%d, %d, v%d" % (VFA, FS, VFA)])
    for g_ in "ABCD":
        st += pollchk(SFC, VFA, I6 + P["C" + g_] - P["PLAT"], I6 + P["C" + g_], "chk" + g_, 1, {"flag" + g_})
    S.add(Stream(st, "poll", budget=lambda i: 8))

    def glu(g, u, n, d=None):
        r = ["v_mul_f32 v%d, s%d, v%d" % (g + e, SNL, g + e) for e in range(n)]
        r += ["v_exp_f32 v%d, v%d" % (g + e, g + e) for e in range(n)]
        r += ["v_add_f32 v%d, 1.0, v%d" % (g + e, g + e) for e in range(n)]
        r += ["v_rcp_f32 v%d, v%d" % (g + e, g + e) for e in range(n)]
        r += ["v_mul_f32 v%d, v%d, v%d" % (g + e, g + e, u + e) for e in range(n)]
        r += ["v_cvt_pk_bf16_f32 v%d, v%d, v%d" % ((g if d is None else d) + e, g + 2 * e, g + 2 * e + 1) for e in range(n // 2)]
        return r

    def flag(gen, prev):
        return [Item("buffer_store_dword v%d, v%d, %s, s%d offen sc1" % (VTAG, VF0, sq(SW), SFP), after={"st" + gen}, at=0,
                     needv={"S" + gen}, sets="flag" + gen, delay=0),
                Item("v_add_u32 v%d, 1, v%d" % (VTAG, VTAG), delay=1)]

    doneA = end5[(1, 2, 1)]
    doneB = end5[(1, 2, 2)]
    st = []
    for tb in range(4):
        g = acc5(tb, 0, 2, 0)
        st += items(glu(g, acc5(tb, 1, 2, 0), 8), at=doneA)
        st.append(Item("buffer_store_dwordx4 %s, v%d, %s, s%d offen offset:%d sc1" % (vr(g, 4), VA5, sq(SW), SHA, tb * 1024), vtag="SA",
                       sets="stA" if tb == 3 else None))
    nA = len(st)
    for tb in range(4):
        g = acc5(tb, 0, 2, 2)
        if P["COMPACT"]:
            g0 = acc5(tb & 2, 0, 2, 2)
            st += items(glu(g, acc5(tb, 1, 2, 2), 4, g0 + 2 * (tb & 1)), at=doneB)
            if tb & 1:
                st.append(Item("buffer_store_dwordx4 %s, v%d, %s, s%d offen offset:%d sc1" % (vr(g0, 4), VA5, sq(SW), SHB, (tb & 2) * 1024),
                               vtag="SB", sets="stB" if tb == 3 else None))
            continue
        st += items(glu(g, acc5(tb, 1, 2, 2), 4), at=doneB)
        st.append(Item("buffer_store_dwordx2 %s, v%d, %s, s%d offen offset:%d sc1" % (vr(g, 2), VA5, sq(SW), SHB, tb * 1024), vtag="SB",
                       sets="stB" if tb == 3 else None))
    for pr in range(2):
        for tb in range(4):
            g = acc5(tb, 0, 1, 2 * pr)
            st += items(glu(g, acc5(tb, 1, 1, 2 * pr), 8), at=end5[(1, 1, 2 * pr + 1)])
            st.append(Item("buffer_store_dwordx4 %s, v%d, %s, s%d offen offset:%d sc1" % (vr(g, 4), VA5, sq(SW), SHC + pr, tb * 1024), vtag="S" + "CD"[pr],
                           sets="st" + "CD"[pr] if tb == 3 else None))
    fl = []
    for gen in "ABCD":
        fl.append(Item([], after={"st" + gen}))
        f = flag(gen, None)
        f[0].delay = P["FD_" + gen]
        fl += f
    S.add(Stream(fl, "flag", budget=lambda i: 8))
    if gen2.STAMPS and STM[:2] == "fl":
        g_ = STM[2]
        sti = lambda k: ["s_memtime s[%d:%d]" % (70 + 2 * k, 71 + 2 * k), "s_memrealtime s[%d:%d]" % (80 + 2 * k, 81 + 2 * k)]
        S.add(Stream([Item(sti(0), after={"st" + g_}), Item(sti(1), after={"flag" + g_}), Item(sti(2), at=I6 + P["C" + g_] - 4),
                      Item(sti(3), after={"chk" + g_})], "stamps", budget=lambda i: 64))

    def gb(i):
        for g_ in "ABCD":
            if "st" + g_ not in S.events:
                return P["GB_" + g_]
        return 0
    s_glu = S.add(Stream(st, "glu", rate=gb))

    st = []
    for r in range(7 if P["SPF"] else 14):
        at = I5 + P["PF0"] + (r // P["PFG"]) * P["PFSTEP"]
        if r < 7:
            st.append(Item("s_mov_b32 s36, %d" % (WF_BYTES // 2 + r * 0x80000), at=at))
            st.append(Item(touch(VTD, VTA, ST, "s36"), delay=1, pause=P["PFP"]))
        else:
            st.append(Item("s_add_u32 s36, s37, %d" % ((r - 7) * 0x80000), at=at))
            st.append(Item(touch(VTD, VTA, SD, "s36"), delay=1, pause=P["PFP"]))
    ct = code_touch(S, VP)
    st.append(Item(ct[:2], delay=20))
    st += items(ct[2:])
    S.add(Stream(st, "pf"))

    if P["SPF"]:
        st = [Item([], at=I5 + 4)]
        for k in range(56):
            if k and k % 8 == 0:
                st.append(Item(["s_add_u32 s22, s22, 0x100000", "s_addc_u32 s23, s23, 0"]))
            if P["SPF2"]:
                st.append(Item("s_load_dwordx2 s[66:67], s[22:23], 0x%x" % ((k % 8) << 17), delay=P["SPF"]))
            else:
                st.append(Item("s_load_dword s66, s[22:23], 0x%x" % ((k % 8) << 17), delay=P["SPF"] // 2))
                st.append(Item("s_load_dword s67, s[22:23], 0x%x" % (((k % 8) << 17) + 4), delay=P["SPF"] // 2))
        S.add(Stream(st, "spf", rate=lambda i: 2))
        S.LG = P["LG5"]

    PK, RES, X, GV, INB = 64, 80, 96, 128, 144
    sent = pos6[(27, 1)] + 16
    st = []
    for kb in range(2):
        for tb in range(2):
            q = tb * 2 + kb
            src = 32 + (tb * 4 + 2 * kb) * 4
            st += items(["v_cvt_pk_bf16_f32 v%d, v%d, v%d" % (PK + q * 4 + e, src + 2 * e, src + 2 * e + 1) for e in range(4)],
                        at=sent - (8 if CH else 4) * (1 - kb), after={"flagD"})
            st.append(Item("buffer_store_dwordx4 %s, v%d, %s, s%d offen offset:%d sc1" % (vr(PK + q * 4, 4), VT16, sq(SW), SOUTB, q * 1024)))
    v = ["v_accvgpr_read_b32 v%d, a%d" % (RES + i, AX1 + i) for i in range(16)]
    for i in range(16):
        v += ["v_lshlrev_b32 v%d, 16, v%d" % (X + 2 * i, RES + i), "v_and_b32 v%d, 0xffff0000, v%d" % (X + 2 * i + 1, RES + i)]
    st += items(v)
    st += [Item("ds_read_b128 %s, v%d offset:%d" % (vr(GV + jj * 4, 4), VVEC, VEC + 768 + jj * 64), dtag="GV") for jj in range(4)]
    inld = ["buffer_load_dwordx4 %s, v%d, %s, s%d offen offset:%d sc1" % (vr(PK + i * 4, 4), VT16, sq(SW), SIN, i * 1024) for i in range(4)]
    st += [Item(x, at=IE + P["INPOS"] + 2 * k, vtag="I") for k, x in enumerate(inld)]
    s_fin = S.add(Stream(st, "fin", budget=lambda i: 8))

    hooks = {I5 + 24 * 56 + 3: lambda: S.label("L_k56_seam")}
    if P["COMPACT"]:
        for s in range(8, 12):
            def swp(s=s):
                assert not any(g.tag == ("A", 48 + s) for g in S.aq) and not any(t == ("A", 48 + s) for o, t, p in S.pend)
                S.wait(v={("A", 48 + s)})
                for kk in range(2):
                    for e in range(2):
                        S("v_swap_b32 v%d, v%d" % (vsing(s, 2 * kk) + 2 + e, vsing(s, 2 * kk + 1) + e))
            hooks[pos6[(s, 1)] - 3] = swp
    if gen2.STAMPS:
        sp = {"p3": {I6: 3}, "p6": {pos5[(32 - T5, 2)]: 0, I6: 1, I6 + 8 * 32: 2}, "p6b": {I6: 0, I6 + 5 * 32: 1, I6 + 16 * 32: 2},
              "p5": {I5: 0, I5 + 4 * 56: 1, I5 + 20 * 56 + 1: 2, pos5[(32 - T5, 2)]: 3}}.get(STM, {})
        for k, v_ in sp.items():
            hooks[k] = (lambda v_=v_: stamp(S, v_))
    if P["TR0"] is not None:
        def tr(k):
            if k:
                S("v_writelane_b32 v255, s70, %d" % (k - 1))
            S("s_memtime s[70:71]")
        for k in range(64):
            g = P["TR0"] + k * P["TRS"]
            if g < IE:
                while g in hooks:
                    g += 1
                hooks[g] = (lambda k=k: tr(k))
    S.run(I6, vsp=lambda i: P["VSP5"] if i < I5 + (P["DEEP"] - 6) * 56 else P["VSP5D"], hooks=hooks, pair=lambda i: i >= doneA or P["PAIR"] & 1)
    assert "stA" in S.events and "chkA" in S.events, S.events
    S.run(IE, vsp=lambda i: P["VSP6"], hooks=hooks, pair=lambda i: P["PAIR"] & 2)
    if STM in ("p6", "p6b"):
        stamp(S, 3)
    S.drain(s_fin)
    for s_ in S.streams:
        assert not s_.items, s_.name
    S.wait(d={"GV"}, lg=0)
    for i in range(8):
        for e in (0, 2):
            S("v_pk_fma_f32 %s, %s, %s, %s" % (vr(X + i * 4 + e, 2), vr(i * 4 + e, 2), vr(GV + (i % 4) * 4 + e, 2), vr(X + i * 4 + e, 2)))
    S("s_mov_b32 s33, %d" % SPIN)
    poll, ready, chk = S.uid("poll"), S.uid("ready"), S.uid("chk")
    S("s_branch %s" % chk)
    S.label(poll)
    S.emit(inld)
    S.label(chk)
    TT = 32
    for i in range(4):
        S("s_waitcnt vmcnt(%d)" % (3 - i))
        if i == 0:
            S("v_max3_u32 v%d, v%d, v%d, v%d" % (TT, PK, PK + 1, PK + 2))
            S("v_max_u32 v%d, v%d, v%d" % (TT, TT, PK + 3))
        else:
            S("v_max3_u32 v%d, v%d, v%d, v%d" % (TT, TT, PK + i * 4, PK + i * 4 + 1))
            S("v_max3_u32 v%d, v%d, v%d, v%d" % (TT, TT, PK + i * 4 + 2, PK + i * 4 + 3))
    S("v_cmp_eq_u32 s[%d:%d], -1, v%d" % (SCMP, SCMP + 1, TT))
    S("s_cmp_eq_u64 s[%d:%d], 0" % (SCMP, SCMP + 1))
    S("s_cbranch_scc1 %s" % ready)
    S("s_sub_u32 s33, s33, 1")
    S("s_cmp_lg_u32 s33, 0")
    S("s_cbranch_scc1 %s" % poll)
    S.label(ready)
    for tb in range(2):
        for kb in range(2):
            for jj in (2 * kb, 2 * kb + 1):
                i = tb * 4 + jj
                for e in range(2):
                    S("v_lshlrev_b32 v%d, 16, v%d" % (INB + i * 4 + 2 * e, PK + 2 * i + e))
                    S("v_and_b32 v%d, 0xffff0000, v%d" % (INB + i * 4 + 2 * e + 1, PK + 2 * i + e))
                for e in (0, 2):
                    S("v_pk_fma_f32 %s, %s, %s, %s" % (vr(X + i * 4 + e, 2), vr(INB + i * 4 + e, 2), vr(GV + jj * 4 + e, 2), vr(X + i * 4 + e, 2)))
                S("v_cvt_pk_bf16_f32 v%d, v%d, v%d" % (RES + 2 * i, X + i * 4, X + i * 4 + 1))
                S("v_cvt_pk_bf16_f32 v%d, v%d, v%d" % (RES + 2 * i + 1, X + i * 4 + 2, X + i * 4 + 3))
            r = RES + (tb * 2 + kb) * 4
            S("v_permlane16_swap_b32 v%d, v%d" % (r, r + 2))
            S("v_permlane16_swap_b32 v%d, v%d" % (r + 1, r + 3))
            S("buffer_store_dwordx4 %s, v%d, %s, %s offen offset:%d sc1" % (vr(r, 4), VX, sq(SO), "s%d" % S8K if tb else "0", kb * 64))
    a.label("L_hot_end")
    gen2.stamp_store(a, 5, 32, 20, 5)
    if P["TR0"] is not None:
        srd(a, 64, 20, 0x1000000, gen2.WS_STAMP + 0x100000)
        a("s_lshl_b32 s68, s2, 10")
        a("s_lshl_b32 s69, s3, 8")
        a("s_add_u32 s68, s68, s69")
        a("v_lshlrev_b32 v32, 2, v%d" % VL)
        a("buffer_store_dword v255, v32, s[64:67], s68 offen")
    a("s_endpgm")
    for ls, lb, ld, cmp_ in slow:
        lp = a.uid("spin")
        a.label(ls)
        a("s_mov_b32 s33, %d" % SPIN)
        a.label(lp)
        a(ld)
        a("s_waitcnt vmcnt(0)")
        a(cmp_[0])
        a(cmp_[1])
        a("s_nop 1")
        a("s_cmp_eq_u64 s[%d:%d], 0" % (SCMP, SCMP + 1))
        a("s_cbranch_scc1 %s" % lb)
        a("s_sub_u32 s33, s33, 1")
        a("s_cmp_lg_u32 s33, 0")
        a("s_cbranch_scc1 %s" % lp)
        a("s_branch %s" % lb)
    a.label(end)
    a("s_endpgm")
    a.end_kernel(name, 256, AX1 + 16, 102)
    a.launch(name, 256, 256, LDS_BYTES)
    return S, dict(I5=I5, I6=I6, IE=IE)


def walk(S, k):
    S("s_mov_b64 vcc, -1")
    for q in range(3):
        S("s_cmp_eq_u32 s3, %d" % q)
        S("s_cbranch_scc1 L_wk%d_%d" % (k, q))
    S("s_branch L_wk%d_3" % k)
    S.label("L_wk%d_end" % k)
    S("s_mov_b64 vcc, 0")


def place_stubs(a):
    import subprocess, re, os, tempfile
    L = a.lines
    ks = [int(l.split()[-1]) for l in L if "@range" in l and not l.endswith("-1")]
    d = tempfile.mkdtemp()
    n0 = len(L)
    L += ["L_wk%d_%d:" % (k, q) for k in ks for q in range(4)]
    open(d + "/t.s", "w").write(a.text())
    del L[n0:]
    subprocess.run(["clang", "-x", "assembler", "-target", "amdgcn-amd-amdhsa", "-mcpu=gfx950", "-c", d + "/t.s", "-o", d + "/t.o"], check=True)
    dis = subprocess.run(["llvm-objdump", "-d", "--mcpu=gfx950", d + "/t.o"], capture_output=True, text=True).stdout.split("\n")
    k0 = [i for i, l in enumerate(dis) if l.endswith("<L_hot>:")][0]
    addrs = [int(re.search(r"// ([0-9A-F]+):", l).group(1), 16) for l in dis[k0:] if "//" in l]
    i0, i1 = L.index("L_hot:"), L.index("L_hot_end:")
    out, n, ns, pg, cur, cnt = [], 0, 0, 1, None, {}
    inwalk = False
    for l in L[i0:i1]:
        if "@range" in l:
            cur = int(l.split()[-1])
            cnt[cur] = 0
            if cur < 0:
                cur = None
        if parse(l) is not None:
            off = addrs[n] - addrs[0] + 4 * ns
            if off >= 4096 * pg and not inwalk:
                pg += 1
                if cur is not None:
                    out += ["L_wk%d_%d:" % (cur, cnt[cur]), "  s_cbranch_vccnz L_wk%d_%d" % (cur, cnt[cur] + 4)]
                    cnt[cur] += 1
                    ns += 1
            n += 1
            assert "vcc" not in l or l.strip() in ("s_mov_b64 vcc, -1", "s_mov_b64 vcc, 0"), l
            if l.strip() == "s_mov_b64 vcc, -1":
                inwalk = True
            if l.strip() == "s_mov_b64 vcc, 0":
                inwalk = False
        out.append(l)
    L[i0:i1] = out
    for i, l in enumerate(L):
        m = re.fullmatch(r"(\s*s_(?:cbranch_\w+|branch)) L_wk(\d+)_(\d+)", l)
        if m and int(m.group(3)) >= cnt[int(m.group(2))]:
            L[i] = "%s L_wk%s_end" % (m.group(1), m.group(2))


HEADER = gen2.HEADER.replace("gen2", "gen3")


def build(stamps=False, verbose=False, **over):
    old = dict(P)
    P.update(over)
    gen2.STAMPS = stamps
    VMCOST[0] = P["VMC"]
    a = Asm()
    gen2.gen_k012b(a)
    S, info = gen_kb(a)
    a.label("L_code_end")
    a("s_endpgm")
    a(".fill 2048, 4, 0xbf810000")
    place_stubs(a)
    if verbose:
        print(info, "nops", S.nops, "events", S.events)
        print("\n".join(S.log))
        print(S.lead_report())
    P.clear()
    P.update(old)
    return a.text(HEADER)


if __name__ == "__main__":
    open("/code/%s.s" % NAME, "w").write(build(False, True))
    open("g3_st.s", "w").write(build(True))
```

```python
import re

TRANS = ("v_exp_f32", "v_rcp_f32", "v_rsq_f32", "v_sqrt_f32", "v_log_f32")


def regs(tok):
    tok = tok.strip()
    m = re.fullmatch(r"-?(?:abs\()?([vas])(\d+)\)?", tok)
    if m:
        return {(m.group(1), int(m.group(2)))}
    m = re.fullmatch(r"([vas])\[(\d+):(\d+)\]", tok)
    if m:
        return {(m.group(1), i) for i in range(int(m.group(2)), int(m.group(3)) + 1)}
    if tok == "vcc":
        return {("s", 106), ("s", 107)}
    if tok in ("exec", "exec_hi", "exec_lo"):
        return {("x", 0)}
    if tok == "m0":
        return {("m", 0)}
    return set()


_pc = {}


def parse(line):
    if line in _pc:
        return _pc[line]
    d = _parse(line)
    _pc[line] = d
    return d


def _parse(line):
    line = line.split(";")[0].strip()
    if not line or line.startswith(".") or line.endswith(":"):
        return None
    p = line.split(None, 1)
    op = p[0]
    ops = []
    if len(p) > 1:
        body = re.sub(r"(op_sel\w*|neg_\w+|quad_perm):\[[^\]]*\]", "", p[1])
        ops = [o.strip().split(" ")[0] for o in body.split(",")]
    d = dict(op=op, text=line, W=set(), R=set(), kind="o")
    R = lambda *idx: set().union(*[regs(ops[i]) for i in idx if i < len(ops)]) if idx else set()
    allr = set().union(*[regs(o) for o in ops]) if ops else set()
    rest = lambda k: set().union(*[regs(o) for o in ops[k:]]) if len(ops) > k else set()
    if op.startswith("v_mfma"):
        d.update(kind="mfma", W=R(0), A=R(1, 2), C=R(3), R=R(1, 2, 3))
    elif op.startswith("v_cmp"):
        d.update(kind="valu", W=R(0), R=R(1, 2))
    elif op.startswith("v_readfirstlane") or op.startswith("v_readlane"):
        d.update(kind="valu", W=R(0), R=R(1), rfl=True)
    elif op.startswith("v_permlane") or op.startswith("v_swap"):
        d.update(kind="valu", W=R(0, 1), R=R(0, 1), perm=op.startswith("v_permlane"))
    elif op.startswith("v_") and "_co_" in op:
        d.update(kind="valu", W=R(0, 1), R=rest(2))
    elif op.startswith("v_"):
        d.update(kind="valu", W=R(0), R=rest(1))
        if op.startswith("v_fmac"):
            d["R"] |= d["W"]
        if "dpp" in op:
            d["dpp"] = True
            d["R"] |= d["W"]
        if op in TRANS:
            d["trans"] = True
    elif op.startswith("buffer_load") or op.startswith("global_load"):
        if line.endswith("lds"):
            d.update(kind="vmem", R=allr | {("m", 0)}, dma=True)
        else:
            d.update(kind="vmem", W=R(0), R=rest(1))
    elif op.startswith("buffer_store") or op.startswith("buffer_atomic"):
        d.update(kind="vmem", R=allr, sdata=R(0) if ("x4" in op or "x3" in op) else set())
    elif op.startswith("ds_read") or op.startswith("ds_add_rtn"):
        d.update(kind="ds", W=R(0), R=rest(1))
    elif op.startswith("ds_"):
        d.update(kind="ds", R=allr)
    elif op.startswith("s_load") or op.startswith("s_mem"):
        d.update(kind="smem", W=R(0), R=rest(1))
    elif op.startswith("s_"):
        nw = op.startswith(("s_cmp", "s_bitcmp", "s_cbranch", "s_branch", "s_waitcnt", "s_nop", "s_barrier"))
        d.update(kind="salu", W=set() if nw else R(0), R=allr if nw else rest(1))
    d["ws"] = (int(ops[0]) + 1) if op == "s_nop" else 1
    return d


def isv(s):
    return {r for r in s if r[0] in "va"}


def iss(s):
    return {r for r in s if r[0] == "s"}


def pair_need(p, c):
    need = 0
    if p["kind"] == "valu":
        if c["kind"] == "mfma" and isv(p["W"]) & c["R"]:
            need = 2
        if c.get("perm") and isv(p["W"]) & c["R"]:
            need = max(need, 2)
        if p.get("perm") and c["kind"] in ("valu", "vmem", "ds") and p["W"] & c["R"]:
            need = max(need, 2)
        if c.get("dpp") and isv(p["W"]) & c["R"]:
            need = max(need, 2)
        if c.get("rfl") and isv(p["W"]) & c["R"]:
            need = max(need, 1)
        if p.get("trans") and c["kind"] == "valu" and not c.get("trans") and p["W"] & c["R"]:
            need = max(need, 1)
        if c["kind"] == "valu" and iss(p["W"]) & c["R"]:
            need = max(need, 2)
        if c["kind"] == "vmem" and iss(p["W"]) & c["R"]:
            need = max(need, 5)
        if c["kind"] in ("salu", "smem") and iss(p["W"]) & c["R"]:
            need = max(need, 2)
    if p["kind"] == "mfma":
        if c["kind"] == "mfma":
            if p["W"] & c["A"]:
                need = 8
            if p["W"] & c["C"] and p["W"] != c["C"]:
                need = max(need, 6)
            if p["W"] & c["W"] and p["W"] != c["C"]:
                need = max(need, 8)
        elif c["kind"] in ("valu", "vmem", "ds") and p["W"] & (c["R"] | c["W"]):
            need = 8
        if c["kind"] == "valu" and p["C"] & c["W"]:
            need = max(need, 3)
    if p["kind"] == "salu" and ("m", 0) in p["W"] and c.get("dma"):
        need = max(need, 1)
    if p.get("sdata") and p["sdata"] & c["W"]:
        need = max(need, 2)
    return need


VMCOST = [8]


def cost_of(ins):
    d = parse(ins)
    if d is None:
        return 0
    if d.get("trans"):
        return 8
    if d["kind"] == "vmem":
        return VMCOST[0]
    if d["kind"] == "mfma":
        return 16
    if d["op"].startswith("v_pk_"):
        return 8
    return 4 * d["ws"]


class Item:
    def __init__(self, ins, at=0, delay=0, after=(), sets=None, needv=(), needd=(), vtag=None, dtag=None, bar=False, pause=0, fn=None):
        self.ins = [ins] if isinstance(ins, str) else list(ins)
        self.at, self.delay, self.after, self.sets = at, delay, set(after), sets
        self.needv, self.needd, self.vtag, self.dtag = set(needv), set(needd), vtag, dtag
        self.fn = fn
        self.pause = pause
        self.bar = bar
        self.cost = sum(cost_of(i) for i in self.ins)


class Stream:
    def __init__(self, items, name="", budget=None, rate=None):
        self.items = list(items)
        self.name = name
        self.last = -10 ** 9
        self.lastbar = -1
        self.budget = budget
        self.rate = rate
        self.credit = 0.0


class Page:
    def __init__(self, key, src, at=0, after=(), glue=False):
        self.pause = 0
        self.glue = glue
        self.key, self.src = key, src
        self.at, self.after = at, set(after)
        self.addr = None
        self.issued = None
        self.visible = False
        self.freed = False
        self.reads = []
        self.nreads = 0
        self.want = self.need = 10 ** 9


class AGroup:
    def __init__(self, tag, ops, at=0, after=()):
        self.tag, self.ops, self.at, self.after = tag, ops, at, set(after)
        self.dl = 10 ** 9


class Sched:
    def __init__(self, a, nf, fragreg, dsbase, page0, npages, m0base):
        self.a = a
        self.hist = []
        self.vq, self.dq = [], []
        self.vdone = self.ddone = -1
        self.nf, self.fragreg, self.dsbase = nf, fragreg, dsbase
        self.free = [page0 + 4096 * i for i in range(npages)]
        self.m0base = m0base
        self.events = {}
        self.streams = []
        self.pend = []
        self.lastvm = -10 ** 9
        self.i = 0
        self.nbar = 0
        self.sreg = {}
        self.LG = 10
        self.LGMIN = 0
        self.BOTH = False
        self.nops = 0
        self.log = []
        self.leads = []
        self.vnext = -1e9
        self.vstep = 1.0

    def short(self, ins):
        c = parse(ins)
        if c is None:
            return 0
        dist, worst = 0, 0
        for p in reversed(self.hist[-12:]):
            worst = max(worst, pair_need(p, c) - dist)
            dist += p["ws"]
        return worst

    def ins(self, ins, vtag=None, dtag=None):
        for l in ins.split("\n"):
            l = l.strip()
            if not l:
                continue
            if l.endswith(":"):
                self.a.label(l[:-1])
                continue
            c = parse(l)
            if c is None:
                self.a(l)
                continue
            n = self.short(l)
            if n > 0:
                self.a("s_nop %d" % (n - 1))
                self.hist.append(parse("s_nop %d" % (n - 1)))
                self.nops += n
            self.a(l)
            self.hist.append(c)
            if c["kind"] == "vmem":
                self.vq.append(vtag)
                self.lastvm = self.i
            elif c["kind"] == "ds":
                self.dq.append(dtag)
            elif c["op"] == "s_waitcnt":
                m = re.search(r"vmcnt\((\d+)\)", l)
                if m:
                    self.vdone = max(self.vdone, len(self.vq) - 1 - int(m.group(1)))
                m = re.search(r"lgkmcnt\((\d+)\)", l)
                if m:
                    self.ddone = max(self.ddone, len(self.dq) - 1 - int(m.group(1)))

    def __call__(self, ins, vtag=None, dtag=None):
        self.ins(ins, vtag, dtag)

    def label(self, n):
        self.a.label(n)

    def uid(self, b):
        return self.a.uid(b)

    def emit(self, lst, vtag=None, dtag=None):
        for x in lst:
            self.ins(x, vtag, dtag)

    def _cnt(self, q, done, tags, cap):
        last = -1
        for k in range(len(q) - 1, done, -1):
            if q[k] in tags:
                last = k
                break
        if last < 0:
            return None
        return min(cap, len(q) - 1 - last)

    def wait(self, v=(), d=(), lg=None):
        nv = self._cnt(self.vq, self.vdone, set(v), 63) if v else None
        nd = self._cnt(self.dq, self.ddone, set(d), self.LG if lg is None else lg) if d else None
        if nv is None and nd is None:
            return 0
        self.ins("s_waitcnt" + (" vmcnt(%d)" % nv if nv is not None else "") + (" lgkmcnt(%d)" % nd if nd is not None else ""))
        return 4

    def setup(self, main, frags, pages, agroups, bars, margin=6, lat=60, cuts=()):
        self.main, self.frags = main, frags
        self.pages = {p.key: p for p in pages}
        self.pq = list(pages)
        self.aq = list(agroups)
        self.bars = sorted(bars)
        self.lat = lat
        self.cuts = sorted(cuts)
        order, fu, lu = [], {}, {}
        af = {}
        for i, (t, f, at) in enumerate(main):
            if f is not None:
                if f not in fu:
                    fu[f] = i
                    order.append(f)
                lu[f] = i
            for x in (at if isinstance(at, list) else [at]):
                if x is not None and x not in af:
                    af[x] = i
        self.forder, self.fu, self.lu = order, fu, lu
        self.fbuf = {f: k % self.nf for k, f in enumerate(order)}
        self.rq = []
        for k, f in enumerate(order):
            e = lu[order[k - self.nf]] + 1 if k >= self.nf else 0
            assert e <= fu[f], (f, e, fu[f])
            for r, rd in enumerate(frags[f]):
                self.rq.append((e, f, r))
                p = self.pages[rd[0]]
                p.nreads += 1
                p.want = min(p.want, e)
                p.need = min(p.need, max([e, fu[f] - margin] + [c for c in cuts if c <= fu[f]]))
        for p in pages:
            assert p.nreads, p.key
            b = sorted(x for x in self.bars + self.cuts if x <= p.want)
            p.dl = b[-1] if b else 0
        for g in agroups:
            g.dl = af[g.tag]
        for q in (pages, agroups):
            for k in range(len(q) - 2, -1, -1):
                q[k].dl = min(q[k].dl, q[k + 1].dl)
        self.margin = margin
        self.seenC = set()

    def add(self, st):
        self.streams.append(st)
        return st

    def barrier(self, nxt=None):
        i = self.i
        if nxt is None:
            later = sorted(x for x in self.bars + self.cuts if x > i)
            nxt = later[0] if later else 10 ** 9
        vis = []
        for p in self.pages.values():
            if p.visible:
                continue
            if p.need < nxt:
                if p.issued is None:
                    self.flush_until(p)
                vis.append(p)
            elif p.want < nxt and p.issued is not None and p.issued <= i - self.lat:
                vis.append(p)
        self.wait(v={("W", p.key) for p in vis})
        landed = set(self.vq[:self.vdone + 1])
        vis = [p for p in self.pages.values() if not p.visible and ("W", p.key) in landed]
        done = set(self.dq[:self.ddone + 1])
        self.ins("s_barrier")
        self.nbar += 1
        for p in vis:
            p.visible = True
        for p in self.pages.values():
            if p.visible and not p.freed and len(p.reads) == p.nreads and all(t in done for t in p.reads):
                p.freed = True
                self.free.append(p.addr)

    def ok_after(self, s):
        return all(e in self.events for e in s)

    def pick(self, force=False):
        c = []
        if self.pq:
            p = self.pq[0]
            if len(self.free) > p.glue and p.at <= self.i and self.ok_after(p.after):
                c.append((p.dl, 0, p))
        if self.aq:
            g = self.aq[0]
            if g.at <= self.i and self.ok_after(g.after):
                c.append((g.dl, 1, g))
        if not c:
            return False
        dl, kind, x = min(c, key=lambda t: (t[0], t[1]))
        if kind == 0:
            self.pend = []
            for _ in range(1 + x.glue):
                x = self.pq.pop(0)
                x.addr = self.free.pop(0)
                pre, ld, imm = x.src
                ops = [o for o in pre]
                ops.append("s_add_u32 m0, %s, %d" % (self.m0base, x.addr - imm))
                ops.append(ld)
                self.pend += [(o, ("W", x.key), x) for o in ops]
        else:
            self.aq.pop(0)
            self.pend = [(o, x.tag, None) for o in x.ops]
        self.pdl = dl
        return True

    def pend_step(self):
        o, tag, pg = self.pend.pop(0)
        m = re.fullmatch(r"s_mov_b32 (s\d+), (\S+)", o)
        if m:
            if self.sreg.get(m.group(1)) == m.group(2):
                return 0
            self.sreg[m.group(1)] = m.group(2)
        self.ins(o, vtag=tag)
        if parse(o)["kind"] == "vmem":
            self.leads.append((self.i, "W" if pg is not None else "A", self.pdl - self.i))
            self.vnext = min(max(self.vnext, self.i - 1.0), self.i + 1.0) + self.vstep
            if pg is not None:
                pg.issued = self.i
                self.vnext += pg.pause
        return cost_of(o)

    def flush_until(self, p):
        n = 0
        while p.issued is None:
            if not self.pend:
                assert self.pick(), ("page cannot be issued", p.key, self.i, len(self.free))
            self.pend_step()
            n += 1
        self.log.append("gap %d: forced issue up to page %s (%d ops)" % (self.i, p.key, n))

    def take_pages(self, n):
        r = []
        for _ in range(n):
            x = self.pq.pop(0)
            x.addr = self.free.pop(0)
            pre, ld, imm = x.src
            r.append(list(pre) + ["s_add_u32 m0, %s, %d" % (self.m0base, x.addr - imm), ld])
            x.issued = -10 ** 6
            self.vq.append(("W", x.key))
        return r

    def pump(self, n, only=None):
        k = 0
        while k < n:
            if not self.pend:
                sv = None
                if only == "W":
                    sv, self.aq = self.aq, []
                if only == "A":
                    sv, self.pq = self.pq, []
                ok = self.pick()
                if only == "W":
                    self.aq = sv
                if only == "A":
                    self.pq = sv
                if not ok:
                    break
            isvm = parse(self.pend[0][0])["kind"] == "vmem"
            self.pend_step()
            k += isvm
        self.vnext = self.i
        return k

    def read_ready(self):
        if not self.rq:
            return False
        e, f, r = self.rq[0]
        return e <= self.i and self.pages[self.frags[f][r][0]].visible

    def do_read(self):
        e, f, r = self.rq.pop(0)
        pk, kind, off, tmpl, half = self.frags[f][r]
        p = self.pages[pk]
        base, o = self.dsbase(kind, p.addr + off)
        tag = ("F", f, r)
        self.ins(tmpl.format(d=self.fragreg(self.fbuf[f], half), b=base, o=o), dtag=tag)
        p.reads.append(tag)

    def reads(self, n=99):
        k = 0
        while k < n and self.read_ready():
            self.do_read()
            k += 1
        return k

    def item_ready(self, st):
        if not st.items:
            return False
        it = st.items[0]
        if it.at > self.i or st.last + it.delay > self.i or not self.ok_after(it.after):
            return False
        if it.bar and self.nbar <= st.lastbar:
            return False
        if it.needd and self.LGMIN:
            n = self._cnt(self.dq, self.ddone, it.needd, 99)
            if n is not None and n < self.LGMIN:
                return False
        return all(self.short(x) == 0 for x in it.ins[:2])

    def do_item(self, st):
        it = st.items.pop(0)
        c = self.wait(v=it.needv, d=it.needd)
        self.emit(it.ins, vtag=it.vtag, dtag=it.dtag)
        if it.fn:
            it.fn()
        st.last = self.i
        st.lastbar = self.nbar
        if it.pause:
            self.vnext = max(self.vnext, self.i + it.pause)
        if it.sets:
            self.events[it.sets] = self.i
        return c + it.cost

    def drain(self, st, upto=None, every=0, nmax=0, only=None):
        n = 0
        while st.items and not (upto and upto in self.events):
            it = st.items[0]
            assert self.ok_after(it.after), (st.name, it.after)
            if it.bar and self.nbar <= st.lastbar:
                self.barrier()
            self.do_item(st)
            n += 1
            if every and n % every == 0 and nmax > 0:
                vn = self.vnext
                nmax -= self.pump(1, only)
                self.vnext = max(vn, self.vnext)
        if n:
            self.log.append("gap %d: drained %d items of %s" % (self.i, n, st.name))

    def run(self, end, budget=lambda i: 8, vsp=lambda i: 5, urgent=24, hooks={}, pair=lambda i: False):
        while self.i < end:
            i = self.i
            if i in hooks:
                hooks[i]()
            B = budget(i)
            if i in self.bars:
                self.barrier()
                B -= 8
            tmpl, f, at = self.main[i]
            if not self.pend:
                self.pick()
            vm_now = False
            if self.pend:
                isvm = parse(self.pend[0][0])["kind"] == "vmem"
                self.vstep = vsp(i)
                due = i - self.lastvm >= 2 and (self.pdl - i < urgent or i >= self.vnext)
                if isvm and due and B >= 8:
                    vm_now = True
            late = self.read_ready() and self.fu[self.rq[0][1]] - i <= self.margin
            both = vm_now and late and self.BOTH
            if vm_now and (not late or both):
                B -= self.pend_step()
            if not vm_now or late:
                n = 0
                while self.read_ready() and ((B >= 4 or both) and n < 2 or self.fu[self.rq[0][1]] - i <= 2):
                    if n == 1 and not pair(i) and i - self.rq[0][0] < 2 and self.fu[self.rq[0][1]] - i > self.margin:
                        break
                    self.do_read()
                    B -= 4
                    n += 1
            while self.pend and B >= 4 and parse(self.pend[0][0])["kind"] != "vmem":
                B -= self.pend_step()
            for st in self.streams:
                lim = B if st.budget is None else B + st.budget(i)
                if st.rate and st.items and st.items[0].at <= i and self.ok_after(st.items[0].after):
                    st.credit = min(st.credit + st.rate(i), max(24, 2 * st.rate(i)))
                while self.item_ready(st) and (lim >= st.items[0].cost or (lim >= 8 and st.items[0].cost > 8)
                                               or (st.items[0].cost and st.credit + max(lim, 0) >= 2 * st.items[0].cost)):
                    c = self.do_item(st)
                    lim -= c
                    B -= c
                    st.credit = max(st.credit - c, -32)
            ats = [x for x in (at if isinstance(at, list) else [at]) if x is not None]
            for x in ats:
                while any(g.tag == x for g in self.aq) or any(t == x for o, t, p in self.pend):
                    if not self.pend:
                        assert self.pick(), ("operand cannot be issued", x, i)
                    self.pend_step()
                    self.log.append("gap %d: late operand %s" % (i, x))
            if f is not None:
                while any(r[1] == f for r in self.rq[:4]):
                    assert self.read_ready(), ("fragment not readable", f, i)
                    self.do_read()
                self.wait(v=ats, d={("F", f, r) for r in range(len(self.frags[f]))})
                t = tmpl.format(W=self.fragreg(self.fbuf[f], None))
            else:
                self.wait(v=ats)
                t = tmpl
            self.ins(t)
            self.i += 1


    def lead_report(self, step=64):
        r = []
        for k in range(0, self.i, step):
            w = [l for i, t, l in self.leads if k <= i < k + step and t == "W"]
            x = [l for i, t, l in self.leads if k <= i < k + step and t == "A"]
            r.append("%d:%dW%s/%dA%s" % (k, len(w), ">%d" % min(w) if w else "", len(x), ">%d" % min(x) if x else ""))
        return " ".join(r)
```

```python
import gen2
from gen2 import NAME, f32bits, srd, xsum, xred, round_bf16_pair, ln_finish, mfma, touch, lines
from asmlib import *
from sched import *

WS_MOD, MODP, WS_STAT, WS_FLAG = 0, 6144 * 4, 0x40000, 0x80000
WS_H1, WS_O, WS_H2, WS_XCH, WS_HH, WS_X1 = 0x100000, 0x500000, 0x900000, 0xD00000, 0x1100000, 0x2000000
WS_HX = 0x2400000
WS_SIZE = 0x2800000
WS_STAMP = 0x3000000
ACT_BYTES, WF_BYTES, KBS, NLOG2E, SPIN, FS = 2048 * 1024 * 2, 1024 * 3584 * 2, 0x20000, 0xbfb8aa3b, 0x40000, 6
FL_HH, FL_O, FL_H2, FL_H1, FL_EPOCH = [WS_FLAG + (x << FS) for x in (0, 1024, 3072, 4096, 5300)]
OOB = 0x40000000

P = dict(
    TQ=9, T5=10, T6=4, NA=12, NF=11, BAR2=24, BAR5=56, BAR6=32, BAR3=16,
    ILV=9, N0F=0, NWQ=0, XD=1, URG5=60, R2AT=1, W2AT=85, CT1=660, MODAT=44, T0R=16, S0AT=0, EAT=1, FH2=16, OAT=40, NTX=2, PF6=0, PZAT=-1000, PZD=2, DL1=0, BK1=0, DLS=0, BKS=0, DL2=0, BK2=0, BKX=0, CH2=160, MODE=0, LGMIN=8, XB=6, BUD2=12, BUD2B=12, BUD3=12, VSP2=4, VSP3=3, VSP5=5.5, VSP5D=5.5, VSP6=3.8, LG=13,
    GB_A=16, GB_B=6, GB_C=7, GB_D=3, ATR=32,
    FD_A=44, FD_B=60, FD_C=60, FD_D=60, FD_OA=54, FD_OB=40,
    CA=-50, CB=6 * 32, CC=10 * 32, CD=18 * 32, PLAT=40, COA=-40, OPRE=20, OEV=5, QUIETA=0, QUIETB=40, COB=90, CH1=30,
    PF0=60, PFSTEP=84, PFN=11, INPOS=-36, FINR=12, OUTF="_sc1", NF1=2, W5AT=128, W5N=0,
    LEAD5=190, LEADA=190, DEEP=22, PAIR=2, VMC=8,
    SPQ=17, SP5=22, N0=36, N0L=0, N0M=18, TU="Le.Gl.Gl.Gl", ROT=128, P2FAKE=0, P2U=15, P2S=1, P2AT=0, P2PQ=96, P2PS=0, P2SP=0, P2G0=190, P2GS=60, HXP=-24, QUIETH=0, CT0=2, WALK=67,
    MARK=0, TR0=None, TRS=56, DBG=0,
)

MISC = 12288
NPAGES = 37
LDS_BYTES = MISC + NPAGES * 4096
X0, VEC, SILT = 8192, 10240, 11264

VL, VA5, VW1, VW2, VDS = 224, 225, 226, 227, 228
VA3, VW3, VW6S, VFA, VP, VTAG, VF0, VTA, VTD, VX, VVEC, VT16, VA6, VW6K, VFB = range(240, 255)
VDQ, VDH, VWQ, VWQ2, VAQ, VH, VFL, VXW, VXO, BP, HK, HP, VX0, VXR = 176, 182, 185, 186, 187, 188, 189, 191, 192, 193, 196, 200, 208, 209
VM, VS1, VS2, VST = 210, 211, 212, 213
VDG, VWM2, VGR, GD2 = 214, 217, 218, 220
SIL2 = [160, 164, 168, 172, 96, 100, 104, 108]
HF = 112
VHS, VHR, VHT, ZS, ZR = 188, 182, 183, 144, 160
SW, SWO, SG, SU, SD, SX, SO, ST, SQ = 4, 8, 12, 16, 44, 48, 52, 56, 80
SMD, SC = 60, 64
SA_, SWF, SM0, SNL = 40, 41, 42, 43
SHA, SHB, SHC, SHC2 = 64, 65, 20, 21
R0, R1 = 0, 1
S8K, SCB, SCMP, SMK = 38, 39, 68, 24
SOA, SFOP = 78, 79
SFOC, SEXP = 88, 89
SFP, SFC, SF2P, SF2C, SSR, SSW, SIN, SOUTB, SH2, SH2B, STAG, SMS = 90, 91, 92, 93, 94, 95, 96, 97, 98, 99, 100, 101
CMP = "s[%d:%d]" % (SCMP, SCMP + 1)


def sq(s):
    return "s[%d:%d]" % (s, s + 3)


def srd_fin(a, d, nbytes):
    a("s_mov_b32 s%d, 0x%x" % (d + 2, nbytes))
    a("s_mov_b32 s%d, 0x20000" % (d + 3))


def cap(fn, *args):
    b = Asm()
    fn(b, *args)
    return [x for x in lines(b) if not x.startswith("s_nop")]


def items(lst, **kw):
    r = [Item(x) for x in lst]
    if r and kw:
        r[0] = Item(lst[0], **kw)
    return r


def code_touch(S, vo, vd, lane=VL):
    lab = S.uid("pc")
    return ["s_getpc_b64 s[30:31]", lab + ":",
            "s_lshr_b32 s32, s2, 4", "s_lshl_b32 s32, s32, 2", "s_add_u32 s32, s32, s3", "s_lshl_b32 s32, s32, 13",
            "v_lshlrev_b32 v%d, 7, v%d" % (vo, lane), "v_add_u32 v%d, s32, v%d" % (vo, vo),
            "v_min_u32 v%d, L_code_end-%s-4, v%d" % (vo, lab, vo),
            "global_load_dword v%d, v%d, s[30:31]" % (vd, vo)]


TR = "ds_read_b64_tr_b16 {d}, v{b} offset:{o}"


def acc2(hd, tb, seg, fb):
    return hd * 48 + (tb * 6 + seg * 2 + fb) * 4


def acc5(tb, m, grp, jj):
    if grp == 2:
        return ((tb * 2 + m) * 2 + jj) * 4 if jj < 2 else 64 + (tb * 2 + m) * 4
    return 96 + ((tb * 2 + m) * 4 + jj) * 4


def wo_row(p):
    return 64 * (p & 15) + 32 * (p >> 4)


def wd_row(p):
    if p < 16:
        return 448 * (p >> 2) + (64, 192, 224, 352)[p & 3]
    if p < 24:
        q = p - 16
        return 448 * (q >> 1) + (96, 320)[q & 1]
    t, h = (p - 24) & 15, (p - 24) >> 4
    return 448 * (t >> 2) + 128 * (t & 3) + 32 * h


def walk(S, k, site=None):
    S("s_mov_b64 vcc, -1")
    for q in range(3):
        S("s_cmp_eq_u32 s3, %d" % q)
        S("s_cbranch_scc1 L_wk%d_%d" % (k, q))
    S("s_branch L_wk%d_3" % k)
    if site == "a":
        S.label("L_wkret%d_a" % k)
    else:
        S.label("L_wk%d_end" % k)
        if site == "b":
            S("s_bitcmp1_b32 s2, 3")
            S("s_cbranch_scc1 L_wkret%d_a" % k)
    S("s_mov_b64 vcc, 0")


def gen(a, name):
    TQ, T5, T6, NA, NF = P["TQ"], P["T5"], P["T6"], P["NA"], P["NF"]
    AWF = NA * 16
    AX1 = AWF + NF * 4
    assert AX1 + 16 <= 252 and TQ <= 11

    def fragreg(buf, half):
        return ar(AWF + buf * 4, 4) if half is None else ar(AWF + buf * 4 + 2 * half, 2)

    def dsbase(kind, addr):
        w = addr >> 16
        r = VDH + w if kind == "h" else VDG + w if kind == "g" else (VDQ + 2 * w + kind[1] if isinstance(kind, tuple) else VDS + 4 * w + kind)
        return r, addr - (w << 16)

    a.begin_kernel(name)
    S = Sched(a, NF, fragreg, dsbase, MISC, NPAGES, "s%d" % SM0)
    S.LG = P["LG"]
    S.BOTH = True
    end = S.uid("end")

    mk = dict(n=0, pend=[], names={})

    def mark(nm, now=False):
        if not P["MARK"] or (P["MARK"] & 2 and nm in ("setup", "gland", "xland", "lnorm")):
            return
        k = mk["names"].setdefault(nm, len(mk["names"]))
        assert k < 32
        S("; @mark %d %s" % (k, nm))
        b = 70 + 4 * (mk["n"] & 1)
        mk["n"] += 1
        for pb, pk in [x for x in mk["pend"] if x[0] == b]:
            S("v_writelane_b32 v255, s%d, %d" % (pb, 2 * pk))
            S("v_writelane_b32 v255, s%d, %d" % (pb + 2, 2 * pk + 1))
        mk["pend"] = [x for x in mk["pend"] if x[0] != b]
        S("s_nop 3")
        S("s_memtime s[%d:%d]" % (b, b + 1))
        S("s_memrealtime s[%d:%d]" % (b + 2, b + 3))
        mk["pend"].append((b, k))
        if now:
            S("s_waitcnt lgkmcnt(0)")
            for pb, pk in mk["pend"]:
                S("v_writelane_b32 v255, s%d, %d" % (pb, 2 * pk))
                S("v_writelane_b32 v255, s%d, %d" % (pb + 2, 2 * pk + 1))
            mk["pend"] = []

    main, frags, pages, ags = [], {}, [], []
    seen = set()
    G3, G5, G6 = 16, 32, 64

    def vsing(s, q):
        return 96 + ((s - 8) * 2 + (q >> 1)) * 16 + (q & 1) * 4

    def areg(gs, q):
        if G6 + 8 <= gs < G6 + 12:
            return vr(vsing(gs - G6, q), 4)
        return ar((gs % NA) * 16 + q * 4, 4)

    def mm(acc, f, gs, x, swap=False, sub=None):
        c = vr(acc, 4) if (acc, f[0]) in seen else "0"
        seen.add((acc, f[0]))
        main.append((mfma(vr(acc, 4), x, "{W}", c) if swap else mfma(vr(acc, 4), "{W}", x, c), f, ("A", gs) if sub is None else ("A", gs, sub)))

    def page(key, srd_, v, soff, njj, imm=0, nt=False, **kw):
        pages.append(Page(key, (["s_mov_b32 s%d, %d" % (SWF, soff)],
                                "buffer_load_dwordx4 v%d, %s, s%d offen offset:%d%s lds" % (v, sq(srd_), SWF, imm, " nt" if nt else ""), imm), **kw))
        for jj in range(njj):
            frags[key + (jj,)] = [(key, jj, hf * 2048, TR, hf) for hf in range(2)]

    tail2 = range(16 - TQ, 16)
    for u, seg in [(u, seg) for u in range(16 - TQ) for seg in (1, 2, 0)] + [(u, seg) for u in tail2 for seg in (1, 2)] + [(u, 0) for u in tail2]:
        for hd in range(2):
            key = (2, u, seg, hd)
            page(key, SQ, VWQ2 if seg == 2 else VWQ, u * 64 * 6144, 0, imm=(seg & 1) * 2048 + hd * 64, glue=(hd == 0))
            for fb in range(2):
                for kk in range(2):
                    frags[key + (fb, kk)] = [(key, ("q", fb), (2 * kk + hf) * 1024, TR, hf) for hf in range(2)]
    u2 = [(hd, u, (1, 2, 0)) for u in range(16 - TQ) for hd in range(2)]
    u2 += [(hd, u, segs) for hd in range(2) for segs in ((1, 2), (0,)) for u in tail2]
    pos2, end2 = {}, {}
    for i in range(8):
        page((1, i), SMD, VWM2, i * 32 * 12288, 0, nt=True, at=P["P2AT"])
        pages.insert(P["P2PQ"] + i * (1 + P["P2SP"]), pages.pop())
        pages[P["P2PQ"] + i * (1 + P["P2SP"])].pause = P["P2PS"] if (P["P2SP"] or i == 7) else 0
        frags[(1, i, "g")] = [((1, i), "g", hf * 2048, TR, hf) for hf in range(2)]
    np2 = 0
    for hd, u, segs in u2:
        pos2.setdefault((hd, u), len(main))
        if P["P2SP"]:
            if np2 < 8 and len(main) >= P["P2G0"] + np2 * P["P2GS"]:
                if np2 == 0:
                    IP0 = len(main)
                IP2 = len(main) - 7
                mm(GD2, (1, np2, "g"), u, vr(SIL2[np2], 4))
                np2 += 1
        elif (hd, u, segs[0]) == (1, P["P2U"], P["P2S"]):
            IP0 = IP2 = len(main)
            for i in range(8):
                mm(GD2, (1, i, "g"), u, vr(SIL2[i], 4))
        for seg in segs:
            for fb in range(2):
                for tb in (fb, 1 - fb):
                    for kk in range(2):
                        mm(acc2(hd, tb, seg, fb), (2, u, seg, hd, fb, kk), u, areg(u, kk * 2 + tb), seg == 2)
            end2[(hd, seg)] = len(main)
    I3 = len(main)
    ACC3 = 0
    for s in range(16):
        for kk in range(2):
            page((3, 2 * s + kk), SWO, VW3, wo_row(2 * s + kk) * 2048, 4)
    for s in range(8):
        for jj in range(4):
            for tb in (jj & 1, 1 - (jj & 1)):
                for kk in range(2):
                    mm(ACC3 + (tb * 4 + jj) * 4, (3, 2 * s + kk, jj), G3 + s, areg(G3 + s, kk * 2 + tb))
    for tb in range(2):
        for s in range(8, 16):
            for jj in range(4):
                for kk in range(2):
                    frags[(3, 2 * s + kk, jj + 4 * tb)] = frags[(3, 2 * s + kk, jj)]
                    mm(ACC3 + (tb * 4 + jj) * 4, (3, 2 * s + kk, jj + 4 * tb), G3 + s, areg(G3 + s, kk * 2 + tb), sub=tb)
        if tb == 0:
            IT0 = len(main)
    I5 = len(main)
    NV = 4
    u5 = [(s, g, tbs) for tbs in ((0, 2), (1, 3)) for s in range(0, NV, 2) for g in (2, 1)]
    u5 += [(s, g, (0, 1, 2, 3)) for s in range(NV, 32 - T5, 2) for g in (2, 1)]
    u5 += [(s, g, (0, 1, 2, 3)) for g in (2, 3, 4) for s in range(32 - T5, 32, 2)]
    pos5, end5 = {}, {}
    for s0, g, tbs in u5:
        pos5[(s0, g)] = len(main)
        again = tbs == (1, 3)
        if again and (s0, g) == (0, 2):
            IO = len(main)
        pg = 2 if g == 2 else 1
        if g != 4 and not again:
            for m in range(2):
                for s in (s0, s0 + 1):
                    page((5, s, m, pg), (SG, SU)[m], VW1 if pg == 1 else VW2, s * 32 * 7168, 4 if pg == 1 else 3, at=I3 + P["W5AT"])
        js = {1: [(m, jj) for m in range(2) for jj in range(4)], 2: [(0, 0), (0, 1), (1, 0), (1, 1), (0, 2), (1, 2)],
              3: [(m, jj) for m in range(2) for jj in (0, 1)], 4: [(m, jj) for m in range(2) for jj in (2, 3)]}[g]
        for n_, (m, jj) in enumerate(js):
            for tb in (tbs[::-1] if n_ & 1 else tbs):
                for s in (s0, s0 + 1):
                    frags[(5, s, m, pg, jj + 4 * again)] = frags[(5, s, m, pg, jj)]
                    mm(acc5(tb, m, pg, jj), (5, s, m, pg, jj + 4 * again), G5 + s, areg(G5 + s, tb))
            end5[(m, pg, jj)] = len(main)
    I6 = len(main)
    u6 = [(s, h, (0, 1, 2, 3)) for s in range(28 - T6) for h in (1, 0)]
    u6 += [(s, h, js) for h, js in ((1, (0, 1, 2, 3)), (0, (0, 1)), (0, (2, 3))) for s in range(28 - T6, 28)]
    pos6 = {}
    for s, h, js in u6:
        pos6.setdefault((s, h), len(main))
        if js[0] == 2 and s == 28 - T6:
            IK2 = len(main)
        for kk in range(2):
            if js[0] == 0:
                page((6, 2 * s + kk, h), SD, VW6S if h else VW6K, wd_row(2 * s + kk) * 2048, 4)
        for jj in js:
            for tb in (jj & 1, 1 - (jj & 1)):
                for kk in range(2):
                    mm(h * 32 + (tb * 4 + jj) * 4, (6, 2 * s + kk, h, jj), G6 + s, areg(G6 + s, kk * 2 + tb))
    IE = len(main)
    lastA = {}
    for i, (t, f, at) in enumerate(main):
        lastA[at[1]] = i
    NF1 = P["NF1"]
    for gs in range(G6 + 28):
        at = lastA[gs - NA] + 1 if gs >= NA else 0
        if G5 <= gs < G6:
            s = gs - G5
            ops = ["s_mov_b32 s%d, %d" % (SA_, WS_H2 + s * KBS)]
            ops += ["buffer_load_dwordx4 %s, v%d, %s, s%d offen offset:%d sc1" % (areg(gs, tb), VA5, sq(SW), SA_, tb * 1024) for tb in range(4)]
            aft = {"h2b"}
        else:
            s, v, base = (gs, VAQ, WS_H1) if gs < G3 else ((gs - G3, VA3, WS_O) if gs < G5 else (gs - G6, VA6, WS_HH))
            ops = []
            for kk in range(2):
                ops.append("s_mov_b32 s%d, %d" % (SA_, base + (2 * s + kk) * KBS))
                ops += ["buffer_load_dwordx4 %s, v%d, %s, s%d offen offset:%d sc1" % (areg(gs, kk * 2 + tb), v, sq(SW), SA_, tb * 1024) for tb in range(2)]
            if gs < G3:
                aft = {"h1a" if s < 4 else "h1b"}
            elif gs < G5:
                aft = {"chkOA" if s < 8 else "chkOB"}
            else:
                aft = {"chkA"} if s < 8 else ({"chkB", "stC"} if s < 12 else ({"chkC"} if s < 20 else {"chkD"}))
        if gs == G5:
            for tb in range(2):
                for g3 in range(G3 + 8, G5):
                    o2 = []
                    for kk in range(2):
                        o2 += ["s_mov_b32 s%d, %d" % (SA_, WS_O + (2 * (g3 - G3) + kk) * KBS),
                               "buffer_load_dwordx4 %s, v%d, %s, s%d offen offset:%d sc1" % (areg(g3, kk * 2 + tb), VA3, sq(SW), SA_, tb * 1024)]
                    ags.append(AGroup(("A", g3, tb), o2, at=lastA[g3 - NA] + 1, after={"chkOB"}))
        if G5 <= gs < G5 + NV or G3 + 8 <= gs < G5:
            continue
        ags.append(AGroup(("A", gs), ops, at=at, after=aft))
    bars = list(range(P["BAR2"], I3 - 8, P["BAR2"]))
    bars += list(range(I3 + P["BAR3"], I5, P["BAR3"])) + list(range(I5 + 18, I6, P["BAR5"])) + list(range(I6 + 2, IE - 16, P["BAR6"]))
    S.setup(main, frags, pages, ags, bars, cuts=(0, I5))
    for p in pages:
        if p.key[0] == 5:
            p.at = max(p.at, p.want - (P["LEAD5"] if p.want < I5 + P["DEEP"] * 56 else 10000), min(p.want - P["LEAD5"], I5 + (P["DEEP"] - 6) * 56))
    for g in ags:
        if G5 <= g.tag[1] < G6 - T5:
            g.at = max(g.at, g.dl - P["LEADA"])
    pre = S.take_pages(P["N0"])
    GPG = MISC + (NPAGES - 8) * 4096
    N0G = min(P["N0"], NPAGES - 8)

    slow = []

    def spin_here(ld, cmp_, first=0, back=0):
        lp, ok = S.uid("spin"), S.uid("ok")
        S("s_mov_b32 s33, %d" % SPIN)
        if first:
            S("s_sleep %d" % first)
        S.label(lp)
        S.emit(ld)
        S.emit(cmp_)
        S("s_cmp_eq_u64 %s, 0" % CMP)
        S("s_cbranch_scc1 %s" % ok)
        if back:
            S("s_sleep %d" % back)
        S("s_sub_u32 s33, s33, 1")
        S("s_cmp_lg_u32 s33, 0")
        S("s_cbranch_scc1 %s" % lp)
        S.label(ok)

    def flag_cmp(gen_):
        r = ["v_subrev_u32 v%d, s%d, v%d" % (VP, STAG, VP)]
        if gen_:
            r.append("v_subrev_u32 v%d, %d, v%d" % (VP, gen_, VP))
        return r + ["v_cmp_lt_u32 %s, %d, v%d" % (CMP, 7 - gen_, VP)]

    def flag_st(so, gen_):
        return ["v_add_u32 v%d, %d, v%d" % (VTD, gen_, VTAG), "buffer_store_dword v%d, v%d, %s, s%d offen sc1" % (VTD, VF0, sq(SW), so)]

    def check_items(ld, cmp_, at_p, at_c, ev, after=(), lat=None, CMP=CMP):
        ls, lb = S.uid("slow"), S.uid("back")
        slow.append((ls, lb, ld, cmp_, CMP))
        r = [Item(x, at=at_p, vtag=("P", ev), after=after) for x in ld]
        r += items(cmp_, at=at_c - 2, needv={("P", ev)}, delay=P["PLAT"] if lat is None else lat)
        r.append(Item(["s_cmp_lg_u64 %s, 0" % CMP, "s_cbranch_scc1 %s" % ls, lb + ":"], delay=1, sets=ev))
        return r

    def pollchk(so, va, at_c, ev, gen_, after=(), lat=None):
        lat = P["PLAT"] if lat is None else lat
        return check_items(["buffer_load_dword v%d, v%d, %s, s%d offen sc1" % (VP, va, sq(SW), so)], flag_cmp(gen_), at_c - lat, at_c, ev, after, lat)

    def tag_cmp(quads, t):
        r = []
        regs_ = [q + e for q in quads for e in range(4)]
        for k, x in enumerate(regs_):
            r.append("v_xor_b32 v%d, s%d, v%d" % (x, TB0 + (k & 3), x))
            if k == 1:
                r.append("v_or_b32 v%d, v%d, v%d" % (t, regs_[0], x))
            elif k & 1:
                r.append("v_or3_b32 v%d, v%d, v%d, v%d" % (t, t, regs_[k - 1], x))
        return r + ["v_and_b32 v%d, 0xff, v%d" % (t, t), "v_cmp_ne_u32 %s, 0, v%d" % (CMP, t)]
    TB0 = 84
    tag_sh = ["s_bfe_u32 s%d, s%d, 0x%x" % (TB0 + e, STAG, 0x80000 | (8 * e)) for e in range(4)]

    UR = 256 if len(P["TU"].split(".")) == 4 else 192

    def wq_addr():
        S("v_lshrrev_b32 v%d, 4, v%d" % (VWT, VL))
        S("s_movk_i32 s30, 6144")
        S("v_mul_u32_u24 v%d, s30, v%d" % (VWT, VWT))
        S("v_and_b32 v%d, 15, v%d" % (T, VL))
        S("v_min_u32 v%d, 11, v%d" % (T, T))
        S("v_and_b32 v%d, 3, v%d" % (T + 1, T))
        S("v_lshl_add_u32 v%d, v%d, 7, v%d" % (VWT, T + 1, VWT))
        S("v_lshrrev_b32 v%d, 2, v%d" % (T, T))
        S("v_lshl_add_u32 v%d, v%d, 11, v%d" % (VWT, T, VWT))
        S("s_lshr_b32 s32, s2, 4")
        S("s_mul_i32 s30, s3, %d" % (UR // 16))
        S("s_add_u32 s32, s32, s30")
        S("s_mul_i32 s32, s32, %d" % (4 * 6144))
        S("s_bfe_u32 s30, s2, 0x20001")
        S("s_lshl_b32 s30, s30, 9")
        S("s_add_u32 s32, s32, s30")
        if UR == 192:
            S("s_cmp_ge_u32 s2, 192")
            S("s_cselect_b32 s32, 0x%x, s32" % OOB)
        S("v_add_u32 v%d, s32, v%d" % (VWT, VWT))

    def wq_touch(slot):
        n = 0
        for k, sl in enumerate(P["TU"].split(".")):
            if sl == slot:
                S("s_mov_b32 s30, %d" % (k * UR * 6144))
                S(touch(JUNK, VWT, SQ, "s30"))
                n += 1
        return n

    lrole1, join1, lrole2, join2 = S.uid("l1"), S.uid("j1"), S.uid("l2"), S.uid("j2")
    S("s_cmp_ge_u32 s2, 256")
    S("s_cbranch_scc1 %s" % end)
    for s_, ka in ((SW, KA_WS), (SX, KA_X), (SC, KA_C), (SMD, KA_WMOD)):
        S("s_load_dwordx2 s[%d:%d], s[0:1], %d" % (s_, s_ + 1, ka))
    if P["MARK"]:
        S("v_mov_b32 v255, 0")
    mark("start")
    T = 200
    JUNK, VWT = 223, 199
    S("v_lshrrev_b32 v%d, 6, v0" % T)
    S("v_and_b32 v%d, 63, v0" % VL)
    S("v_readfirstlane_b32 s3, v%d" % T)
    if P["CT0"]:
        ct0 = code_touch(S, T, JUNK)
        if P["CT0"] == 2:
            ct0 = ct0[:6] + ["s_bitcmp1_b32 s2, 3", "s_cselect_b32 s32, s32, 0x100000"] + ct0[6:]
        S.emit(ct0)
    S("v_lshlrev_b32 v%d, 4, v%d" % (VT16, VL))
    S("s_lshr_b32 s36, s2, 4")
    S("s_lshl_b32 s36, s36, 3")
    S("s_and_b32 s30, s2, 7")
    S("s_add_u32 s36, s36, s30")
    S("s_lshl_b32 s%d, s3, 10" % SM0)
    ROW, CHK = 206, 207
    S("v_lshrrev_b32 v%d, 3, v0" % ROW)
    S("v_and_b32 v%d, 6, v%d" % (CHK, ROW))
    S("v_and_b32 v%d, 7, v%d" % (T + 2, VL))
    S("v_xor_b32 v%d, v%d, v%d" % (CHK, CHK, T + 2))
    GC, CD, VG, SIL, GW, GD = 220, 196, 5, 16, 48, 80
    S("s_and_b32 s35, s2, 3")
    S("s_movk_i32 s30, 12288")
    S("v_mul_u32_u24 v%d, s30, v%d" % (VWM2, ROW))
    S("v_lshl_add_u32 v%d, v%d, 4, v%d" % (VWM2, CHK, VWM2))
    S("s_mul_i32 s30, s35, %d" % (256 * 12288))
    S("v_add_u32 v%d, s30, v%d" % (VWM2, VWM2))
    S("s_lshr_b32 s34, s36, 2")
    S("s_lshl_b32 s31, s34, 7")
    S("v_lshlrev_b32 v%d, 1, v0" % GC)
    S("s_lshl_b32 s30, s35, 9")
    VI, VD, VMG = 1, 222, 4
    XD, XF, MD, T2, ML = 8, 40, 104, 114, 120
    S("v_bfe_u32 v%d, v%d, 4, 1" % (T2, VL))
    S("v_lshlrev_b32 v%d, 5, v%d" % (VD, T2))
    S("v_lshrrev_b32 v%d, 5, v%d" % (T2, VL))
    S("v_lshl_add_u32 v%d, v%d, 4, v%d" % (VD, T2, VD))
    S("v_and_b32 v%d, 15, v%d" % (T2, VL))
    S("v_lshl_add_u32 v%d, v%d, 11, v%d" % (VI, T2, VD))
    S("s_lshl_b32 s33, s36, 15")
    S("s_lshl_b32 s32, s3, 7")
    S("s_add_u32 s33, s33, s32")
    srd_fin(S, SC, 2048)
    srd_fin(S, SMD, 1024 * 6144 * 2)
    srd_fin(S, SX, ACT_BYTES)
    srd_fin(S, SW, WS_SIZE)
    S("s_bitcmp1_b32 s2, 3")
    S("s_waitcnt lgkmcnt(0)")
    S("buffer_load_ushort v%d, v%d, %s, s30 offen" % (CD, GC, sq(SC)))
    S("s_cbranch_scc1 %s" % lrole1)
    for i in range(8):
        S("s_add_u32 m0, s%d, %d" % (SM0, GPG + i * 4096))
        if i:
            S("s_add_u32 s31, s31, %d" % (32 * 12288))
        S("buffer_load_dwordx4 v%d, %s, s31 offen nt lds" % (VWM2, sq(SMD)))
    S("s_branch %s" % join1)
    S.label(lrole1)

    def xld(so):
        for j in range(4):
            for i in range(2):
                S("buffer_load_dwordx4 %s, v%d, %s, s%d offen offset:%d" % (vr(XD + (2 * j + i) * 4, 4), VI, sq(SX), so, 512 * j + 64 * i))
    if not P["XD"]:
        xld(33)
    S.label(join1)
    S("s_mov_b32 s%d, s33" % SA_)
    mark("ld1", True)
    S("s_load_dword s%d, s[%d:%d], 0x%x" % (STAG, SW, SW + 1, FL_EPOCH))
    for s_, ka in ((SQ, KA_WQKV), (SWO, KA_WO), (SG, KA_WG), (SU, KA_WU), (SD, KA_WD), (SO, KA_OUT)):
        S("s_load_dwordx2 s[%d:%d], s[0:1], %d" % (s_, s_ + 1, ka))
    wq_addr()
    S("s_and_b32 s22, s2, 1")
    S("s_lshl_b32 s22, s22, 3")
    S("s_bfe_u32 s30, s2, 0x30003")
    S("s_add_u32 s22, s22, s30")
    S("s_bfe_u32 s23, s2, 0x20001")
    S("s_lshl_b32 s23, s23, 2")
    S("s_lshr_b32 s30, s2, 6")
    S("s_add_u32 s23, s23, s30")
    S("v_lshrrev_b32 v%d, 2, v0" % T)
    S("s_movk_i32 s30, 6144")
    S("v_mul_u32_u24 v%d, s30, v%d" % (T, T))
    S("v_bfe_u32 v%d, v%d, 4, 1" % (T + 1, VL))
    S("v_lshlrev_b32 v%d, 1, v%d" % (T + 2, T + 1))
    S("v_and_b32 v%d, 3, v%d" % (T + 3, VL))
    S("v_xor_b32 v%d, v%d, v%d" % (T + 2, T + 2, T + 3))
    S("v_lshl_add_u32 v%d, v%d, 4, v%d" % (T, T + 2, T))
    S("s_lshl_b32 s30, s23, 7")
    S("v_add_u32 v%d, s30, v%d" % (VWQ, T))
    S("v_add_u32 v%d, 4096, v%d" % (VWQ2, VWQ))
    S("v_lshrrev_b32 v%d, 2, v%d" % (T, VL))
    S("v_lshlrev_b32 v%d, 6, v%d" % (T, T))
    S("v_lshl_add_u32 v%d, v%d, 5, v%d" % (T, T + 1, T))
    S("v_lshl_add_u32 v%d, v%d, 3, v%d" % (VDQ, T + 3, T))
    S("v_xor_b32 v%d, 32, v%d" % (VDQ + 1, VDQ))
    for w in (1, 2):
        for fb in range(2):
            S("v_add_u32 v%d, 0x%x, v%d" % (VDQ + 2 * w + fb, w << 16, VDQ + fb))
    S("s_lshl_b32 s30, s22, 13")
    S("s_lshl_b32 s32, s3, 11")
    S("s_add_u32 s30, s30, s32")
    S("v_add_u32 v%d, s30, v%d" % (VAQ, VT16))
    S("s_lshl_b32 s30, s22, 3")
    S("s_lshl_b32 s31, s3, 1")
    S("s_add_u32 s30, s30, s31")
    S("s_lshl_b32 s30, s30, 2")
    S("v_and_b32 v%d, 7, v%d" % (VFL, VL))
    S("v_add_u32 v%d, s30, v%d" % (VFL, VFL))
    S("v_lshlrev_b32 v%d, %d, v%d" % (VFL, FS, VFL))
    S("v_add_u32 v%d, 0x%x, v%d" % (VFL, FL_H1, VFL))
    S("v_cmp_ne_u32 vcc, 0, v%d" % VL)
    S("v_mov_b32 v%d, 0x%x" % (T, OOB))
    S("v_cndmask_b32 v%d, 0, v%d, vcc" % (VF0, T))
    S("v_lshrrev_b32 v%d, 2, v%d" % (T, VL))
    S("v_lshlrev_b32 v%d, 7, v%d" % (T, T))
    S("v_bfe_u32 v%d, v%d, 3, 2" % (T + 1, VL))
    S("v_lshl_add_u32 v%d, v%d, 5, v%d" % (T, T + 1, T))
    S("v_lshl_add_u32 v%d, v%d, 3, v%d" % (VDS, T + 3, T))
    S("s_waitcnt lgkmcnt(0)")
    S("s_add_u32 s%d, s%d, 0x9e3779b8" % (STAG, STAG))
    S("s_and_b32 s%d, s%d, -8" % (STAG, STAG))
    S("v_mov_b32 v%d, s%d" % (VTAG, STAG))
    srd_fin(S, SQ, 1024 * 6144)
    S.emit(tag_sh)
    if P["XD"] == 1:
        sk = S.uid("sk")
        S("s_bitcmp0_b32 s2, 3")
        S("s_cbranch_scc1 %s" % sk)
        xld(SA_)
        S.label(sk)
    nge = 0
    for k, sl in enumerate(P["TU"].split(".")):
        if sl in ("Ge", "Le"):
            S("s_bitcmp%d_b32 s2, 3" % (sl == "Le"))
            S("s_cselect_b32 s30, %d, 0x%x" % (k * UR * 6144, OOB) if k == 0 else "s_cselect_b32 s30, 0, 0x%x" % OOB)
            if k:
                S("s_add_u32 s30, s30, %d" % (k * UR * 6144))
            S(touch(JUNK, VWT, SQ, "s30"))
            nge += 1
    S("s_mul_i32 s35, s35, %d" % MODP)
    S("s_lshl_b32 s30, s3, 6")
    S("s_add_u32 s35, s35, s30")
    S("s_lshl_b32 s30, s34, 8")
    S("s_add_u32 s66, s35, s30")
    S("s_lshr_b32 s30, s2, 2")
    S("s_lshl_b32 s31, s30, 8")
    S("s_add_u32 s35, s35, s31")
    S("s_add_u32 s35, s35, 8192")
    S("s_lshl_b32 s30, s30, 7")
    S("s_add_u32 s30, s30, 0x%x" % (OOB if P["P2FAKE"] else 4096))
    S("v_add_u32 v%d, s30, v%d" % (VWM2, VWM2))
    S("v_lshrrev_b32 v%d, 4, v%d" % (T + 1, VL))
    S("v_lshlrev_b32 v%d, 4, v%d" % (VVEC, T + 1))
    S("v_and_b32 v%d, 15, v%d" % (T + 2, VL))
    S("v_cmp_ne_u32 vcc, 0, v%d" % (T + 2))
    S("v_mov_b32 v6, 0x%x" % OOB)
    S("v_cndmask_b32 v6, v%d, v6, vcc" % VVEC)
    S("v_add_u32 v%d, s35, v6" % VGR)
    S("s_lshl_b32 s30, s3, 5")
    S("v_xor_b32 v%d, s30, v%d" % (VDG, VDS))
    for w in (1, 2):
        S("v_add_u32 v%d, 0x%x, v%d" % (VDG + w, w << 16, VDG))
    S("s_lshl_b32 s%d, s36, 2" % R0)
    S("s_add_u32 s%d, s%d, s3" % (R0, R0))
    S("s_lshl_b32 s%d, s%d, %d" % (R0, R0, FS))
    S("s_add_u32 s%d, s%d, 0x%x" % (R0, R0, FL_H1))
    S("s_lshl_b32 s%d, s3, 18" % R1)
    S("s_lshl_b32 s30, s36, 10")
    S("s_add_u32 s%d, s%d, s30" % (R1, R1))
    S("s_add_u32 s%d, s%d, 0x%x" % (R1, R1, WS_H1))
    S("v_lshrrev_b32 v%d, 5, v0" % T)
    S("v_lshlrev_b32 v%d, 6, v%d" % (T, T))
    S("v_bfe_u32 v%d, v0, 2, 2" % (T + 1))
    S("v_lshl_add_u32 v%d, v%d, 4, v%d" % (T, T + 1, T))
    S("v_bfe_u32 v%d, v0, 4, 1" % (T + 1))
    S("v_lshl_add_u32 v%d, v%d, 3, v%d" % (T, T + 1, T))
    S("v_lshl_add_u32 v%d, v%d, 1, v%d" % (T, T + 3, T))
    S("s_waitcnt vmcnt(%d)" % (8 + nge))
    S("v_lshlrev_b32 v%d, 16, v%d" % (CD, CD))
    S("v_mul_f32 v%d, 0x%x, v%d" % (CD + 1, NLOG2E, CD))
    S("v_exp_f32 v%d, v%d" % (CD + 1, CD + 1))
    S("v_add_f32 v%d, 1.0, v%d" % (CD + 1, CD + 1))
    S("v_rcp_f32 v%d, v%d" % (CD + 1, CD + 1))
    S("v_mul_f32 v%d, v%d, v%d" % (CD, CD, CD + 1))
    S("v_cvt_pk_bf16_f32 v%d, v%d, v%d" % (CD, CD, CD))
    S("ds_write_b16 v%d, v%d offset:%d" % (T, CD, SILT))
    T = 200
    srd_fin(S, SWO, 1024 * 1024 * 2)
    srd_fin(S, SG, WF_BYTES)
    srd_fin(S, SU, WF_BYTES)
    srd_fin(S, SD, WF_BYTES)
    srd_fin(S, SO, ACT_BYTES)
    S("s_lshl_b32 s30, s23, 17")
    S("s_add_u32 s%d, s30, 0x%x" % (SOA, WS_O))
    S("s_lshl_b32 s30, s22, 2")
    S("s_add_u32 s30, s30, s3")
    S("s_lshl_b32 s30, s30, 4")
    S("s_add_u32 s30, s30, s23")
    S("s_lshl_b32 s30, s30, %d" % FS)
    S("s_add_u32 s%d, s30, 0x%x" % (SFOP, FL_O))
    S("s_lshl_b32 s30, s22, 14")
    S("s_lshl_b32 s31, s23, 10")
    S("s_add_u32 s30, s30, s31")
    S("s_lshl_b32 s31, s3, 8")
    S("s_add_u32 s30, s30, s31")
    S("s_add_u32 s%d, s30, 0x%x" % (SEXP, WS_STAT))
    S("s_xor_b32 s30, s3, 2")
    S("s_lshl_b32 s30, s30, 11")
    S("v_add_u32 v%d, s30, v%d" % (VXW, VT16))
    S("s_lshl_b32 s30, s22, 4")
    S("s_add_u32 s30, s30, s23")
    S("s_lshl_b32 s30, s30, 13")
    S("s_add_u32 s30, s30, 0x%x" % WS_HX)
    S("s_add_u32 s31, s30, 0x%x" % (16 << 13))
    S("s_cmp_eq_u32 s3, 3")
    S("s_cselect_b32 s31, s31, 0x%x" % OOB)
    S("s_cmp_lt_u32 s22, 15")
    S("s_cselect_b32 s31, s31, 0x%x" % OOB)
    S("v_add_u32 v%d, s31, v%d" % (VHS, VT16))
    S("s_cmp_eq_u32 s3, 0")
    S("s_cselect_b32 s31, s22, 0")
    S("s_cmp_lg_u32 s31, 0")
    S("s_cselect_b32 s30, s30, 0x%x" % OOB)
    S("s_cselect_b32 s31, s%d, 0" % STAG)
    S("v_add_u32 v%d, s30, v%d" % (VHR, VT16))
    S("v_mov_b32 v%d, s31" % VHT)
    S("s_sub_u32 s30, s3, 1")
    S("s_xor_b32 s30, s30, 2")
    S("s_lshl_b32 s30, s30, 11")
    S("s_cmp_eq_u32 s3, 0")
    S("s_cselect_b32 s30, %d, s30" % X0)
    S("v_add_u32 v%d, s30, v%d" % (VXR, VT16))
    S("s_or_b32 s33, s22, s3")
    S("s_and_b32 s24, s2, 1")
    S("s_lshr_b32 s29, s2, 3")
    S("s_bfe_u32 s25, s2, 0x20001")
    S("s_lshl_b32 s25, s25, 2")
    S("s_and_b32 s30, s29, 3")
    S("s_add_u32 s25, s25, s30")
    S("s_lshr_b32 s26, s29, 2")
    if P["NTX"]:
        S("s_xor_b32 s26, s26, %d" % P["NTX"])
    S("s_lshl_b32 s26, s26, 1")
    S("s_add_u32 s26, s26, s24")
    S("s_lshl_b32 s30, s25, 13")
    S("s_lshl_b32 s31, s3, 11")
    S("s_add_u32 s30, s30, s31")
    S("v_add_u32 v%d, s30, v%d" % (VA3, VT16))
    S("v_lshlrev_b32 v%d, 11, v%d" % (T + 2, ROW))
    S("v_lshl_add_u32 v%d, v%d, 4, v%d" % (T + 2, CHK, T + 2))
    S("s_lshl_b32 s30, s26, 7")
    S("v_add_u32 v%d, s30, v%d" % (VW3, T + 2))
    S("s_mul_i32 s30, s24, %d" % (1792 * 2048))
    S("v_add_u32 v%d, s30, v%d" % (VW6K, VW3))
    S("v_xor_b32 v%d, 128, v%d" % (VW6S, VW6K))
    S("s_mul_i32 s30, s24, %d" % (56 * KBS))
    S("v_add_u32 v%d, s30, v%d" % (VA6, VA3))
    S("s_lshl_b32 s27, s24, 2")
    S("s_and_b32 s30, s29, 3")
    S("s_add_u32 s27, s27, s30")
    S("s_bfe_u32 s28, s2, 0x20001")
    S("s_lshl_b32 s28, s28, 3")
    S("s_lshr_b32 s30, s29, 2")
    S("s_add_u32 s28, s28, s30")
    S("s_lshl_b32 s30, s27, 14")
    S("s_lshl_b32 s31, s3, 12")
    S("s_add_u32 s30, s30, s31")
    S("v_add_u32 v%d, s30, v%d" % (VA5, VT16))
    S("s_movk_i32 s30, 7168")
    S("v_mul_u32_u24 v%d, s30, v%d" % (T + 2, ROW))
    S("v_lshl_add_u32 v%d, v%d, 4, v%d" % (T + 2, CHK, T + 2))
    S("s_lshr_b32 s30, s28, 2")
    S("s_mul_i32 s30, s30, 896")
    S("s_and_b32 s31, s28, 3")
    S("s_lshl_b32 s32, s31, 8")
    S("s_add_u32 s32, s32, s30")
    S("v_add_u32 v%d, s32, v%d" % (VW1, T + 2))
    S("s_lshl_b32 s31, s31, 3")
    S("s_lshr_b32 s32, 0x%x, s31" % (4 | 12 << 8 | 14 << 16 | 22 << 24))
    S("s_and_b32 s32, s32, 255")
    S("s_lshl_b32 s32, s32, 5")
    S("s_add_u32 s32, s32, s30")
    S("v_mov_b32 v%d, s32" % (T + 3))
    S("s_lshr_b32 s32, 0x%x, s31" % (6 | 7 << 8 | 20 << 16 | 21 << 24))
    S("s_and_b32 s32, s32, 255")
    S("s_lshl_b32 s32, s32, 5")
    S("s_add_u32 s32, s32, s30")
    S("s_sub_u32 s32, s32, 64")
    S("v_mov_b32 v%d, s32" % (T + 4))
    S("v_cmp_lt_u32 vcc, 3, v%d" % CHK)
    S("v_cndmask_b32 v%d, v%d, v%d, vcc" % (T + 3, T + 3, T + 4))
    S("v_mov_b32 v%d, 0x%x" % (T + 4, OOB))
    S("v_cmp_lt_u32 vcc, 5, v%d" % CHK)
    S("v_cndmask_b32 v%d, v%d, v%d, vcc" % (T + 3, T + 3, T + 4))
    S("v_add_u32 v%d, v%d, v%d" % (VW2, T + 3, T + 2))
    for jj in range(1, 4):
        S("v_xor_b32 v%d, %d, v%d" % (VDS + jj, jj << 5, VDS))
    for w in (1, 2):
        for jj in range(4):
            S("v_add_u32 v%d, 0x%x, v%d" % (VDS + 4 * w + jj, w << 16, VDS + jj))
    S("s_lshr_b32 s30, s28, 4")
    S("s_mul_i32 s30, s30, 56")
    S("s_and_b32 s31, s28, 15")
    S("s_add_u32 s32, s30, s31")
    S("s_lshl_b32 s32, s32, 17")
    S("s_add_u32 s%d, s32, %d" % (SHA, WS_HH))
    S("s_lshr_b32 s32, s31, 1")
    S("s_add_u32 s32, s32, s30")
    S("s_lshl_b32 s32, s32, 17")
    S("s_and_b32 s31, s31, 1")
    S("s_lshl_b32 s31, s31, 10")
    S("s_add_u32 s32, s32, s31")
    S("s_add_u32 s%d, s32, %d" % (SHB, WS_HH + 16 * KBS))
    S("s_add_u32 s%d, s%d, %d" % (SHC, SHA, 24 * KBS))
    S("s_add_u32 s%d, s%d, %d" % (SHC2, SHA, 40 * KBS))
    S("s_lshl_b32 s30, s27, 2")
    S("s_add_u32 s30, s30, s3")
    S("s_lshl_b32 s30, s30, 5")
    S("s_lshl_b32 s31, s30, %d" % FS)
    S("s_add_u32 s%d, s31, %d" % (SF2C, FL_H2))
    S("s_add_u32 s30, s30, s28")
    S("s_lshl_b32 s30, s30, %d" % FS)
    S("s_add_u32 s%d, s30, %d" % (SFP, FL_HH))
    S("s_lshl_b32 s30, s25, 1")
    S("s_lshr_b32 s31, s3, 1")
    S("s_add_u32 s30, s30, s31")
    S("s_lshl_b32 s30, s30, 1")
    S("s_add_u32 s30, s30, s24")
    S("s_lshl_b32 s30, s30, %d" % (4 + FS))
    S("s_add_u32 s%d, s30, %d" % (SFC, FL_HH))
    S("s_lshl_b32 s30, s25, 2")
    S("s_add_u32 s30, s30, s3")
    S("s_lshl_b32 s30, s30, %d" % (4 + FS))
    S("s_add_u32 s%d, s30, %d" % (SFOC, FL_O))
    S("s_lshl_b32 s31, s26, %d" % FS)
    S("s_add_u32 s30, s30, s31")
    S("s_add_u32 s%d, s30, %d" % (SF2P, FL_H2))
    S("v_and_b32 v%d, 31, v%d" % (VFB, VL))
    S("v_lshlrev_b32 v%d, %d, v%d" % (VFB, FS, VFB))
    S("v_and_b32 v%d, %d, v%d" % (VFA, 15 << FS, VFB))
    S("s_lshl_b32 s30, s25, 14")
    S("s_lshl_b32 s31, s3, 8")
    S("s_add_u32 s30, s30, s31")
    S("s_add_u32 s%d, s30, %d" % (SSR, WS_STAT))
    S("s_lshl_b32 s31, s26, 10")
    S("s_add_u32 s%d, s%d, s31" % (SSW, SSR))
    S("s_lshl_b32 s30, s2, 2")
    S("s_add_u32 s30, s30, s3")
    S("s_lshl_b32 s22, s30, 7")
    S("s_xor_b32 s31, s30, 4")
    S("s_lshl_b32 s30, s30, 12")
    S("s_lshl_b32 s31, s31, 12")
    S("s_add_u32 s%d, s30, %d" % (SIN, WS_XCH))
    S("s_add_u32 s%d, s31, %d" % (SOUTB, WS_XCH))
    S("s_lshl_b32 s30, s26, 18")
    S("s_add_u32 s%d, s30, %d" % (SH2, WS_H2))
    S("s_add_u32 s%d, s30, %d" % (SH2B, WS_H2 + KBS))
    S("s_mov_b32 s%d, 0x8000" % S8K)
    S("s_mov_b32 s%d, 0x%x" % (SNL, NLOG2E))
    S("v_and_b32 v%d, 15, v%d" % (T, VL))
    S("v_lshlrev_b32 v%d, 11, v%d" % (VX, T))
    S("v_bfe_u32 v%d, v%d, 4, 1" % (T + 2, VL))
    S("v_lshl_add_u32 v%d, v%d, 5, v%d" % (VX, T + 2, VX))
    S("v_lshrrev_b32 v%d, 5, v%d" % (T + 2, VL))
    S("v_lshl_add_u32 v%d, v%d, 4, v%d" % (VX, T + 2, VX))
    S("s_lshl_b32 s30, s25, 18")
    S("s_lshl_b32 s31, s3, 16")
    S("s_add_u32 s30, s30, s31")
    S("s_lshl_b32 s31, s26, 7")
    S("s_add_u32 s30, s30, s31")
    S("v_add_u32 v%d, s30, v%d" % (VX, VX))
    S("v_lshrrev_b32 v%d, 4, v%d" % (T + 1, VL))
    S("v_lshlrev_b32 v%d, 4, v%d" % (VVEC, T + 1))
    S("s_bitcmp1_b32 s3, 0")
    S("s_cselect_b32 s%d, s%d, s%d" % (ST, SU, SG))
    S("s_cselect_b32 s%d, s%d, s%d" % (ST + 1, SU + 1, SG + 1))
    srd_fin(S, ST, WF_BYTES)
    S("s_lshr_b32 s30, s2, 6")
    S("s_lshl_b32 s30, s30, 5")
    S("s_and_b32 s31, s2, 31")
    S("s_add_u32 s30, s30, s31")
    S("s_lshl_b32 s30, s30, 1")
    S("s_lshr_b32 s31, s3, 1")
    S("s_add_u32 s30, s30, s31")
    S("s_lshl_b32 s30, s30, 11")
    S("s_add_u32 s31, s28, 1")
    S("s_bitcmp1_b32 s31, 1")
    S("s_cselect_b32 s30, 0x%x, s30" % OOB)
    S("v_lshrrev_b32 v%d, 2, v%d" % (VTA, VL))
    S("v_lshlrev_b32 v%d, 7, v%d" % (VTA, VTA))
    S("v_add_u32 v%d, s30, v%d" % (VTA, VTA))
    S("s_movk_i32 s30, %d" % MODP)
    S("v_mul_u32_u24 v%d, s30, v%d" % (VM, T + 1))
    S("v_lshl_add_u32 v%d, v%d, 4, v%d" % (VM, T, VM))
    S("s_lshl_b32 s30, s26, 8")
    S("s_lshl_b32 s31, s3, 12")
    S("s_add_u32 s30, s30, s31")
    S("s_add_u32 s%d, s30, %d" % (SMS, WS_MOD + 8192))
    S("v_lshlrev_b32 v%d, 4, v%d" % (VST, T))
    S("s_lshl_b32 s30, s3, 8")
    S("v_add_u32 v%d, s30, v%d" % (VST, VST))
    S("v_lshlrev_b32 v%d, 12, v%d" % (VS2, T + 1))
    S("v_lshl_add_u32 v%d, v%d, 3, v%d" % (VS2, T, VS2))
    S("v_cmp_gt_u32 s[34:35], 16, v%d" % VL)
    S("v_lshlrev_b32 v%d, 3, v%d" % (VS1, VL))
    S("v_mov_b32 v%d, 0x%x" % (T + 2, OOB))
    S("v_cndmask_b32_e64 v%d, v%d, v%d, s[34:35]" % (VS1, T + 2, VS1))
    S("s_cmp_eq_u32 s3, 2")
    S("s_cselect_b32 s%d, 1.0, 0" % SCB)
    S("v_and_b32 v%d, 14, v%d" % (T + 2, VL))
    S("v_lshlrev_b32 v%d, 2, v%d" % (T + 1, T + 1))
    S("v_cmp_le_u32 s[%d:%d], v%d, v%d" % (SMK, SMK + 1, T + 1, T + 2))
    S("v_add_u32 v%d, 2, v%d" % (T + 1, T + 1))
    S("v_cmp_le_u32 s[%d:%d], v%d, v%d" % (SMK + 2, SMK + 3, T + 1, T + 2))
    S("v_and_b32 v%d, 1, v%d" % (T + 2, VL))
    S("v_cmp_eq_u32 s[%d:%d], 1, v%d" % (SMK + 4, SMK + 5, T + 2))
    S("v_lshlrev_b32 v%d, 4, v%d" % (BP + 2, T + 2))
    S("s_cmp_eq_u32 s33, 0")
    S("s_cselect_b32 s33, 0x%x, 0" % f32bits(-1e30))
    S("v_mov_b32 v%d, s33" % T)
    for q_ in range(2):
        S("v_cndmask_b32_e64 v%d, v%d, 0, s[%d:%d]" % (BP + q_, T, SMK + 2 * q_, SMK + 2 * q_ + 1))
    S("s_add_u32 s23, s22, 60")
    S("s_add_u32 s36, s23, s%d" % SWO)
    S("s_addc_u32 s37, s%d, 0" % (SWO + 1))
    mark("setup", True)
    S("s_bitcmp1_b32 s2, 3")
    S("s_cbranch_scc1 %s" % lrole2)

    S("v_add_u32 v%d, 0x%x, v%d" % (VG, GPG, VDG))
    S("v_mov_b32 v7, 0xff")
    S("s_waitcnt lgkmcnt(0)")
    S("s_barrier")
    for i in range(8):
        S("ds_read_b128 %s, v%d offset:%d" % (vr(SIL + 4 * i, 4), VVEC, SILT + i * 64))
    S("s_waitcnt vmcnt(%d)" % nge)
    mark("gland", True)
    S("s_barrier")
    for i in range(8):
        for hf in range(2):
            S("ds_read_b64_tr_b16 %s, v%d offset:%d" % (vr(GW + 4 * i + 2 * hf, 2), VG, i * 4096 + hf * 2048))
    for i in range(8):
        S("s_waitcnt lgkmcnt(%d)" % (14 - 2 * i))
        S(mfma(vr(GD, 4), vr(GW + 4 * i, 4), vr(SIL + 4 * i, 4), "0" if i == 0 else None))
    for e in range(4):
        S("v_bfi_b32 v%d, v7, s%d, v%d" % (GD + e, TB0 + e, GD + e))
    S("buffer_store_dwordx4 %s, v6, %s, s66 offen sc1" % (vr(GD, 4), sq(SW)))
    mark("gpub", True)
    if not P["CT0"]:
        S.emit(code_touch(S, 8, JUNK))
    wq_touch("Gl")
    for k, g in enumerate(pre[:N0G]):
        if k == 24:
            wq_touch("Gm")
        S.emit(g)
    wq_touch("Gz")
    if P["N0"] > N0G:
        S("s_barrier")
        for g in pre[N0G:]:
            S.emit(g)
    if P["WALK"] & 8:
        walk(S, 0, "b")
    if P["WALK"] & 16:
        walk(S, 0)
    if P["WALK"] & 32:
        walk(S, 1)
    mark("gp2", True)
    S("s_branch %s" % join2)

    S.label(lrole2)
    nle = nge
    for g in pre[:P["N0L"]]:
        S.emit(g)
    S("s_lshl_b32 s33, s3, 11")
    S("v_lshlrev_b32 v%d, 1, v%d" % (VD, VD))
    S("v_add_u32 v%d, s33, v%d" % (VD, VD))
    S("v_add_u32 v3, s33, v%d" % VT16)
    S("v_lshrrev_b32 v%d, 4, v%d" % (VMG, VL))
    S("v_lshlrev_b32 v%d, 10, v%d" % (VMG, VMG))
    S("v_and_b32 v%d, 15, v%d" % (T2, VL))
    S("v_lshl_add_u32 v%d, v%d, 4, v%d" % (VMG, T2, VMG))
    S("s_lshl_b32 s33, s3, 8")
    S("v_add_u32 v%d, s33, v%d" % (VMG, VMG))
    S("v_add_u32 v%d, 4096, v%d" % (VMG + 1, VMG))
    S("v_mul_u32_u24 v6, 48, v%d" % T2)
    S("s_lshl_b32 s33, s3, 3")
    S("v_add_u32 v7, s33, v6")
    if P["WALK"] & 8:
        walk(S, 0, "a")
    for q in range(8):
        S("s_waitcnt vmcnt(%d)" % (7 - q + P["N0L"] + nle))
        for i in range(4 * q, 4 * q + 4):
            S("v_lshlrev_b32 v%d, 16, v%d" % (XF + 2 * i, XD + i))
            S("v_and_b32 v%d, 0xffff0000, v%d" % (XF + 2 * i + 1, XD + i))
        for h in range(2):
            x0, x1 = vr(XF + 8 * q + 4 * h, 2), vr(XF + 8 * q + 4 * h + 2, 2)
            if q == 0:
                S("v_pk_add_f32 %s, %s, %s" % (vr(T2 + 2 * h, 2), x0, x1))
            else:
                S("v_pk_add_f32 %s, %s, %s" % (vr(T2, 2), vr(T2, 2), x0))
                S("v_pk_add_f32 %s, %s, %s" % (vr(T2 + 2, 2), vr(T2 + 2, 2), x1))
    mark("xland", True)
    il = dict(q=list(pre[P["N0L"]:P["N0L"] + P["N0M"]]), n=0, after=0)
    raw_ins = S.ins

    def ins_il(x, vtag=None, dtag=None):
        raw_ins(x, vtag, dtag)
        if x.startswith("v_"):
            il["n"] += 1
            if il["n"] % P["ILV"] == 0 and il["q"]:
                for y in il["q"].pop(0):
                    raw_ins(y)
                il["after"] += 1
    if P["ILV"]:
        S.ins = ins_il
    else:
        for g in il["q"]:
            S.emit(g)
        il["q"] = []
    S("v_pk_add_f32 %s, %s, %s" % (vr(T2, 2), vr(T2, 2), vr(T2 + 2, 2)))
    S("v_add_f32 v%d, v%d, v%d" % (T2, T2, T2 + 1))
    S.emit(cap(xsum, [T2], [T2 + 1], (16, 32)))
    S("v_mul_f32 v%d, 0x%x, v%d" % (MD, f32bits(1.0 / 256), T2))
    S("v_mov_b32 v%d, v%d" % (MD + 1, MD))
    for i in range(32):
        t = T2 + 2 * (i & 1)
        d = vr(MD + 4 + 2 * (i & 1), 2)
        S("v_pk_add_f32 %s, %s, %s neg_lo:[0,1] neg_hi:[0,1]" % (d, vr(XF + 2 * i, 2), vr(MD, 2)))
        if i < 2:
            S("v_pk_mul_f32 %s, %s, %s" % (vr(t, 2), d, d))
        else:
            S("v_pk_fma_f32 %s, %s, %s, %s" % (vr(t, 2), d, d, vr(t, 2)))
    S("v_pk_add_f32 %s, %s, %s" % (vr(T2, 2), vr(T2, 2), vr(T2 + 2, 2)))
    S("v_add_f32 v%d, v%d, v%d" % (MD + 1, T2, T2 + 1))
    S.emit(cap(xsum, [MD + 1], [T2 + 1], (16, 32)))
    S("ds_write_b64 v7, %s offset:%d" % (vr(MD, 2), X0))
    S("s_waitcnt lgkmcnt(0)")
    S("s_barrier")
    G = ML
    for q in range(2):
        S("ds_read_b128 %s, v6 offset:%d" % (vr(G + 4 * q, 4), X0 + 16 * q))
    S("s_waitcnt lgkmcnt(0)")
    S("v_pk_add_f32 %s, %s, %s" % (vr(T2, 2), vr(G, 2), vr(G + 2, 2)))
    S("v_pk_add_f32 %s, %s, %s" % (vr(T2 + 2, 2), vr(G + 4, 2), vr(G + 6, 2)))
    S("v_pk_add_f32 %s, %s, %s" % (vr(T2, 2), vr(T2, 2), vr(T2 + 2, 2)))
    S("v_mul_f32 v%d, 0x3e800000, v%d" % (MD, T2))
    for q in range(4):
        S("v_sub_f32 v%d, v%d, v%d" % (G + 2 * q, G + 2 * q, MD))
    S("v_mul_f32 v%d, v%d, v%d" % (T2 + 2, G, G))
    for q in range(1, 4):
        S("v_fmac_f32 v%d, v%d, v%d" % (T2 + 2, G + 2 * q, G + 2 * q))
    S("v_mul_f32 v%d, 0x%x, v%d" % (MD + 4, f32bits(1.0 / 1024), T2 + 1))
    S("v_fmac_f32 v%d, 0x3e800000, v%d" % (MD + 4, T2 + 2))
    modld = []
    for p_ in range(4):
        modld.append("s_mov_b32 s30, %d" % (WS_MOD + p_ * MODP))
        for v_ in range(2):
            modld.append("buffer_load_dwordx4 %s, v%d, %s, s30 offen sc1" % (vr(ML + (v_ * 4 + p_) * 4, 4), VMG + v_, sq(SW)))
    if P["MODE"] == 0:
        S.emit(modld)
    NLM = P["N0L"] + P["N0M"]
    il["after"] = 0
    S.emit(cap(ln_finish, MD))
    for i in range(32):
        S("v_pk_add_f32 %s, %s, %s neg_lo:[0,1] neg_hi:[0,1]" % (vr(XF + 2 * i, 2), vr(XF + 2 * i, 2), vr(MD, 2)))
    if P["MODE"] == 1:
        S.emit(modld)
    for i in range(32):
        S("v_pk_mul_f32 %s, %s, %s" % (vr(XF + 2 * i, 2), vr(XF + 2 * i, 2), vr(MD + 4, 2)))
    if P["MODE"] == 2:
        S.emit(modld)
    S.ins = raw_ins
    assert not il["q"], len(il["q"])
    mark("lnorm", True)
    lp, ok, chk = S.uid("mod"), S.uid("mok"), S.uid("mchk")
    S("s_mov_b32 s33, %d" % SPIN)
    S("s_waitcnt vmcnt(%d)" % (il["after"] if P["MODE"] == 0 else 0))
    S("s_branch %s" % chk)
    S.label(lp)
    S.emit(modld)
    S("s_waitcnt vmcnt(0)")
    S.label(chk)
    S.emit(tag_cmp([ML + 4 * q for q in range(8)], T2))
    S("s_cmp_eq_u64 %s, 0" % CMP)
    S("s_cbranch_scc1 %s" % ok)
    S("s_sub_u32 s33, s33, 1")
    S("s_cmp_lg_u32 s33, 0")
    S("s_cbranch_scc1 %s" % lp)
    S.label(ok)
    mark("lmod", True)
    for v_ in range(2):
        b_ = ML + v_ * 16
        for e in (0, 2):
            S("v_pk_add_f32 %s, %s, %s" % (vr(b_ + e, 2), vr(b_ + e, 2), vr(b_ + 4 + e, 2)))
            S("v_pk_add_f32 %s, %s, %s" % (vr(b_ + 8 + e, 2), vr(b_ + 8 + e, 2), vr(b_ + 12 + e, 2)))
    for v_ in range(2):
        b_ = ML + v_ * 16
        for e in (0, 2):
            S("v_pk_add_f32 %s, %s, %s" % (vr(b_ + e, 2), vr(b_ + e, 2), vr(b_ + 8 + e, 2)))
    for v_ in range(2):
        for e in (0, 2):
            S.emit(cap(round_bf16_pair, ML + v_ * 16 + e, ML + v_ * 16 + e + 1, ML + v_ * 16 + 4 + e))
    S("ds_write_b128 v3, %s" % vr(ML, 4))
    for e in range(4):
        S("v_add_f32 v%d, 1.0, v%d" % (ML + 16 + e, ML + 16 + e))
    for e in (0, 2):
        S.emit(cap(round_bf16_pair, ML + 16 + e, ML + 16 + e + 1, ML + 20 + e))
    S("ds_write_b128 v3, %s offset:1024" % vr(ML + 16, 4))
    TBF = [144, 160, 128]

    def tbl(q):
        for vv in range(2):
            for h in range(2):
                S("ds_read_b128 %s, v%d offset:%d" % (vr(TBF[q % 3] + 8 * vv + 4 * h, 4), VD, vv * 1024 + q * 128 + h * 16), dtag=("T", q))
    tbl(0)
    tbl(1)
    for q in range(8):
        if q + 2 < 8:
            tbl(q + 2)
        S.wait(d={("T", q)}, lg=15)
        tb_ = TBF[q % 3]
        for e in range(4):
            x = vr(XF + 8 * q + 2 * e, 2)
            S("v_pk_fma_f32 %s, %s, %s, %s" % (x, x, vr(tb_ + 8 + 2 * e, 2), vr(tb_ + 2 * e, 2)))
        for e in range(4):
            S("v_cvt_pk_bf16_f32 v%d, v%d, v%d" % (XD + 4 * q + e, XF + 8 * q + 2 * e, XF + 8 * q + 2 * e + 1))
        S("s_add_u32 s33, s%d, %d" % (R1, (8 * (q >> 1) + (q & 1)) * KBS))
        S("v_permlane16_swap_b32 v%d, v%d" % (XD + 4 * q, XD + 4 * q + 2))
        S("v_permlane16_swap_b32 v%d, v%d" % (XD + 4 * q + 1, XD + 4 * q + 3))
        S("buffer_store_dwordx4 %s, v%d, %s, s33 offen sc1" % (vr(XD + 4 * q, 4), VT16, sq(SW)))
    mark("lst", True)
    S("s_waitcnt vmcnt(6)")
    S.emit(flag_st(R0, 0))
    mark("lfl1", True)
    rest = pre[NLM:]
    for g in rest[:P["N0F"]]:
        S.emit(g)
    S("s_waitcnt vmcnt(%d)" % (1 + len(rest[:P["N0F"]])))
    S.emit(flag_st(R0, 1))
    for g in rest[P["N0F"]:]:
        S.emit(g)
    S.label(join2)
    S("s_mov_b64 vcc, 0")
    if P["WALK"] & 1:
        walk(S, 0)
    if P["WALK"] & 4:
        walk(S, 1)
    S("s_branch L_hot")
    S(".p2align 12")
    S.label("L_hot")
    if P["WALK"] & 25:
        S("; @range 0")
    mark("join", True)
    h1ld = ["buffer_load_dword v%d, v%d, %s, 0 offen sc1" % (VP, VFL, sq(SW))]
    spin_here(h1ld + ["s_waitcnt vmcnt(0)"], flag_cmp(0), P["DL1"], P["BK1"])
    mark("h1a", True)
    S.events["h1a"] = 0
    S.pump(8, "A")
    S.barrier()
    S.reads()

    s_poll2 = S.add(Stream(check_items(h1ld, flag_cmp(1), 0, P["CH1"], "h1b", lat=P["CH1"] - 2)
                 + pollchk(SFOC, VFA, I3 + P["COA"], "chkOA", 0, {"flagOA"})
                 + pollchk(SFOC, VFA, I3 + P["COB"], "chkOB", 1, {"flagOB"}, lat=30)
                 + items(["v_and_b32 v%d, %d, v%d" % (VXO, (16 | max(2 * NV - 1, 0)) << FS, VFB), "s_sub_u32 s%d, s%d, 0x%x" % (SEXP, SF2C, FL_H2 - FL_O)])
                 + pollchk(SEXP, VXO, I3 + P["COB"] + 50, "kn2", 0, lat=44), "poll2", budget=lambda i: 8))
    PZ = HP
    st = items(["v_mov_b32 v%d, -1" % (PZ + e) for e in range(4)] + ["v_lshlrev_b32 v%d, 2, v%d" % (PZ + 4, VL)], at=400)
    if NV:
        st.append(Item(["s_sub_u32 s30, s%d, 0x%x" % (SOA, WS_O), "s_lshr_b32 s31, s30, 18", "s_lshl_b32 s31, s31, 17", "s_bfe_u32 s32, s30, 0x10011",
                        "s_lshl_b32 s32, s32, 10", "s_add_u32 s31, s31, s32", "s_add_u32 s31, s31, 0x%x" % WS_H2,
                        "s_cmp_lt_u32 s30, 0x%x" % (2 * NV << 17), "s_cselect_b32 s31, s31, 0x%x" % OOB,
                        "buffer_store_dwordx4 %s, v%d, %s, s31 offen sc1" % (vr(PZ, 4), VAQ, sq(SW))], vtag="SOA"))
    st.append(Item("buffer_store_dword v%d, v%d, %s, s%d offen sc1" % (PZ, PZ + 4, sq(SW), SEXP), vtag="SOA", sets="poison"))
    st = items(["v_mov_b32 v%d, 0" % (HK + e) for e in range(4)], at=60) + [
        Item("ds_write_b128 v%d, %s offset:%d" % (VT16, vr(HK, 4), X0 + q * 1024), dtag="Z") for q in range(2)] + items(
        ["v_mov_b32 v%d, v%d" % (ZS + 2 * e + 1, VTAG) for e in range(8)]) + st
    S.add(Stream(st, "poison", rate=lambda i: 2))

    def att(hd):
        QP, KP, VV = HF, HF + 8, HF + 20
        SC_, TT = hd * 48, hd * 48 + 16
        pk = lambda dst, src: ["v_cvt_pk_bf16_f32 v%d, v%d, v%d" % (dst, src, src + 1), "v_cvt_pk_bf16_f32 v%d, v%d, v%d" % (dst + 1, src + 2, src + 3)]
        M = lambda q: "s[%d:%d]" % (SMK + 2 * q, SMK + 2 * q + 1)
        D = ("X", hd)
        r = items(pk(KP + 8, acc2(hd, 1, 1, 0)) + pk(KP + 10, acc2(hd, 1, 1, 1)), at=end2[(hd, 1)], after={"poison"})
        r.append(Item("ds_write_b128 v%d, %s" % (VXW, vr(KP + 8, 4)), dtag=(D, 2)))
        dat = [KP + 8, KP + 9, KP + 10, KP + 11, VV + 4, VV + 5, VV + 10, VV + 11]
        snd = lambda q: Item("buffer_store_dwordx4 %s, v%d, %s, 0 offen offset:%d sc1" % (vr(ZS + 4 * q, 4), VHS, sq(SW), q * 1024))
        r += items(["v_mov_b32 v%d, v%d" % (ZS + 2 * e, dat[e]) for e in range(4)]) + [snd(0), snd(1)]
        r += items(pk(VV + 4, acc2(hd, 1, 2, 0)) + pk(VV + 10, acc2(hd, 1, 2, 1)), at=end2[(hd, 2)])
        r += items(["v_mov_b32 v%d, v%d" % (ZS + 2 * e, dat[e]) for e in range(4, 8)]) + [snd(2), snd(3)]
        r[-1].pause = P["QUIETH"]
        r += [Item("ds_write_b64 v%d, %s offset:%d" % (VXW, vr(VV + db * 6 + 4, 2), 1024 + db * 8), dtag=(D, 2)) for db in range(2)]
        r += items(pk(KP + 4, acc2(hd, 0, 1, 0)) + pk(KP + 6, acc2(hd, 0, 1, 1)) + pk(VV + 2, acc2(hd, 0, 2, 0)) + pk(VV + 8, acc2(hd, 0, 2, 1)))
        r.append(Item("v_add_u32 v%d, 4096, v%d" % (VHS, VHS), needd={(D, 2), "Z"}))
        r.append(Item("ds_read_b128 %s, v%d" % (vr(KP, 4), VXR), dtag=(D, 3), bar=True))
        r += [Item("ds_read_b64 %s, v%d offset:%d" % (vr(VV + db * 6, 2), VXR, 1024 + db * 8), dtag=(D, 3)) for db in range(2)]
        ld = ["buffer_load_dwordx4 %s, v%d, %s, 0 offen offset:%d sc1" % (vr(ZR + 4 * q, 4), VHR, sq(SW), q * 1024) for q in range(4)]
        cm = ["v_xor_b32 v%d, v%d, v%d" % (HK, VHT, ZR + 1)]
        cm += ["v_bitop3_b32 v%d, v%d, v%d, v%d bitop3:0xbe" % (HK, ZR + 2 * e + 1, VHT, HK) for e in range(1, 8)]
        cm.append("v_cmp_ne_u32 s[0:1], 0, v%d" % HK)
        ck = check_items(ld, cm, end2[(hd, 0)] + P["HXP"], 0, "hx%d" % hd, lat=0, CMP="s[0:1]")
        r += ck[:4]
        r += items(pk(QP + 4, acc2(hd, 1, 0, 0)) + pk(QP + 6, acc2(hd, 1, 0, 1)) + pk(QP, acc2(hd, 0, 0, 0)) + pk(QP + 2, acc2(hd, 0, 0, 1)), at=end2[(hd, 0)])
        r.append(Item([], sets="pack%d" % hd))
        prv = [KP, KP + 1, KP + 2, KP + 3, VV, VV + 1, VV + 6, VV + 7]
        got = ck[4:] + items(["v_or_b32 v%d, v%d, v%d" % (prv[e], prv[e], ZR + 2 * e) for e in range(8)], needd={(D, 3)})
        got.append(Item("v_add_u32 v%d, 4096, v%d" % (VHR, VHR)))
        units = [1, 0]
        for ui, tb in enumerate(units):
            q = vr(QP + tb * 4, 4)
            r.append(Item(mfma(vr(SC_ + ui * 8 + 4, 4), vr(KP + (tb + 1) * 4, 4), q, "0")))
            if tb == 0:
                r += got
            r.append(Item(mfma(vr(SC_ + ui * 8, 4), vr(KP + tb * 4, 4), q, "0")))
        U = range(2)
        v = ["s_mov_b32 s33, 0x%x" % f32bits(32 ** -0.5 * 1.4426950408889634)]
        for ui in U:
            v += ["v_cndmask_b32_e64 v%d, v%d, v%d, %s" % (SC_ + ui * 8 + 2 * h, SC_ + ui * 8 + 2 * h, SC_ + ui * 8 + 2 * h + 1, M(2)) for h in range(4)]
        for ui in U:
            v += ["v_cndmask_b32_e64 v%d, v%d, v%d, %s" % (SC_ + ui * 8 + q_, SC_ + ui * 8 + 2 * q_, SC_ + ui * 8 + 4 + 2 * q_, M(q_)) for q_ in range(2)]
        r += items(v[1:])
        r.append(Item([v[0]] + ["v_mul_f32 v%d, s33, v%d" % (SC_ + q_, SC_ + q_) for q_ in range(2)]
                      + ["v_fma_f32 v%d, v%d, s33, v%d" % (SC_ + 8 + q_, SC_ + 8 + q_, BP + q_) for q_ in range(2)]))
        v = ["v_max_f32 v%d, v%d, v%d" % (TT + ui, SC_ + ui * 8, SC_ + ui * 8 + 1) for ui in U]
        v += cap(xred, [TT + i for i in U], [TT + 4 + i for i in U], (16, 32), "v_max_f32")
        v += ["v_sub_f32 v%d, v%d, v%d" % (SC_ + ui * 8 + q_, SC_ + ui * 8 + q_, TT + ui) for ui in U for q_ in range(2)]
        v += ["v_exp_f32 v%d, v%d" % (SC_ + ui * 8 + q_, SC_ + ui * 8 + q_) for ui in U for q_ in range(2)]
        v += ["v_add_f32 v%d, v%d, v%d" % (TT + ui, SC_ + ui * 8, SC_ + ui * 8 + 1) for ui in U]
        v += cap(xred, [TT + i for i in U], [TT + 4 + i for i in U], (16, 32), "v_add_f32")
        v += ["v_rcp_f32 v%d, v%d" % (TT + ui, TT + ui) for ui in U]
        v += ["v_mul_f32 v%d, v%d, v%d" % (SC_ + ui * 8 + q_, SC_ + ui * 8 + q_, TT + ui) for ui in U for q_ in range(2)]
        v += ["v_cvt_pk_bf16_f32 v%d, v%d, 0" % (SC_ + ui * 8 + q_, SC_ + ui * 8 + q_) for ui in U for q_ in range(2)]
        v += ["v_lshlrev_b32 v%d, v%d, v%d" % (SC_ + ui * 8 + q_, BP + 2, SC_ + ui * 8 + q_) for ui in U for q_ in range(2)]
        for ui in U:
            for q_ in range(2):
                v.append("v_cndmask_b32_e64 v%d, v%d, 0, %s" % (QP + ui * 4 + q_, SC_ + ui * 8 + q_, M(q_)))
                v.append("v_cndmask_b32_e64 v%d, 0, v%d, %s" % (QP + ui * 4 + 2 + q_, SC_ + ui * 8 + q_, M(q_)))
        for ui, tb in enumerate(units):
            v += [mfma(vr(SC_ + ui * 8 + db * 4, 4), vr(VV + db * 6 + tb * 2, 4), vr(QP + ui * 4, 4), "0") for db in range(2)]
        r += items(v)
        n = "AB"[hd]
        for ui, tb in enumerate(units):
            r += items(["v_cvt_pk_bf16_f32 v%d, v%d, v%d" % (KP + ui * 4 + i, SC_ + ui * 8 + 2 * i, SC_ + ui * 8 + 2 * i + 1) for i in range(4)])
            r.append(Item("buffer_store_dwordx4 %s, v%d, %s, s%d offen offset:%d sc1" % (vr(KP + ui * 4, 4), VAQ, sq(SW), SOA, tb * 1024),
                          vtag="SO" + n, sets="stO" + n if ui else None, pause=P["QUIET" + n] if ui else 0))
        r.append(Item("s_add_u32 s%d, s%d, %d" % (SOA, SOA, 16 * KBS)))
        return r

    s_att = S.add(Stream(att(0) + att(1), "att", rate=lambda i: P["ATR"]))
    st = [Item("ds_read_b128 %s, v%d offset:%d" % (vr(SIL2[i], 4), VVEC, SILT + i * 64), dtag="SIL", at=IP0 - 40, sets="sil" if i == 7 else None) for i in range(8)]
    st += items(["v_mov_b32 v%d, 0xff" % VWM2] + ["v_bfi_b32 v%d, v%d, s%d, v%d" % (GD2 + e, VWM2, TB0 + e, GD2 + e) for e in range(4)], at=IP2 + 8)
    st.append(Item("buffer_store_dwordx4 %s, v%d, %s, 0 offen sc1" % (vr(GD2, 4), VGR, sq(SW))))
    for tb in range(2):
        for kb in range(2):
            st.append(Item("buffer_load_dwordx4 %s, v%d, %s, %s offen offset:%d" % (
                vr(32 + (tb * 2 + kb) * 4, 4), VX, sq(SX), "s%d" % S8K if tb else "0", kb * 64), delay=4, vtag="X", after={"flagOA"}))
    S.add(Stream(st, "p2", rate=lambda i: 4))
    fl = []
    for k, n in enumerate(("OA", "OB")):
        f = flag_st(SFOP, k)
        fl += [Item([], after={"st" + n}), Item(f, delay=P["FD_" + n], needv={"S" + n}, sets="flag" + n)]
    for k, n in enumerate("ABCD"):
        f = flag_st(SFP, k)
        fl += [Item([], after={"st" + n}), Item(f, delay=P["FD_" + n], needv={"S" + n}, sets="flag" + n)]
    S.add(Stream(fl, "flag", budget=lambda i: 8))

    ROT = P["ROT"]

    def spf(n, at, step, last):
        r = []
        for k in range(n):
            if k and k % 8 == 0:
                r.append(Item(["s_add_u32 s36, s36, 0x%x" % (8 * (0x20000 - ROT)), "s_addc_u32 s37, s37, 0"]))
            r.append(Item("s_load_dwordx2 s[66:67], s[36:37], 0x%x" % ((k % 8) * (0x20000 - ROT)), at=at, delay=step))
        assert at + n * step <= last, (at + n * step, last)
        return r

    def spf_base(sb, half=False):
        if half:
            return [Item(["s_lshr_b32 s36, s22, 8", "s_lshl_b32 s36, s36, 7", "s_add_u32 s36, s36, 60",
                          "s_add_u32 s36, s36, s%d" % sb, "s_addc_u32 s37, s%d, 0" % (sb + 1)])]
        return [Item(["s_add_u32 s36, s23, s%d" % sb, "s_addc_u32 s37, s%d, 0" % (sb + 1)])]

    NGU = (14 - P["PFN"]) * 8
    st = []
    NWQ = P["NWQ"]
    if NWQ:
        st += [Item(["s_add_u32 s36, s23, 0x%x" % ((48 - NWQ) << 17), "s_add_u32 s36, s36, s%d" % SQ, "s_addc_u32 s37, s%d, 0" % (SQ + 1)])]
        st += spf(NWQ, 4, P["SPQ"], I3) + spf_base(SWO)
    st += spf(16, 4 if NWQ else 30, P["SPQ"], I3 - 100) + spf_base(ST, True)
    for k in range(NGU):
        if k and k % 16 == 0:
            st.append(Item(["s_add_u32 s36, s36, 0x%x" % (16 * (0x10000 - ROT)), "s_addc_u32 s37, s37, 0"]))
        st.append(Item("s_load_dwordx2 s[66:67], s[36:37], 0x%x" % ((k % 16) * (0x10000 - ROT)), delay=P["SPQ"]))
    assert 30 + (16 + NGU + NWQ) * P["SPQ"] <= I3 - 60, 30 + (16 + NGU + NWQ) * P["SPQ"] - I3
    st += spf_base(SD) + spf(56, I5 + 4, P["SP5"], I6)
    if P["PF6"]:
        st.append(Item(["s_lshr_b32 s36, s2, 3", "s_lshl_b32 s36, s36, 11", "s_lshr_b32 s30, s3, 1", "s_lshl_b32 s30, s30, 10", "s_add_u32 s36, s36, s30",
                        "s_and_b32 s30, s3, 1", "s_lshl_b32 s30, s30, 6", "s_add_u32 s36, s36, s30", "s_and_b32 s30, s2, 1",
                        "s_mul_i32 s30, s30, %d" % (1792 * 2048), "s_add_u32 s36, s36, s30", "s_add_u32 s36, s36, 384",
                        "s_add_u32 s36, s36, s%d" % SD, "s_addc_u32 s37, s%d, 0" % (SD + 1)]))
        for p in range(56):
            st.append(Item(["s_mov_b32 s%d, %d" % (SFOC, wd_row(p) * 2048), "s_load_dword s66, s[36:37], s%d" % SFOC], at=I6 + 16 * p - P["PF6"], delay=8))
    S.add(Stream(st, "spf", rate=lambda i: 2))

    if P["MARK"] & 2:
        S.add(Stream([Item([], after={"stOA"}, fn=lambda: mark("stOA")), Item([], after={"flagOA"}, fn=lambda: mark("flOA")),
                      Item([], at=I3 + P["COA"] - 4, fn=lambda: mark("bcOA")), Item([], after={"chkOA"}, fn=lambda: mark("ckOA")),
                      Item([], at=I3 + P["FD_OB"] - 3, fn=lambda: mark("bfOB")), Item([], after={"flagOB"}, fn=lambda: mark("flOB")),
                      Item([], at=I3 + P["COB"] - 4, fn=lambda: mark("bcOB")), Item([], after={"chkOB"}, fn=lambda: mark("ckOB"))],
                     "marks", budget=lambda i: 99))

    def p2go():
        assert "sil" in S.events
        S.wait(d={"SIL"})
    class Hooks(dict):
        def __setitem__(self, g, fn):
            old = self.get(g)
            dict.__setitem__(self, g, fn if old is None else (lambda: (old(), fn())))
    hooks = Hooks()
    hooks[IP0] = p2go
    if P["WALK"] & 64:
        hooks[I6 + P["R2AT"]] = lambda: S("; @range 2")
        hooks[I3 + P["W2AT"]] = lambda: walk(S, 2)
    if P["CT1"]:
        hooks[P["CT1"]] = lambda: S.emit(code_touch(S, 190, 219))
    if P["MARK"]:
        for g, nm in ((pos2[(0, 16 - TQ)] if TQ else I3 - 208, "q2"), (pos2[(1, 16 - TQ)] if TQ else I3 - 104, "q3"), (I3 + 128, "p3b"),
                      (I5 + 224, "p5s4"), (pos5[(32 - T5, 2)], "p5t"), (I6, "p6"), (I6 + 192, "p6s6"), (I6 + 384, "p6s12"), (I6 + 640, "p6s20"))[:3 if P["MARK"] & 2 else 9]:
            hooks[g] = (lambda nm=nm: mark(nm))
    if P["TR0"] is not None:
        def tr(k):
            if k:
                S("v_writelane_b32 v255, s70, %d" % (k - 1))
            S("s_memtime s[70:71]")
        for k in range(64):
            g = P["TR0"] + k * P["TRS"]
            if g < IE:
                hooks[g] = (lambda k=k: tr(k))
    for s in range(8, 12):
        def swp(s=s):
            tg = ("A", G6 + s)
            assert not any(g.tag == tg for g in S.aq) and not any(t == tg for o, t, p in S.pend)
            S.wait(v={tg})
            for kk in range(2):
                for e in range(2):
                    S("v_swap_b32 v%d, v%d" % (vsing(s, 2 * kk) + 2 + e, vsing(s, 2 * kk + 1) + e))
        g = pos6[(s, 1)] - 3
        while g in hooks:
            g -= 1
        hooks[g] = swp

    S.LGMIN = P["LGMIN"]
    S.run(I3, budget=lambda i: P["BUD2"] if i < end2[(0, 2)] else P["BUD2B"], vsp=lambda i: P["VSP2"], hooks=hooks, pair=lambda i: True)
    S.LGMIN = 0
    mark("qend")
    S.drain(s_poll2, "chkOA")
    S.drain(s_att, every=P["OEV"], nmax=P["OPRE"], only="A")
    mark("attB")

    RES, GV, SB, S2, XU, E = 32, 64, 96, 144, 160, 80
    mld = ["buffer_load_dwordx4 %s, v%d, %s, s%d offen sc1" % (vr(SB, 4), VM, sq(SW), SMS)]
    st = check_items(mld, [x.replace(CMP, "s[24:25]") for x in tag_cmp([SB], SB + 4)], I3 + P["MODAT"], I3 + P["MODAT"] + 40, "mod2", CMP="s[24:25]")
    v = cap(xsum, [SB + i for i in range(4)], [SB + 4 + i for i in range(4)], (16, 32))
    v += cap(round_bf16_pair, SB, SB + 1, SB + 4) + cap(round_bf16_pair, SB + 2, SB + 3, SB + 5)
    v += ["v_add_f32 v%d, s%d, v%d" % (SB + i, SCB, SB + i) for i in range(4)]
    v += cap(round_bf16_pair, SB, SB + 1, SB + 4) + cap(round_bf16_pair, SB + 2, SB + 3, SB + 5)
    st += items(v)
    st.append(Item("ds_write_b128 v%d, %s offset:%d" % (VST, vr(SB, 4), VEC), dtag="V"))
    st.append(Item([], delay=6, needd={"V"}))
    first = True
    for vv, dst in enumerate((GV, SB, S2)):
        for jj in range(4):
            st.append(Item("ds_read_b128 %s, v%d offset:%d" % (vr(dst + jj * 4, 4), VVEC, VEC + vv * 256 + jj * 64), dtag="V2", bar=first, delay=1, sets="vec" if (vv, jj) == (2, 3) else None))
            first = False
    s_mod = S.add(Stream(st, "mod", rate=lambda i: 6))
    st = []
    v = []
    for q in range(4):
        v += ["v_permlane16_swap_b32 v%d, v%d" % (RES + 4 * q, RES + 4 * q + 2), "v_permlane16_swap_b32 v%d, v%d" % (RES + 4 * q + 1, RES + 4 * q + 3)]
    for i in range(16):
        v += ["v_lshlrev_b32 v%d, 16, v%d" % (XU + 2 * i, RES + i), "v_and_b32 v%d, 0xffff0000, v%d" % (XU + 2 * i + 1, RES + i)]
    st += items(v, at=I3 + 50, needv={"X"})
    st.append(Item([], sets="xu"))
    s_x = S.add(Stream(st, "x", rate=lambda i: 4))
    ACC, G, H = ACC3, 112, 48

    def ln_sums(tb, pk):
        x, e, c = XU + tb * 16, E + tb * 8, ACC + tb * 16
        if pk:
            v = ["v_pk_fma_f32 %s, %s, %s, %s" % (vr(x + 2 * i, 2), vr(c + 2 * i, 2), vr(GV + 2 * i, 2), vr(x + 2 * i, 2)) for i in range(8)]
            v.append("v_pk_mul_f32 %s, %s, %s" % (vr(e + 2, 2), vr(x, 2), vr(x, 2)))
            for i in range(1, 8):
                v.append("v_pk_fma_f32 %s, %s, %s, %s" % (vr(e + 2, 2), vr(x + 2 * i, 2), vr(x + 2 * i, 2), vr(e + 2, 2)))
                v.append("v_pk_add_f32 %s, %s, %s" % (vr(e, 2), vr(e, 2) if i > 1 else vr(x, 2), vr(x + 2 * i, 2)))
        else:
            v = ["v_fmac_f32 v%d, v%d, v%d" % (x + i, c + i, GV + i) for i in range(16)]
            v += ["v_mul_f32 v%d, v%d, v%d" % (e + 2 + i, x + i, x + i) for i in range(2)]
            for i in range(2, 16):
                v.append("v_fmac_f32 v%d, v%d, v%d" % (e + 2 + (i & 1), x + i, x + i))
                v.append("v_add_f32 v%d, v%d, v%d" % (e + (i & 1), e + (i & 1) if i > 3 else x + (i & 1), x + i))
        v += ["v_add_f32 v%d, v%d, v%d" % (e, e, e + 1), "v_add_f32 v%d, v%d, v%d" % (e + 1, e + 2, e + 3)]
        v += cap(xsum, [e, e + 1], [e + 2, e + 3], (16, 32))
        v += ["v_and_b32 v%d, -2, v%d" % (e, e), "v_and_b32 v%d, 0x7fffffff, v%d" % (e + 1, e + 1)]
        return v + ["buffer_store_dwordx2 %s, v%d, %s, s%d offen offset:%d sc1" % (vr(e, 2), VS1, sq(SW), SSW, tb * 128)]

    def ln_pack(tb):
        x, r, c = XU + tb * 16, RES + tb * 8, ACC + tb * 16
        v = ["v_cvt_pk_bf16_f32 v%d, v%d, v%d" % (r + i, x + 2 * i, x + 2 * i + 1) for i in range(8)]
        for i in range(8):
            v += ["v_accvgpr_write_b32 a%d, v%d" % (AX1 + tb * 8 + i, r + i), "v_lshlrev_b32 v%d, 16, v%d" % (c + 2 * i, r + i),
                  "v_and_b32 v%d, 0xffff0000, v%d" % (c + 2 * i + 1, r + i)]
        return v

    def st_ld(tb):
        return ["buffer_load_dwordx2 %s, v%d, %s, s%d offen offset:%d sc1" % (vr(G + (tb * 4 + i) * 2, 2), VS2, sq(SW), SSR, i * 1024 + tb * 128)
                for i in range(4)]

    def st_cmp(tb):
        g, t = G + tb * 8, E + tb * 8 + 4
        return ["v_max3_u32 v%d, v%d, v%d, v%d" % (t, g, g + 1, g + 2), "v_max3_u32 v%d, v%d, v%d, v%d" % (t, t, g + 3, g + 4),
                "v_max3_u32 v%d, v%d, v%d, v%d" % (t, t, g + 5, g + 6), "v_max_u32 v%d, v%d, v%d" % (t, t, g + 7), "v_cmp_eq_u32 %s, -1, v%d" % (CMP, t)]

    def ln_apply(tb):
        g, e, m, c, h = G + tb * 8, E + tb * 8, XU + tb * 16, ACC + tb * 16, H + tb * 8
        v = ["v_pk_add_f32 %s, %s, %s" % (vr(e, 2), vr(g, 2), vr(g + 2, 2)), "v_pk_add_f32 %s, %s, %s" % (vr(e + 2, 2), vr(g + 4, 2), vr(g + 6, 2)),
             "v_pk_add_f32 %s, %s, %s" % (vr(e, 2), vr(e, 2), vr(e + 2, 2))]
        v += cap(xsum, [e, e + 1], [e + 2, e + 3], (16, 32))
        v += ["v_mul_f32 v%d, 0x%x, v%d" % (m, f32bits(1.0 / 1024), e), "v_mul_f32 v%d, 0x%x, v%d" % (m + 4, f32bits(1.0 / 1024), e + 1),
              "v_fma_f32 v%d, -v%d, v%d, v%d" % (m + 4, m, m, m + 4), "v_max_f32 v%d, 0, v%d" % (m + 4, m + 4)]
        v += cap(ln_finish, m)
        v += ["v_pk_add_f32 %s, %s, %s neg_lo:[0,1] neg_hi:[0,1]" % (vr(c + 2 * i, 2), vr(c + 2 * i, 2), vr(m, 2)) for i in range(8)]
        v += ["v_pk_mul_f32 %s, %s, %s" % (vr(c + 2 * i, 2), vr(c + 2 * i, 2), vr(m + 4, 2)) for i in range(8)]
        v += ["v_pk_fma_f32 %s, %s, %s, %s" % (vr(c + 2 * i, 2), vr(c + 2 * i, 2), vr(S2 + 2 * i, 2), vr(SB + 2 * i, 2)) for i in range(8)]
        v += ["v_cvt_pk_bf16_f32 v%d, v%d, v%d" % (h + i, c + 2 * i, c + 2 * i + 1) for i in range(8)]
        S.emit(v)
        for kb in range(2):
            S("buffer_store_dwordx4 %s, v%d, %s, s%d offen offset:%d sc1" % (vr(h + kb * 4, 4), VA3, sq(SW), SH2 + kb, tb * 1024), vtag="SH")

    def retry(tag, ld, cm):
        lp, ok, chk = S.uid("rl"), S.uid("rok"), S.uid("rchk")
        S("s_mov_b32 s33, %d" % SPIN)
        S.wait(v={tag})
        S("s_branch %s" % chk)
        a.label(lp)
        for x in ld + ["s_waitcnt vmcnt(0)"]:
            a(x)
        S.label(chk)
        S.emit(cm)
        S("s_cmp_eq_u64 %s, 0" % CMP)
        S("s_cbranch_scc1 %s" % ok)
        S("s_sub_u32 s33, s33, 1")
        S("s_cmp_lg_u32 s33, 0")
        S("s_cbranch_scc1 %s" % lp)
        S.label(ok)

    def val(tbs, quads, t):
        ld, cm, cp = [], [], []
        for s in range(NV):
            ld.append("s_mov_b32 s30, %d" % (WS_H2 + s * KBS))
            for k, tb in enumerate(tbs):
                b = quads[2 * s + k]
                ld.append("buffer_load_dwordx4 %s, v%d, %s, s30 offen offset:%d sc1" % (vr(b, 4), VA5, sq(SW), tb * 1024))
                cm += ["v_max3_u32 v%d, v%d, v%d, v%d" % (t, b, b + 1, b + 2) if not cm else "v_max3_u32 v%d, v%d, v%d, v%d" % (t, t, b, b + 1),
                       "v_max_u32 v%d, v%d, v%d" % (t, t, b + 3) if not cm else "v_max3_u32 v%d, v%d, v%d, v%d" % (t, t, b + 2, b + 3)]
                cp += ["v_accvgpr_write_b32 a%d, v%d" % (((G5 + s) % NA) * 16 + tb * 4 + e, b + e) for e in range(4)]
        return ld, cm + ["v_cmp_eq_u32 %s, -1, v%d" % (CMP, t)], cp

    st = items(ln_sums(0, False), at=IT0, after={"vec", "xu"}, needd={"V2"}) + items(ln_pack(0))
    s_t0 = S.add(Stream(st, "tb0", rate=lambda i: P["T0R"]))
    S.run(I5, budget=lambda i: P["BUD3"], vsp=lambda i: P["VSP3"], hooks=hooks, pair=lambda i: True)
    S.drain(s_t0)
    mark("p3end")
    if P["S0AT"] == 0:
        S.emit(st_ld(0), vtag="G0")
    S.emit(ln_sums(1, True))
    if P["S0AT"] == 1:
        S.emit(st_ld(0), vtag="G0")
    S.emit(ln_pack(1))
    if P["S0AT"] == 2:
        S.emit(st_ld(0), vtag="G0")
    retry("G0", st_ld(0), st_cmp(0))
    mark("stat0")
    ln_apply(0)
    S.lat, lat = 0, S.lat
    S.barrier()
    S.lat = lat
    S.reads()
    if P["WALK"] & 2:
        walk(S, 1)
    S("; @range %d" % (1 if P["WALK"] & 38 else -1))
    if P["DBG"]:
        S("s_add_u32 s30, s%d, %d" % (SH2, WS_X1 - WS_H2))
        S("s_add_u32 s31, s%d, %d" % (SH2B, WS_X1 - WS_H2))
        for tb in range(2):
            for kb in range(2):
                S("buffer_store_dwordx4 %s, v%d, %s, s%d offen offset:%d" % (vr(RES + (tb * 2 + kb) * 4, 4), VA3, sq(SW), 30 + kb, tb * 1024))
    ld, cm, cp = val((0, 2), [128, 132, 136, 140, 0, 4, 8, 12], E)
    S.emit(st_ld(1), vtag="G1")
    if P["EAT"] == 0:
        S.emit(ld, vtag="VE")
    retry("G1", st_ld(1), st_cmp(1))
    mark("stat1")
    if P["EAT"] == 1:
        S.emit(ld, vtag="VE")
    ln_apply(1)
    mark("h2st")
    if P["EAT"] == 2:
        S.emit(ld, vtag="VE")
    retry("VE", ld, cm)
    S.emit(cp)
    mark("h2a")

    ld, cm, cp = val((1, 3), [128 + 4 * q for q in range(8)], VP)
    st = [Item(flag_st(SF2P, 0), at=I5 + P["FH2"], needv={"SH"})]
    st += check_items(ld, cm, I5 + P["OAT"], I5 + P["OAT"] + 40, "valO", lat=36) + items(cp) + [Item([], sets="odd")]
    st += pollchk(SF2C, VFB, I5 + P["CH2"], "h2b", 0, lat=36)

    def odd_go():
        S.drain(s_poll, "odd")
    hooks[IO] = odd_go
    st += items(["v_lshrrev_b32 v%d, 4, v%d" % (VFB, VL), "v_lshl_add_u32 v%d, v%d, %d, v%d" % (VFB, VFB, 6 + FS, VFA),
                 "s_lshl_b32 s32, s3, %d" % (8 + FS), "s_add_u32 s32, s32, 0x%x" % FL_O], at=I5 + 300)
    st.append(Item(["s_cmp_eq_u32 s2, 0", "s_cselect_b32 s32, s32, s%d" % SFOP, "s_cselect_b32 s31, -1, 0"]))
    st += items(["v_and_b32 v%d, s31, v%d" % (VFB, VFB)])
    st += pollchk(32, VFB, I5 + 440, "seen", 0, lat=130)
    st.append(Item(["s_or_b32 s32, s2, s3", "s_cselect_b32 s32, 0x%x, 0x%x" % (OOB, FL_EPOCH)] if False else
                   ["s_or_b32 s32, s2, s3", "s_cselect_b32 s32, 0x%x, 0" % OOB, "s_add_u32 s32, s32, 0x%x" % FL_EPOCH]))
    st.append(Item("buffer_store_dword v%d, v%d, %s, s32 offen sc1" % (VTAG, VF0, sq(SW)), bar=True))
    st += items(["v_add_u32 v%d, s%d, v%d" % (VFA, SFC, VFA), "s_mov_b32 s%d, 0" % SFC])
    st += items(["v_accvgpr_write_b32 a%d, -1" % (252 + e) for e in range(4)])
    ct = code_touch(S, VP, VW3)
    st.append(Item(ct, at=I5 + 1000))
    for i in range(4):
        st.append(Item("buffer_store_dwordx4 a[252:255], v%d, %s, s%d offen offset:%d sc1" % (VT16, sq(SW), SIN, i * 1024),
                       at=I6 + P["PZAT"], delay=P["PZD"], vtag="SD"))
    for k, g_ in enumerate("ABCD"):
        if g_ == "D":
            st += items(["s_xor_b32 s32, s%d, 0x%x" % (SFP, 512 << FS), "v_mov_b32 v%d, s32" % VFB,
                         "v_cndmask_b32_e64 v%d, v%d, v%d, s[34:35]" % (VFA, VFB, VFA)])
        st += pollchk(SFC, VFA, I6 + P["C" + g_], "chk" + g_, k, {"flag" + g_})
    s_poll = S.add(Stream(st, "poll", budget=lambda i: 8))

    def glu(g, u, n, d=None):
        r = ["v_mul_f32 v%d, s%d, v%d" % (g + e, SNL, g + e) for e in range(n)]
        r += ["v_exp_f32 v%d, v%d" % (g + e, g + e) for e in range(n)]
        r += ["v_add_f32 v%d, 1.0, v%d" % (g + e, g + e) for e in range(n)]
        r += ["v_rcp_f32 v%d, v%d" % (g + e, g + e) for e in range(n)]
        r += ["v_mul_f32 v%d, v%d, v%d" % (g + e, g + e, u + e) for e in range(n)]
        r += ["v_cvt_pk_bf16_f32 v%d, v%d, v%d" % ((g if d is None else d) + e, g + 2 * e, g + 2 * e + 1) for e in range(n // 2)]
        return r

    doneA = end5[(1, 2, 1)]
    st = []
    for tb in range(4):
        g = acc5(tb, 0, 2, 0)
        st += items(glu(g, acc5(tb, 1, 2, 0), 8), at=doneA)
        st.append(Item("buffer_store_dwordx4 %s, v%d, %s, s%d offen offset:%d sc1" % (vr(g, 4), VA5, sq(SW), SHA, tb * 1024), vtag="SA",
                       sets="stA" if tb == 3 else None))
    for tb in range(4):
        g, g0 = acc5(tb, 0, 2, 2), acc5(tb & 2, 0, 2, 2)
        st += items(glu(g, acc5(tb, 1, 2, 2), 4, g0 + 2 * (tb & 1)), at=end5[(1, 2, 2)])
        if tb & 1:
            st.append(Item("buffer_store_dwordx4 %s, v%d, %s, s%d offen offset:%d sc1" % (vr(g0, 4), VA5, sq(SW), SHB, (tb & 2) * 1024),
                           vtag="SB", sets="stB" if tb == 3 else None))
    for pr in range(2):
        for tb in range(4):
            g = acc5(tb, 0, 1, 2 * pr)
            st += items(glu(g, acc5(tb, 1, 1, 2 * pr), 8), at=end5[(1, 1, 2 * pr + 1)])
            st.append(Item("buffer_store_dwordx4 %s, v%d, %s, s%d offen offset:%d sc1" % (vr(g, 4), VA5, sq(SW), SHC + pr, tb * 1024), vtag="S" + "CD"[pr],
                           sets="st" + "CD"[pr] if tb == 3 else None))

    def gb(i):
        for g_ in "ABCD":
            if "st" + g_ not in S.events:
                return P["GB_" + g_]
        return 0
    S.add(Stream(st, "glu", rate=gb))

    st = []
    for r in range(P["PFN"]):
        st.append(Item("s_mov_b32 s%d, %d" % (SOA, (14 - P["PFN"] + r) * 0x80000), at=I5 + P["PF0"] + r * P["PFSTEP"]))
        st.append(Item(touch(VW3, VTA, ST, "s%d" % SOA), delay=1))
    S.add(Stream(st, "pf"))

    PK, RES, X, GV, INB = 64, 80, 96, 128, 144
    sent = pos6[(27, 1)] + 16
    st = []
    for kb in range(2):
        for tb in range(2):
            q = tb * 2 + kb
            src = 32 + (tb * 4 + 2 * kb) * 4
            st += items(["v_cvt_pk_bf16_f32 v%d, v%d, v%d" % (PK + q * 4 + e, src + 2 * e, src + 2 * e + 1) for e in range(4)],
                        at=sent - 8 * (1 - kb), after={"chkD"})
            st.append(Item("buffer_store_dwordx4 %s, v%d, %s, s%d offen offset:%d sc1" % (vr(PK + q * 4, 4), VT16, sq(SW), SOUTB, q * 1024)))
    v = ["v_accvgpr_read_b32 v%d, a%d" % (RES + i, AX1 + i) for i in range(16)]
    for i in range(16):
        v += ["v_lshlrev_b32 v%d, 16, v%d" % (X + 2 * i, RES + i), "v_and_b32 v%d, 0xffff0000, v%d" % (X + 2 * i + 1, RES + i)]
    st += items(v)
    st += [Item("ds_read_b128 %s, v%d offset:%d" % (vr(GV + jj * 4, 4), VVEC, VEC + 768 + jj * 64), dtag="GV") for jj in range(4)]
    inld = ["buffer_load_dwordx4 %s, v%d, %s, s%d offen offset:%d sc1" % (vr(PK + i * 4, 4), VT16, sq(SW), SIN, i * 1024) for i in range(4)]
    cm = ["v_max3_u32 v%d, v%d, v%d, v%d" % (VP, PK, PK + 1, PK + 2)]
    cm += ["v_max3_u32 v%d, v%d, v%d, v%d" % (VP, VP, PK + i, PK + i + 1) for i in range(3, 15, 2)]
    cm += ["v_max_u32 v%d, v%d, v%d" % (VP, VP, PK + 15), "v_cmp_eq_u32 %s, -1, v%d" % (CMP, VP)]
    st += check_items(inld, cm, IE + P["INPOS"], IE + P["INPOS"] + 30, "inbox", lat=30)
    v = []
    for i in range(16):
        t = INB + (i & 3)
        v += ["v_lshlrev_b32 v%d, 16, v%d" % (t, PK + i), "v_and_b32 v%d, 0xffff0000, v%d" % (PK + i, PK + i),
              "v_fmac_f32 v%d, v%d, v%d" % (X + 2 * i, t, GV + (2 * i) % 16), "v_fmac_f32 v%d, v%d, v%d" % (X + 2 * i + 1, PK + i, GV + (2 * i + 1) % 16)]
    st += items(v, needd={"GV"})

    def fin(tb, kb, pk):
        r = RES + (tb * 2 + kb) * 4
        b = (tb * 4 + 2 * kb) * 4
        if pk:
            v = ["v_pk_fma_f32 %s, %s, %s, %s" % (vr(X + b + e, 2), vr(b + e, 2), vr(GV + 8 * kb + e, 2), vr(X + b + e, 2)) for e in range(0, 8, 2)]
        else:
            v = ["v_fmac_f32 v%d, v%d, v%d" % (X + b + e, b + e, GV + 8 * kb + e) for e in range(8)]
        v += ["v_cvt_pk_bf16_f32 v%d, v%d, v%d" % (r + e, X + b + 2 * e, X + b + 2 * e + 1) for e in range(4)]
        v += ["v_permlane16_swap_b32 v%d, v%d" % (r, r + 2), "v_permlane16_swap_b32 v%d, v%d" % (r + 1, r + 3)]
        return v + ["buffer_store_dwordx4 %s, v%d, %s, %s offen offset:%d%s" % (vr(r, 4), VX, sq(SO), "s%d" % S8K if tb else "0", kb * 64, P["OUTF"].replace("_", " "))]
    st += items(fin(0, 0, False) + fin(1, 0, False), at=IK2)
    s_fin = S.add(Stream(st, "fin", rate=lambda i: P["FINR"]))

    S.run(I6, vsp=lambda i: P["VSP5"] if i < I5 + (P["DEEP"] - 6) * 56 else P["VSP5D"], hooks=hooks, urgent=P["URG5"], pair=lambda i: i >= doneA or P["PAIR"] & 1)
    assert "stA" in S.events and "chkA" in S.events, S.events
    S.run(IE, vsp=lambda i: P["VSP6"], hooks=hooks, pair=lambda i: P["PAIR"] & 2)
    mark("p6end")
    S.drain(s_fin)
    for s_ in S.streams:
        assert not s_.items, s_.name
    S.emit(fin(0, 1, True) + fin(1, 1, True))
    a.label("L_hot_end")
    if P["MARK"] or P["TR0"] is not None:
        S("s_waitcnt vmcnt(0)")
        mark("end", True)
        srd(a, 64, SW, 0x1000000, WS_STAMP + 0x100000)
        a("s_lshl_b32 s68, s2, 10")
        a("s_lshl_b32 s69, s3, 8")
        a("s_add_u32 s68, s68, s69")
        a("v_lshlrev_b32 v32, 2, v%d" % VL)
        a("buffer_store_dword v255, v32, s[64:67], s68 offen")
    a("s_endpgm")
    for ls, lb, ld, cmp_, CMP_ in slow:
        lp = a.uid("spin")
        S.label(ls)
        S("s_mov_b32 s33, %d" % SPIN)
        S.label(lp)
        S.emit(ld)
        S("s_waitcnt vmcnt(0)")
        S.emit(cmp_)
        S("s_cmp_eq_u64 %s, 0" % CMP_)
        S("s_cbranch_scc1 %s" % lb)
        if P["BKX"]:
            S("s_sleep %d" % P["BKX"])
        S("s_sub_u32 s33, s33, 1")
        S("s_cmp_lg_u32 s33, 0")
        S("s_cbranch_scc1 %s" % lp)
        S("s_branch %s" % lb)
    a.label(end)
    a("s_endpgm")
    a.end_kernel(name, 256, 256, 102)
    a.launch(name, 256, 256, LDS_BYTES)
    return S, dict(I3=I3, I5=I5, I6=I6, IE=IE)


HEADER = gen2.HEADER.replace("gen2", "gen6")


def build(verbose=False, **over):
    import gen3
    old = dict(P)
    P.update(over)
    VMCOST[0] = P["VMC"]
    a = Asm()
    S, info = gen(a, NAME + "_kernel")
    a.label("L_code_end")
    a("s_endpgm")
    gen3.place_stubs(a)
    if verbose:
        print(info, "nops", S.nops, "events", S.events)
        print("\n".join(S.log))
        print(S.lead_report())
    P.clear()
    P.update(old)
    return a.text(HEADER).replace("@launch kernel=%s_kernel " % NAME, "@launch ")


if __name__ == "__main__":
    open("/code/%s.s" % NAME, "w").write(build(True))
```

```python
import gen2
from gen2 import NAME, f32bits, srd, xsum, xred, round_bf16_pair, ln_finish, mfma, touch, lines
from asmlib import *
from sched import *

WS_MOD, MODP, WS_STAT, WS_FLAG = 0, 6144 * 4, 0x40000, 0x80000
WS_H1, WS_O, WS_H2, WS_XCH, WS_HH, WS_X1 = 0x100000, 0x500000, 0x900000, 0xD00000, 0x1100000, 0x2000000
WS_HX = 0x2400000
WS_SIZE = 0x2800000
WS_STAMP = 0x3000000
ACT_BYTES, WF_BYTES, KBS, NLOG2E, SPIN, FS = 2048 * 1024 * 2, 1024 * 3584 * 2, 0x20000, 0xbfb8aa3b, 0x40000, 6
FL_HH, FL_O, FL_H2, FL_H1, FL_EPOCH = [WS_FLAG + (x << FS) for x in (0, 1024, 3072, 4096, 5300)]
OOB = 0x40000000

P = dict(
    TQ=9, T5=10, T6=4, NA=12, NF=11, BAR2=24, BAR5=56, BAR6=32, BAR3=16,
    ILV=9, N0F=0, NWQ=0, XD=1, URG5=60, R2AT=1, W2AT=85, CT1=660, MODAT=44, T0R=16, S0AT=0, EAT=1, FH2=16, OAT=40, NTX=2, PF6=0, PZAT=-1000, PZD=2, DL1=0, BK1=0, DLS=0, BKS=0, DL2=0, BK2=0, BKX=0, CH2=160, MODE=0, LGMIN=8, XB=6, BUD2=12, BUD2B=8, BUD3=12, VSP2=4, VSP3=3, VSP5=5.5, VSP5D=5.5, VSP6=3.8, LG=13,
    GB_A=16, GB_B=6, GB_C=7, GB_D=3, ATR=24,
    FD_A=44, FD_B=60, FD_C=60, FD_D=60, FD_OA=54, FD_OB=40,
    CA=-50, CB=6 * 32, CC=10 * 32, CD=18 * 32, PLAT=40, COA=-40, OPRE=20, OEV=5, QUIETA=0, QUIETB=40, COB=90, CH1=30,
    PF0=60, PFSTEP=84, PFN=11, INPOS=-36, FINR=12, OUTF="_sc1", NF1=2, W5AT=128, W5N=0,
    LEAD5=190, LEADA=190, DEEP=22, PAIR=2, VMC=8,
    SPQ=17, SP5=22, N0=36, N0L=0, N0M=18, TU="Le.Gl.Gl.Gl", ROT=128, P2FAKE=0, P2U=15, P2S=1, P2AT=0, P2PQ=96, P2PS=0, P2SP=0, P2G0=190, P2GS=60, FOLD=1, KROT=0, HXE=0, HXP=-24, QUIETH=0, CT0=2, WALK=67,
    MARK=0, TR0=None, TRS=56, DBG=0,
)

MISC = 12288
NPAGES = 37
LDS_BYTES = MISC + NPAGES * 4096
X0, VEC, SILT = 8192, 10240, 11264

VL, VA5, VW1, VW2, VDS = 224, 225, 226, 227, 228
VA3, VW3, VW6S, VFA, VP, VTAG, VF0, VTA, VTD, VX, VVEC, VT16, VA6, VW6K, VFB = range(240, 255)
VDQ, VDH, VWQ, VWQ2, VAQ, VH, VFL, VXW, VXO, BP, HK, HP, VX0, VXR = 176, 182, 185, 186, 187, 188, 189, 191, 192, 193, 196, 200, 208, 209
VM, VS1, VS2, VST = 210, 211, 212, 213
VDG, VWM2, VGR, GD2 = 214, 217, 218, 220
SIL2 = [16, 20, 24, 28, 96, 100, 104, 108]
HF = 112
VHS, VHR, VHT, ZS, ZR = 188, 182, 183, 144, 160
SW, SWO, SG, SU, SD, SX, SO, ST, SQ = 4, 8, 12, 16, 44, 48, 52, 56, 80
SMD, SC = 60, 64
SA_, SWF, SM0, SNL = 40, 41, 42, 43
SHA, SHB, SHC, SHC2 = 64, 65, 20, 21
SRW, VAL_, VF1 = 74, 184, 190
R0, R1 = 0, 1
S8K, SCB, SCMP, SMK = 38, 39, 68, 24
SOA, SFOP = 78, 79
SFOC, SEXP = 88, 89
SFP, SFC, SF2P, SF2C, SSR, SSW, SIN, SOUTB, SH2, SH2B, STAG, SMS = 90, 91, 92, 93, 94, 95, 96, 97, 98, 99, 100, 101
CMP = "s[%d:%d]" % (SCMP, SCMP + 1)


def sq(s):
    return "s[%d:%d]" % (s, s + 3)


def srd_fin(a, d, nbytes):
    a("s_mov_b32 s%d, 0x%x" % (d + 2, nbytes))
    a("s_mov_b32 s%d, 0x20000" % (d + 3))


def cap(fn, *args):
    b = Asm()
    fn(b, *args)
    return [x for x in lines(b) if not x.startswith("s_nop")]


def items(lst, **kw):
    r = [Item(x) for x in lst]
    if r and kw:
        r[0] = Item(lst[0], **kw)
    return r


def code_touch(S, vo, vd, lane=VL):
    lab = S.uid("pc")
    return ["s_getpc_b64 s[30:31]", lab + ":",
            "s_lshr_b32 s32, s2, 4", "s_lshl_b32 s32, s32, 2", "s_add_u32 s32, s32, s3", "s_lshl_b32 s32, s32, 13",
            "v_lshlrev_b32 v%d, 7, v%d" % (vo, lane), "v_add_u32 v%d, s32, v%d" % (vo, vo),
            "v_min_u32 v%d, L_code_end-%s-4, v%d" % (vo, lab, vo),
            "global_load_dword v%d, v%d, s[30:31]" % (vd, vo)]


TR = "ds_read_b64_tr_b16 {d}, v{b} offset:{o}"


def acc2(hd, tb, seg, fb):
    return hd * 48 + (tb * 6 + seg * 2 + fb) * 4


def acc5(tb, m, grp, jj):
    if grp == 2:
        return ((tb * 2 + m) * 2 + jj) * 4 if jj < 2 else 64 + (tb * 2 + m) * 4
    return 96 + ((tb * 2 + m) * 4 + jj) * 4


def wo_row(p):
    return 64 * (p & 15) + 32 * (p >> 4)


def wd_row(p):
    if p < 16:
        return 448 * (p >> 2) + (64, 192, 224, 352)[p & 3]
    if p < 24:
        q = p - 16
        return 448 * (q >> 1) + (96, 320)[q & 1]
    t, h = (p - 24) & 15, (p - 24) >> 4
    return 448 * (t >> 2) + 128 * (t & 3) + 32 * h


def walk(S, k, site=None):
    S("s_mov_b64 vcc, -1")
    for q in range(3):
        S("s_cmp_eq_u32 s3, %d" % q)
        S("s_cbranch_scc1 L_wk%d_%d" % (k, q))
    S("s_branch L_wk%d_3" % k)
    if site == "a":
        S.label("L_wkret%d_a" % k)
    else:
        S.label("L_wk%d_end" % k)
        if site == "b":
            S("s_bitcmp1_b32 s2, 3")
            S("s_cbranch_scc1 L_wkret%d_a" % k)
    S("s_mov_b64 vcc, 0")


def gen(a, name):
    TQ, T5, T6, NA, NF = P["TQ"], P["T5"], P["T6"], P["NA"], P["NF"]
    AWF = NA * 16
    AX1 = AWF + NF * 4
    assert AX1 + 16 <= 252 and TQ <= 11

    def fragreg(buf, half):
        return ar(AWF + buf * 4, 4) if half is None else ar(AWF + buf * 4 + 2 * half, 2)

    def dsbase(kind, addr):
        w = addr >> 16
        r = VDH + w if kind == "h" else VDG + w if kind == "g" else (VDQ + 2 * w + kind[1] if isinstance(kind, tuple) else VDS + 4 * w + kind)
        return r, addr - (w << 16)

    a.begin_kernel(name)
    S = Sched(a, NF, fragreg, dsbase, MISC, NPAGES, "s%d" % SM0)
    S.LG = P["LG"]
    S.BOTH = True
    end = S.uid("end")

    mk = dict(n=0, pend=[], names={})

    def mark(nm, now=False):
        if not P["MARK"] or (P["MARK"] & 2 and nm in ("setup", "gland", "xland", "lnorm")):
            return
        k = mk["names"].setdefault(nm, len(mk["names"]))
        assert k < 32
        S("; @mark %d %s" % (k, nm))
        b = 70
        mk["n"] += 1
        for pb, pk in [x for x in mk["pend"] if x[0] == b]:
            S("v_writelane_b32 v255, s%d, %d" % (pb, 2 * pk))
            S("v_writelane_b32 v255, s%d, %d" % (pb + 2, 2 * pk + 1))
        mk["pend"] = [x for x in mk["pend"] if x[0] != b]
        S("s_nop 3")
        S("s_memtime s[%d:%d]" % (b, b + 1))
        S("s_memrealtime s[%d:%d]" % (b + 2, b + 3))
        mk["pend"].append((b, k))
        if now:
            S("s_waitcnt lgkmcnt(0)")
            for pb, pk in mk["pend"]:
                S("v_writelane_b32 v255, s%d, %d" % (pb, 2 * pk))
                S("v_writelane_b32 v255, s%d, %d" % (pb + 2, 2 * pk + 1))
            mk["pend"] = []

    main, frags, pages, ags = [], {}, [], []
    seen = set()
    G3, G5, G6 = 16, 32, 64

    def vsing(s, q):
        return 96 + ((s - 8) * 2 + (q >> 1)) * 16 + (q & 1) * 4

    def areg(gs, q):
        if G6 + 8 <= gs < G6 + 12:
            return vr(vsing(gs - G6, q), 4)
        return ar((gs % NA) * 16 + q * 4, 4)

    def mm(acc, f, gs, x, swap=False, sub=None):
        c = vr(acc, 4) if (acc, f[0]) in seen else "0"
        seen.add((acc, f[0]))
        main.append((mfma(vr(acc, 4), x, "{W}", c) if swap else mfma(vr(acc, 4), "{W}", x, c), f, ("A", gs) if sub is None else ("A", gs, sub)))

    def page(key, srd_, v, soff, njj, imm=0, nt=False, base=None, **kw):
        pages.append(Page(key, (["s_mov_b32 s%d, %d" % (SWF, soff) if base is None else "s_add_u32 s%d, s%d, %d" % (SWF, base, soff)],
                                "buffer_load_dwordx4 v%d, %s, s%d offen offset:%d%s lds" % (v, sq(srd_), SWF, imm, " nt" if nt else ""), imm), **kw))
        for jj in range(njj):
            frags[key + (jj,)] = [(key, jj, hf * 2048, TR, hf) for hf in range(2)]

    tail2 = range(16 - TQ, 16)
    for u, seg in [(u, seg) for u in range(16 - TQ) for seg in (1, 2, 0)] + [(u, seg) for u in tail2 for seg in (1, 2)] + [(u, 0) for u in tail2]:
        for hd in range(2):
            key = (2, u, seg, hd)
            page(key, SQ, VWQ2 if seg == 2 else VWQ, (u & 3) * 64 * 6144, 0, imm=(seg & 1) * 2048 + hd * 64, glue=(hd == 0), base=SRW + (u >> 2))
            for fb in range(2):
                for kk in range(2):
                    frags[key + (fb, kk)] = [(key, ("q", fb), (2 * kk + hf) * 1024, TR, hf) for hf in range(2)]
    u2 = [(hd, u, (1, 2, 0)) for u in range(16 - TQ) for hd in range(2)]
    u2 += [(hd, u, segs) for hd in range(2) for segs in ((1, 2), (0,)) for u in tail2]
    pos2, end2 = {}, {}
    for i in range(8):
        page((1, i), SMD, VWM2, i * 32 * 12288, 0, nt=True, at=P["P2AT"])
        pages.insert(P["P2PQ"] + i * (1 + P["P2SP"]), pages.pop())
        pages[P["P2PQ"] + i * (1 + P["P2SP"])].pause = P["P2PS"] if (P["P2SP"] or i == 7) else 0
        frags[(1, i, "g")] = [((1, i), "g", hf * 2048, TR, hf) for hf in range(2)]
    np2 = 0
    for hd, u, segs in u2:
        pos2.setdefault((hd, u), len(main))
        if P["P2SP"]:
            if np2 < 8 and len(main) >= P["P2G0"] + np2 * P["P2GS"]:
                if np2 == 0:
                    IP0 = len(main)
                IP2 = len(main) - 7
                mm(GD2, (1, np2, "g"), u, vr(SIL2[np2], 4))
                np2 += 1
        elif (hd, u, segs[0]) == (1, P["P2U"], P["P2S"]):
            IP0 = IP2 = len(main)
            for i in range(8):
                mm(GD2, (1, i, "g"), u, vr(SIL2[i], 4))
        for seg in segs:
            for fb in range(2):
                for tb in (fb, 1 - fb):
                    for kk in range(2):
                        mm(acc2(hd, tb, seg, fb), (2, u, seg, hd, fb, kk), u, areg(u, kk * 2 + tb), seg == 2)
            end2[(hd, seg)] = len(main)
    I3 = len(main)
    ACC3 = 0
    for s in range(16):
        for kk in range(2):
            page((3, 2 * s + kk), SWO, VW3, wo_row(2 * s + kk) * 2048, 4)
    for s in range(8):
        for jj in range(4):
            for tb in (jj & 1, 1 - (jj & 1)):
                for kk in range(2):
                    mm(ACC3 + (tb * 4 + jj) * 4, (3, 2 * s + kk, jj), G3 + s, areg(G3 + s, kk * 2 + tb))
    for tb in range(2):
        for s in range(8, 16):
            for jj in range(4):
                for kk in range(2):
                    frags[(3, 2 * s + kk, jj + 4 * tb)] = frags[(3, 2 * s + kk, jj)]
                    mm(ACC3 + (tb * 4 + jj) * 4, (3, 2 * s + kk, jj + 4 * tb), G3 + s, areg(G3 + s, kk * 2 + tb), sub=tb)
        if tb == 0:
            IT0 = len(main)
    I5 = len(main)
    NV = 4
    u5 = [(s, g, tbs) for tbs in ((0, 2), (1, 3)) for s in range(0, NV, 2) for g in (2, 1)]
    u5 += [(s, g, (0, 1, 2, 3)) for s in range(NV, 32 - T5, 2) for g in (2, 1)]
    u5 += [(s, g, (0, 1, 2, 3)) for g in (2, 3, 4) for s in range(32 - T5, 32, 2)]
    pos5, end5 = {}, {}
    for s0, g, tbs in u5:
        pos5[(s0, g)] = len(main)
        again = tbs == (1, 3)
        if again and (s0, g) == (0, 2):
            IO = len(main)
        pg = 2 if g == 2 else 1
        if g != 4 and not again:
            for m in range(2):
                for s in (s0, s0 + 1):
                    page((5, s, m, pg), (SG, SU)[m], VW1 if pg == 1 else VW2, s * 32 * 7168, 4 if pg == 1 else 3, at=I3 + P["W5AT"])
        js = {1: [(m, jj) for m in range(2) for jj in range(4)], 2: [(0, 0), (0, 1), (1, 0), (1, 1), (0, 2), (1, 2)],
              3: [(m, jj) for m in range(2) for jj in (0, 1)], 4: [(m, jj) for m in range(2) for jj in (2, 3)]}[g]
        for n_, (m, jj) in enumerate(js):
            for tb in (tbs[::-1] if n_ & 1 else tbs):
                for s in (s0, s0 + 1):
                    frags[(5, s, m, pg, jj + 4 * again)] = frags[(5, s, m, pg, jj)]
                    mm(acc5(tb, m, pg, jj), (5, s, m, pg, jj + 4 * again), G5 + s, areg(G5 + s, tb))
            end5[(m, pg, jj)] = len(main)
    I6 = len(main)
    u6 = [(s, h, (0, 1, 2, 3)) for s in range(28 - T6) for h in (1, 0)]
    u6 += [(s, h, js) for h, js in ((1, (0, 1, 2, 3)), (0, (0, 1)), (0, (2, 3))) for s in range(28 - T6, 28)]
    pos6 = {}
    for s, h, js in u6:
        pos6.setdefault((s, h), len(main))
        if js[0] == 2 and s == 28 - T6:
            IK2 = len(main)
        for kk in range(2):
            if js[0] == 0:
                page((6, 2 * s + kk, h), SD, VW6S if h else VW6K, wd_row(2 * s + kk) * 2048, 4)
        for jj in js:
            for tb in (jj & 1, 1 - (jj & 1)):
                for kk in range(2):
                    mm(h * 32 + (tb * 4 + jj) * 4, (6, 2 * s + kk, h, jj), G6 + s, areg(G6 + s, kk * 2 + tb))
    IE = len(main)
    lastA = {}
    for i, (t, f, at) in enumerate(main):
        lastA[at[1]] = i
    NF1 = P["NF1"]
    for gs in range(G6 + 28):
        at = lastA[gs - NA] + 1 if gs >= NA else 0
        if G5 <= gs < G6:
            s = gs - G5
            ops = ["s_mov_b32 s%d, %d" % (SA_, WS_H2 + s * KBS)]
            ops += ["buffer_load_dwordx4 %s, v%d, %s, s%d offen offset:%d sc1" % (areg(gs, tb), VA5, sq(SW), SA_, tb * 1024) for tb in range(4)]
            aft = {"h2b"}
        else:
            s, v, base = (gs, VAL_, 0) if gs < G3 else ((gs - G3, VA3, WS_O) if gs < G5 else (gs - G6, VA6, WS_HH))
            ops = []
            for kk in range(2):
                if gs < G3:
                    ops += ["s_add_u32 s%d, s%d, %d" % (SA_, S8K, (2 * s + kk) * KBS), "s_and_b32 s%d, s%d, 0x3fffff" % (SA_, SA_)]
                else:
                    ops.append("s_mov_b32 s%d, %d" % (SA_, base + (2 * s + kk) * KBS))
                ops += ["buffer_load_dwordx4 %s, v%d, %s, s%d offen offset:%d sc1" % (areg(gs, kk * 2 + tb), v, sq(SW), SA_, tb * 1024) for tb in range(2)]
            if gs < G3:
                aft = {"h1a" if s < 2 else "h1b"}
            elif gs < G5:
                aft = {"chkOA" if s < 8 else "chkOB"}
            else:
                aft = {"chkA"} if s < 8 else ({"chkB", "stC"} if s < 12 else ({"chkC"} if s < 20 else {"chkD"}))
        if gs == G5:
            for tb in range(2):
                for g3 in range(G3 + 8, G5):
                    o2 = []
                    for kk in range(2):
                        o2 += ["s_mov_b32 s%d, %d" % (SA_, WS_O + (2 * (g3 - G3) + kk) * KBS),
                               "buffer_load_dwordx4 %s, v%d, %s, s%d offen offset:%d sc1" % (areg(g3, kk * 2 + tb), VA3, sq(SW), SA_, tb * 1024)]
                    ags.append(AGroup(("A", g3, tb), o2, at=lastA[g3 - NA] + 1, after={"chkOB"}))
        if G5 <= gs < G5 + NV or G3 + 8 <= gs < G5:
            continue
        ags.append(AGroup(("A", gs), ops, at=at, after=aft))
    bars = list(range(P["BAR2"], I3 - 8, P["BAR2"]))
    bars += list(range(I3 + P["BAR3"], I5, P["BAR3"])) + list(range(I5 + 18, I6, P["BAR5"])) + list(range(I6 + 2, IE - 16, P["BAR6"]))
    S.setup(main, frags, pages, ags, bars, cuts=(0, I5))
    for p in pages:
        if p.key[0] == 5:
            p.at = max(p.at, p.want - (P["LEAD5"] if p.want < I5 + P["DEEP"] * 56 else 10000), min(p.want - P["LEAD5"], I5 + (P["DEEP"] - 6) * 56))
    for g in ags:
        if G5 <= g.tag[1] < G6 - T5:
            g.at = max(g.at, g.dl - P["LEADA"])
    pre = S.take_pages(P["N0"])
    GPG = MISC + (NPAGES - 8) * 4096
    N0G = min(P["N0"], NPAGES - 8)

    slow = []

    def spin_here(ld, cmp_, first=0, back=0):
        lp, ok = S.uid("spin"), S.uid("ok")
        S("s_mov_b32 s33, %d" % SPIN)
        if first:
            S("s_sleep %d" % first)
        S.label(lp)
        S.emit(ld)
        S.emit(cmp_)
        S("s_cmp_eq_u64 %s, 0" % CMP)
        S("s_cbranch_scc1 %s" % ok)
        if back:
            S("s_sleep %d" % back)
        S("s_sub_u32 s33, s33, 1")
        S("s_cmp_lg_u32 s33, 0")
        S("s_cbranch_scc1 %s" % lp)
        S.label(ok)

    def flag_cmp(gen_):
        r = ["v_subrev_u32 v%d, s%d, v%d" % (VP, STAG, VP)]
        if gen_:
            r.append("v_subrev_u32 v%d, %d, v%d" % (VP, gen_, VP))
        return r + ["v_cmp_lt_u32 %s, %d, v%d" % (CMP, 7 - gen_, VP)]

    def flag_st(so, gen_):
        return ["v_add_u32 v%d, %d, v%d" % (VTD, gen_, VTAG), "buffer_store_dword v%d, v%d, %s, s%d offen sc1" % (VTD, VF0, sq(SW), so)]

    def check_items(ld, cmp_, at_p, at_c, ev, after=(), lat=None, CMP=CMP):
        ls, lb = S.uid("slow"), S.uid("back")
        slow.append((ls, lb, ld, cmp_, CMP))
        r = [Item(x, at=at_p, vtag=("P", ev), after=after) for x in ld]
        r += items(cmp_, at=at_c - 2, needv={("P", ev)}, delay=P["PLAT"] if lat is None else lat)
        r.append(Item(["s_cmp_lg_u64 %s, 0" % CMP, "s_cbranch_scc1 %s" % ls, lb + ":"], delay=1, sets=ev))
        return r

    def pollchk(so, va, at_c, ev, gen_, after=(), lat=None):
        lat = P["PLAT"] if lat is None else lat
        return check_items(["buffer_load_dword v%d, v%d, %s, s%d offen sc1" % (VP, va, sq(SW), so)], flag_cmp(gen_), at_c - lat, at_c, ev, after, lat)

    def tag_cmp(quads, t):
        r = []
        regs_ = [q + e for q in quads for e in range(4)]
        for k, x in enumerate(regs_):
            r.append("v_xor_b32 v%d, s%d, v%d" % (x, TB0 + (k & 3), x))
            if k == 1:
                r.append("v_or_b32 v%d, v%d, v%d" % (t, regs_[0], x))
            elif k & 1:
                r.append("v_or3_b32 v%d, v%d, v%d, v%d" % (t, t, regs_[k - 1], x))
        return r + ["v_and_b32 v%d, 0xff, v%d" % (t, t), "v_cmp_ne_u32 %s, 0, v%d" % (CMP, t)]
    TB0 = 84
    tag_sh = ["s_bfe_u32 s%d, s%d, 0x%x" % (TB0 + e, STAG, 0x80000 | (8 * e)) for e in range(4)]

    UR = 256 if len(P["TU"].split(".")) == 4 else 192

    def wq_addr():
        S("v_lshrrev_b32 v%d, 4, v%d" % (VWT, VL))
        S("s_movk_i32 s30, 6144")
        S("v_mul_u32_u24 v%d, s30, v%d" % (VWT, VWT))
        S("v_and_b32 v%d, 15, v%d" % (T, VL))
        S("v_and_b32 v%d, 3, v%d" % (T + 1, T))
        S("v_min_u32 v%d, 11, v%d" % (T, T))
        S("v_lshl_add_u32 v%d, v%d, 7, v%d" % (VWT, T + 1, VWT))
        S("v_lshrrev_b32 v%d, 2, v%d" % (T, T))
        S("v_lshl_add_u32 v%d, v%d, 11, v%d" % (VWT, T, VWT))
        S("s_lshr_b32 s32, s2, 4")
        S("s_mul_i32 s30, s3, %d" % (UR // 16))
        S("s_add_u32 s32, s32, s30")
        S("s_mul_i32 s32, s32, %d" % (4 * 6144))
        S("s_bfe_u32 s30, s2, 0x20001")
        S("s_lshl_b32 s30, s30, 9")
        S("s_add_u32 s32, s32, s30")
        if UR == 192:
            S("s_cmp_ge_u32 s2, 192")
            S("s_cselect_b32 s32, 0x%x, s32" % OOB)
        S("v_add_u32 v%d, s32, v%d" % (VWT, VWT))

    def wq_unit(k, so):
        S("v_add_u32 v%d, %d, v%d" % (VWT - 1, k, VL) if P["KROT"] else "v_mov_b32 v%d, %d" % (VWT - 1, k))
        S("v_and_b32 v%d, 3, v%d" % (VWT - 1, VWT - 1))
        S("s_mov_b32 s31, %d" % (256 * 6144))
        S("v_mad_u32_u24 v%d, v%d, s31, v%d" % (VWT - 1, VWT - 1, VWT))
        S(touch(JUNK, VWT - 1, SQ, so))

    def wq_touch(slot):
        n = 0
        for k, sl in enumerate(P["TU"].split(".")):
            if sl == slot:
                wq_unit(k, "0")
                n += 1
        return n

    lrole1, join1, lrole2, join2 = S.uid("l1"), S.uid("j1"), S.uid("l2"), S.uid("j2")
    S("s_cmp_ge_u32 s2, 256")
    S("s_cbranch_scc1 %s" % end)
    for s_, ka in ((SW, KA_WS), (SX, KA_X), (SC, KA_C), (SMD, KA_WMOD)):
        S("s_load_dwordx2 s[%d:%d], s[0:1], %d" % (s_, s_ + 1, ka))
    if P["MARK"]:
        S("v_mov_b32 v255, 0")
    mark("start")
    T = 200
    JUNK, VWT = 223, 199
    S("v_lshrrev_b32 v%d, 6, v0" % T)
    S("v_and_b32 v%d, 63, v0" % VL)
    S("v_readfirstlane_b32 s3, v%d" % T)
    if P["CT0"]:
        ct0 = code_touch(S, T, JUNK)
        if P["CT0"] == 2:
            ct0 = ct0[:6] + ["s_bitcmp1_b32 s2, 3", "s_cselect_b32 s32, s32, 0x100000"] + ct0[6:]
        S.emit(ct0)
    S("v_lshlrev_b32 v%d, 4, v%d" % (VT16, VL))
    S("s_lshr_b32 s36, s2, 4")
    S("s_lshl_b32 s36, s36, 3")
    S("s_and_b32 s30, s2, 7")
    S("s_add_u32 s36, s36, s30")
    S("s_lshl_b32 s%d, s3, 10" % SM0)
    ROW, CHK = 206, 207
    S("v_lshrrev_b32 v%d, 3, v0" % ROW)
    S("v_and_b32 v%d, 6, v%d" % (CHK, ROW))
    S("v_and_b32 v%d, 7, v%d" % (T + 2, VL))
    S("v_xor_b32 v%d, v%d, v%d" % (CHK, CHK, T + 2))
    GC, CD, VG, SIL, GW, GD = 220, 196, 5, 16, 48, 80
    S("s_and_b32 s35, s2, 3")
    S("s_movk_i32 s30, 12288")
    S("v_mul_u32_u24 v%d, s30, v%d" % (VWM2, ROW))
    S("v_lshl_add_u32 v%d, v%d, 4, v%d" % (VWM2, CHK, VWM2))
    S("s_mul_i32 s30, s35, %d" % (256 * 12288))
    S("v_add_u32 v%d, s30, v%d" % (VWM2, VWM2))
    S("s_lshr_b32 s34, s36, 2")
    S("s_lshl_b32 s31, s34, 7")
    S("v_lshlrev_b32 v%d, 1, v0" % GC)
    S("s_lshl_b32 s30, s35, 9")
    VI, VD, VMG = 1, 222, 4
    XD, XF, MD, T2, ML = 8, 40, 104, 114, 120
    S("v_bfe_u32 v%d, v%d, 4, 1" % (T2, VL))
    S("v_lshlrev_b32 v%d, 5, v%d" % (VD, T2))
    S("v_lshrrev_b32 v%d, 5, v%d" % (T2, VL))
    S("v_lshl_add_u32 v%d, v%d, 4, v%d" % (VD, T2, VD))
    S("v_and_b32 v%d, 15, v%d" % (T2, VL))
    S("v_lshl_add_u32 v%d, v%d, 11, v%d" % (VI, T2, VD))
    S("s_lshl_b32 s33, s36, 15")
    S("s_lshl_b32 s32, s3, 9")
    S("s_add_u32 s33, s33, s32")
    srd_fin(S, SC, 2048)
    srd_fin(S, SMD, 1024 * 6144 * 2)
    srd_fin(S, SX, ACT_BYTES)
    srd_fin(S, SW, WS_SIZE)
    S("s_bitcmp1_b32 s2, 3")
    S("s_waitcnt lgkmcnt(0)")
    S("buffer_load_ushort v%d, v%d, %s, s30 offen" % (CD, GC, sq(SC)))
    S("s_cbranch_scc1 %s" % lrole1)
    for i in range(8):
        S("s_add_u32 m0, s%d, %d" % (SM0, GPG + i * 4096))
        if i:
            S("s_add_u32 s31, s31, %d" % (32 * 12288))
        S("buffer_load_dwordx4 v%d, %s, s31 offen nt lds" % (VWM2, sq(SMD)))
    S("s_branch %s" % join1)
    S.label(lrole1)

    def xld(so):
        for j in range(4):
            for i in range(2):
                S("buffer_load_dwordx4 %s, v%d, %s, s%d offen offset:%d" % (vr(XD + (2 * j + i) * 4, 4), VI, sq(SX), so, 128 * j + 64 * i))
    if not P["XD"]:
        xld(33)
    S.label(join1)
    S("s_mov_b32 s%d, s33" % SA_)
    mark("ld1", True)
    S("s_load_dword s%d, s[%d:%d], 0x%x" % (STAG, SW, SW + 1, FL_EPOCH))
    for s_, ka in ((SQ, KA_WQKV), (SWO, KA_WO), (SG, KA_WG), (SU, KA_WU), (SD, KA_WD), (SO, KA_OUT)):
        S("s_load_dwordx2 s[%d:%d], s[0:1], %d" % (s_, s_ + 1, ka))
    wq_addr()
    S("s_and_b32 s22, s2, 1")
    S("s_lshl_b32 s22, s22, 3")
    S("s_bfe_u32 s30, s2, 0x30003")
    S("s_add_u32 s22, s22, s30")
    S("s_bfe_u32 s23, s2, 0x20001")
    S("s_lshl_b32 s23, s23, 2")
    S("s_lshr_b32 s30, s2, 6")
    S("s_add_u32 s23, s23, s30")
    S("v_lshrrev_b32 v%d, 2, v0" % T)
    S("s_movk_i32 s30, 6144")
    S("v_mul_u32_u24 v%d, s30, v%d" % (T, T))
    S("v_bfe_u32 v%d, v%d, 4, 1" % (T + 1, VL))
    S("v_lshlrev_b32 v%d, 1, v%d" % (T + 2, T + 1))
    S("v_and_b32 v%d, 3, v%d" % (T + 3, VL))
    S("v_xor_b32 v%d, v%d, v%d" % (T + 2, T + 2, T + 3))
    S("v_lshl_add_u32 v%d, v%d, 4, v%d" % (T, T + 2, T))
    S("s_lshl_b32 s30, s23, 7")
    S("v_add_u32 v%d, s30, v%d" % (VWQ, T))
    S("v_add_u32 v%d, 4096, v%d" % (VWQ2, VWQ))
    S("v_lshrrev_b32 v%d, 2, v%d" % (T, VL))
    S("v_lshlrev_b32 v%d, 6, v%d" % (T, T))
    S("v_lshl_add_u32 v%d, v%d, 5, v%d" % (T, T + 1, T))
    S("v_lshl_add_u32 v%d, v%d, 3, v%d" % (VDQ, T + 3, T))
    S("v_xor_b32 v%d, 32, v%d" % (VDQ + 1, VDQ))
    for w in (1, 2):
        for fb in range(2):
            S("v_add_u32 v%d, 0x%x, v%d" % (VDQ + 2 * w + fb, w << 16, VDQ + fb))
    S("s_lshl_b32 s30, s22, 13")
    S("s_lshl_b32 s32, s3, 11")
    S("s_add_u32 s30, s30, s32")
    S("v_add_u32 v%d, s30, v%d" % (VAQ, VT16))
    S("s_lshl_b32 s30, s22, 3")
    S("s_lshl_b32 s31, s3, 1")
    S("s_add_u32 s30, s30, s31")
    S("s_lshl_b32 s30, s30, 2")
    S("v_and_b32 v%d, 7, v%d" % (VFL, VL))
    S("v_add_u32 v%d, s30, v%d" % (VFL, VFL))
    S("v_lshlrev_b32 v%d, %d, v%d" % (VFL, FS, VFL))
    S("v_add_u32 v%d, 0x%x, v%d" % (VFL, FL_H1, VFL))
    S("s_lshr_b32 s30, s2, 6" if P["KROT"] else "s_mov_b32 s30, 0")
    S("s_lshl_b32 s%d, s30, 20" % S8K)
    S("s_lshl_b32 s31, s30, %d" % FS)
    S("v_and_b32 v%d, 0x%x, v%d" % (VF1, 0xffffffff ^ (3 << FS), VFL))
    S("v_add_u32 v%d, s31, v%d" % (VF1, VF1))
    for q in range(4):
        S("s_add_u32 s31, s30, %d" % q)
        S("s_and_b32 s31, s31, 3")
        S("s_mul_i32 s%d, s31, %d" % (SRW + q, 256 * 6144))
    S("v_add_u32 v%d, 0x%x, v%d" % (VAL_, WS_H1, VAQ))
    S("v_cmp_ne_u32 vcc, 0, v%d" % VL)
    S("v_mov_b32 v%d, 0x%x" % (T, OOB))
    S("v_cndmask_b32 v%d, 0, v%d, vcc" % (VF0, T))
    S("v_lshrrev_b32 v%d, 2, v%d" % (T, VL))
    S("v_lshlrev_b32 v%d, 7, v%d" % (T, T))
    S("v_bfe_u32 v%d, v%d, 3, 2" % (T + 1, VL))
    S("v_lshl_add_u32 v%d, v%d, 5, v%d" % (T, T + 1, T))
    S("v_lshl_add_u32 v%d, v%d, 3, v%d" % (VDS, T + 3, T))
    S("s_waitcnt lgkmcnt(0)")
    S("s_add_u32 s%d, s%d, 0x9e3779b8" % (STAG, STAG))
    S("s_and_b32 s%d, s%d, -8" % (STAG, STAG))
    S("v_mov_b32 v%d, s%d" % (VTAG, STAG))
    srd_fin(S, SQ, 1024 * 6144)
    S.emit(tag_sh)
    if P["XD"] == 1:
        sk = S.uid("sk")
        S("s_bitcmp0_b32 s2, 3")
        S("s_cbranch_scc1 %s" % sk)
        xld(SA_)
        S.label(sk)
    nge = 0
    for k, sl in enumerate(P["TU"].split(".")):
        if sl in ("Ge", "Le"):
            S("s_bitcmp%d_b32 s2, 3" % (sl == "Le"))
            S("s_cselect_b32 s30, 0, 0x%x" % OOB)
            wq_unit(k, "s30")
            nge += 1
    S("s_mul_i32 s35, s35, %d" % MODP)
    S("s_lshl_b32 s30, s3, 6")
    S("s_add_u32 s35, s35, s30")
    S("s_lshl_b32 s30, s34, 8")
    S("s_add_u32 s66, s35, s30")
    S("s_lshr_b32 s30, s2, 2")
    S("s_lshl_b32 s31, s30, 8")
    S("s_add_u32 s35, s35, s31")
    S("s_add_u32 s35, s35, 8192")
    S("s_lshl_b32 s30, s30, 7")
    S("s_add_u32 s30, s30, 0x%x" % (OOB if P["P2FAKE"] else 4096))
    S("v_add_u32 v%d, s30, v%d" % (VWM2, VWM2))
    S("v_lshrrev_b32 v%d, 4, v%d" % (T + 1, VL))
    S("v_lshlrev_b32 v%d, 4, v%d" % (VVEC, T + 1))
    S("v_and_b32 v%d, 15, v%d" % (T + 2, VL))
    S("v_cmp_ne_u32 vcc, 0, v%d" % (T + 2))
    S("v_mov_b32 v6, 0x%x" % OOB)
    S("v_cndmask_b32 v6, v%d, v6, vcc" % VVEC)
    S("v_add_u32 v%d, s35, v6" % VGR)
    S("s_lshl_b32 s30, s3, 5")
    S("v_xor_b32 v%d, s30, v%d" % (VDG, VDS))
    for w in (1, 2):
        S("v_add_u32 v%d, 0x%x, v%d" % (VDG + w, w << 16, VDG))
    S("s_lshl_b32 s%d, s36, 2" % R0)
    S("s_add_u32 s%d, s%d, s3" % (R0, R0))
    S("s_lshl_b32 s%d, s%d, %d" % (R0, R0, FS))
    S("s_add_u32 s%d, s%d, 0x%x" % (R0, R0, FL_H1))
    S("s_lshl_b32 s%d, s3, 20" % R1)
    S("s_lshl_b32 s30, s36, 10")
    S("s_add_u32 s%d, s%d, s30" % (R1, R1))
    S("s_add_u32 s%d, s%d, 0x%x" % (R1, R1, WS_H1))
    S("v_lshrrev_b32 v%d, 5, v0" % T)
    S("v_lshlrev_b32 v%d, 6, v%d" % (T, T))
    S("v_bfe_u32 v%d, v0, 2, 2" % (T + 1))
    S("v_lshl_add_u32 v%d, v%d, 4, v%d" % (T, T + 1, T))
    S("v_bfe_u32 v%d, v0, 4, 1" % (T + 1))
    S("v_lshl_add_u32 v%d, v%d, 3, v%d" % (T, T + 1, T))
    S("v_lshl_add_u32 v%d, v%d, 1, v%d" % (T, T + 3, T))
    S("s_waitcnt vmcnt(%d)" % (8 + nge))
    S("v_lshlrev_b32 v%d, 16, v%d" % (CD, CD))
    S("v_mul_f32 v%d, 0x%x, v%d" % (CD + 1, NLOG2E, CD))
    S("v_exp_f32 v%d, v%d" % (CD + 1, CD + 1))
    S("v_add_f32 v%d, 1.0, v%d" % (CD + 1, CD + 1))
    S("v_rcp_f32 v%d, v%d" % (CD + 1, CD + 1))
    S("v_mul_f32 v%d, v%d, v%d" % (CD, CD, CD + 1))
    S("v_cvt_pk_bf16_f32 v%d, v%d, v%d" % (CD, CD, CD))
    S("ds_write_b16 v%d, v%d offset:%d" % (T, CD, SILT))
    T = 200
    srd_fin(S, SWO, 1024 * 1024 * 2)
    srd_fin(S, SG, WF_BYTES)
    srd_fin(S, SU, WF_BYTES)
    srd_fin(S, SD, WF_BYTES)
    srd_fin(S, SO, ACT_BYTES)
    S("s_lshl_b32 s30, s23, 17")
    S("s_add_u32 s%d, s30, 0x%x" % (SOA, WS_O))
    S("s_lshl_b32 s30, s22, 2")
    S("s_add_u32 s30, s30, s3")
    S("s_lshl_b32 s30, s30, 4")
    S("s_add_u32 s30, s30, s23")
    S("s_lshl_b32 s30, s30, %d" % FS)
    S("s_add_u32 s%d, s30, 0x%x" % (SFOP, FL_O))
    S("s_lshl_b32 s30, s22, 14")
    S("s_lshl_b32 s31, s23, 10")
    S("s_add_u32 s30, s30, s31")
    S("s_lshl_b32 s31, s3, 8")
    S("s_add_u32 s30, s30, s31")
    S("s_add_u32 s%d, s30, 0x%x" % (SEXP, WS_STAT))
    S("s_xor_b32 s30, s3, 2")
    S("s_lshl_b32 s30, s30, 11")
    S("v_add_u32 v%d, s30, v%d" % (VXW, VT16))
    S("s_lshl_b32 s30, s22, 4")
    S("s_add_u32 s30, s30, s23")
    S("s_lshl_b32 s30, s30, 13")
    S("s_add_u32 s30, s30, 0x%x" % WS_HX)
    S("s_add_u32 s31, s30, 0x%x" % (16 << 13))
    S("s_cmp_eq_u32 s3, 3")
    S("s_cselect_b32 s31, s31, 0x%x" % OOB)
    S("s_cmp_lt_u32 s22, 15")
    S("s_cselect_b32 s31, s31, 0x%x" % OOB)
    S("v_add_u32 v%d, s31, v%d" % (VHS, VT16))
    S("s_cmp_eq_u32 s3, 0")
    S("s_cselect_b32 s31, s22, 0")
    S("s_cmp_lg_u32 s31, 0")
    S("s_cselect_b32 s30, s30, 0x%x" % OOB)
    S("s_cselect_b32 s31, s%d, 0" % STAG)
    S("v_add_u32 v%d, s30, v%d" % (VHR, VT16))
    S("v_mov_b32 v%d, s31" % VHT)
    S("s_sub_u32 s30, s3, 1")
    S("s_xor_b32 s30, s30, 2")
    S("s_lshl_b32 s30, s30, 11")
    S("s_cmp_eq_u32 s3, 0")
    S("s_cselect_b32 s30, %d, s30" % X0)
    S("v_add_u32 v%d, s30, v%d" % (VXR, VT16))
    S("s_or_b32 s33, s22, s3")
    S("s_and_b32 s24, s2, 1")
    S("s_lshr_b32 s29, s2, 3")
    S("s_bfe_u32 s25, s2, 0x20001")
    S("s_lshl_b32 s25, s25, 2")
    S("s_and_b32 s30, s29, 3")
    S("s_add_u32 s25, s25, s30")
    S("s_lshr_b32 s26, s29, 2")
    if P["NTX"]:
        S("s_xor_b32 s26, s26, %d" % P["NTX"])
    S("s_lshl_b32 s26, s26, 1")
    S("s_add_u32 s26, s26, s24")
    S("s_lshl_b32 s30, s25, 13")
    S("s_lshl_b32 s31, s3, 11")
    S("s_add_u32 s30, s30, s31")
    S("v_add_u32 v%d, s30, v%d" % (VA3, VT16))
    S("v_lshlrev_b32 v%d, 11, v%d" % (T + 2, ROW))
    S("v_lshl_add_u32 v%d, v%d, 4, v%d" % (T + 2, CHK, T + 2))
    S("s_lshl_b32 s30, s26, 7")
    S("v_add_u32 v%d, s30, v%d" % (VW3, T + 2))
    S("s_mul_i32 s30, s24, %d" % (1792 * 2048))
    S("v_add_u32 v%d, s30, v%d" % (VW6K, VW3))
    S("v_xor_b32 v%d, 128, v%d" % (VW6S, VW6K))
    S("s_mul_i32 s30, s24, %d" % (56 * KBS))
    S("v_add_u32 v%d, s30, v%d" % (VA6, VA3))
    S("s_lshl_b32 s27, s24, 2")
    S("s_and_b32 s30, s29, 3")
    S("s_add_u32 s27, s27, s30")
    S("s_bfe_u32 s28, s2, 0x20001")
    S("s_lshl_b32 s28, s28, 3")
    S("s_lshr_b32 s30, s29, 2")
    S("s_add_u32 s28, s28, s30")
    S("s_lshl_b32 s30, s27, 14")
    S("s_lshl_b32 s31, s3, 12")
    S("s_add_u32 s30, s30, s31")
    S("v_add_u32 v%d, s30, v%d" % (VA5, VT16))
    S("s_movk_i32 s30, 7168")
    S("v_mul_u32_u24 v%d, s30, v%d" % (T + 2, ROW))
    S("v_lshl_add_u32 v%d, v%d, 4, v%d" % (T + 2, CHK, T + 2))
    S("s_lshr_b32 s30, s28, 2")
    S("s_mul_i32 s30, s30, 896")
    S("s_and_b32 s31, s28, 3")
    S("s_lshl_b32 s32, s31, 8")
    S("s_add_u32 s32, s32, s30")
    S("v_add_u32 v%d, s32, v%d" % (VW1, T + 2))
    S("s_lshl_b32 s31, s31, 3")
    S("s_lshr_b32 s32, 0x%x, s31" % (4 | 12 << 8 | 14 << 16 | 22 << 24))
    S("s_and_b32 s32, s32, 255")
    S("s_lshl_b32 s32, s32, 5")
    S("s_add_u32 s32, s32, s30")
    S("v_mov_b32 v%d, s32" % (T + 3))
    S("s_lshr_b32 s32, 0x%x, s31" % (6 | 7 << 8 | 20 << 16 | 21 << 24))
    S("s_and_b32 s32, s32, 255")
    S("s_lshl_b32 s32, s32, 5")
    S("s_add_u32 s32, s32, s30")
    S("s_sub_u32 s32, s32, 64")
    S("v_mov_b32 v%d, s32" % (T + 4))
    S("v_cmp_lt_u32 vcc, 3, v%d" % CHK)
    S("v_cndmask_b32 v%d, v%d, v%d, vcc" % (T + 3, T + 3, T + 4))
    S("v_mov_b32 v%d, 0x%x" % (T + 4, OOB))
    S("v_cmp_lt_u32 vcc, 5, v%d" % CHK)
    S("v_cndmask_b32 v%d, v%d, v%d, vcc" % (T + 3, T + 3, T + 4))
    S("v_add_u32 v%d, v%d, v%d" % (VW2, T + 3, T + 2))
    for jj in range(1, 4):
        S("v_xor_b32 v%d, %d, v%d" % (VDS + jj, jj << 5, VDS))
    for w in (1, 2):
        for jj in range(4):
            S("v_add_u32 v%d, 0x%x, v%d" % (VDS + 4 * w + jj, w << 16, VDS + jj))
    S("s_lshr_b32 s30, s28, 4")
    S("s_mul_i32 s30, s30, 56")
    S("s_and_b32 s31, s28, 15")
    S("s_add_u32 s32, s30, s31")
    S("s_lshl_b32 s32, s32, 17")
    S("s_add_u32 s%d, s32, %d" % (SHA, WS_HH))
    S("s_lshr_b32 s32, s31, 1")
    S("s_add_u32 s32, s32, s30")
    S("s_lshl_b32 s32, s32, 17")
    S("s_and_b32 s31, s31, 1")
    S("s_lshl_b32 s31, s31, 10")
    S("s_add_u32 s32, s32, s31")
    S("s_add_u32 s%d, s32, %d" % (SHB, WS_HH + 16 * KBS))
    S("s_add_u32 s%d, s%d, %d" % (SHC, SHA, 24 * KBS))
    S("s_add_u32 s%d, s%d, %d" % (SHC2, SHA, 40 * KBS))
    S("s_lshl_b32 s30, s27, 2")
    S("s_add_u32 s30, s30, s3")
    S("s_lshl_b32 s30, s30, 5")
    S("s_lshl_b32 s31, s30, %d" % FS)
    S("s_add_u32 s%d, s31, %d" % (SF2C, FL_H2))
    S("s_add_u32 s30, s30, s28")
    S("s_lshl_b32 s30, s30, %d" % FS)
    S("s_add_u32 s%d, s30, %d" % (SFP, FL_HH))
    S("s_lshl_b32 s30, s25, 1")
    S("s_lshr_b32 s31, s3, 1")
    S("s_add_u32 s30, s30, s31")
    S("s_lshl_b32 s30, s30, 1")
    S("s_add_u32 s30, s30, s24")
    S("s_lshl_b32 s30, s30, %d" % (4 + FS))
    S("s_add_u32 s%d, s30, %d" % (SFC, FL_HH))
    S("s_lshl_b32 s30, s25, 2")
    S("s_add_u32 s30, s30, s3")
    S("s_lshl_b32 s30, s30, %d" % (4 + FS))
    S("s_add_u32 s%d, s30, %d" % (SFOC, FL_O))
    S("s_lshl_b32 s31, s26, %d" % FS)
    S("s_add_u32 s30, s30, s31")
    S("s_add_u32 s%d, s30, %d" % (SF2P, FL_H2))
    S("v_and_b32 v%d, 31, v%d" % (VFB, VL))
    S("v_lshlrev_b32 v%d, %d, v%d" % (VFB, FS, VFB))
    S("v_and_b32 v%d, %d, v%d" % (VFA, 15 << FS, VFB))
    S("s_lshl_b32 s30, s25, 14")
    S("s_lshl_b32 s31, s3, 8")
    S("s_add_u32 s30, s30, s31")
    S("s_add_u32 s%d, s30, %d" % (SSR, WS_STAT))
    S("s_lshl_b32 s31, s26, 10")
    S("s_add_u32 s%d, s%d, s31" % (SSW, SSR))
    S("s_lshl_b32 s30, s2, 2")
    S("s_add_u32 s30, s30, s3")
    S("s_lshl_b32 s22, s30, 7")
    S("s_xor_b32 s31, s30, 4")
    S("s_lshl_b32 s30, s30, 12")
    S("s_lshl_b32 s31, s31, 12")
    S("s_add_u32 s%d, s30, %d" % (SIN, WS_XCH))
    S("s_add_u32 s%d, s31, %d" % (SOUTB, WS_XCH))
    S("s_lshl_b32 s30, s26, 18")
    S("s_add_u32 s%d, s30, %d" % (SH2, WS_H2))
    S("s_add_u32 s%d, s30, %d" % (SH2B, WS_H2 + KBS))
    if P["FOLD"]:
        S("s_cmp_eq_u32 s3, 3")
        S("s_cselect_b32 s%d, 0x%x, 0x%x" % (SNL, f32bits(-0.6931471805599453), NLOG2E) if False else "s_mov_b32 s%d, 0x%x" % (SNL, NLOG2E))
        S("s_cselect_b32 s%d, 0x%x, s%d" % (SNL, f32bits(-0.6931471805599453), SNL))
        S("s_cmp_eq_u32 s3, 0")
        S("s_cselect_b32 s%d, 1.0, s%d" % (SNL, SNL))
    else:
        S("s_mov_b32 s%d, 0x%x" % (SNL, NLOG2E))
    S("v_and_b32 v%d, 15, v%d" % (T, VL))
    S("v_lshlrev_b32 v%d, 11, v%d" % (VX, T))
    S("v_bfe_u32 v%d, v%d, 4, 1" % (T + 2, VL))
    S("v_lshl_add_u32 v%d, v%d, 5, v%d" % (VX, T + 2, VX))
    S("v_lshrrev_b32 v%d, 5, v%d" % (T + 2, VL))
    S("v_lshl_add_u32 v%d, v%d, 4, v%d" % (VX, T + 2, VX))
    S("s_lshl_b32 s30, s25, 18")
    S("s_lshl_b32 s31, s3, 16")
    S("s_add_u32 s30, s30, s31")
    S("s_lshl_b32 s31, s26, 7")
    S("s_add_u32 s30, s30, s31")
    S("v_add_u32 v%d, s30, v%d" % (VX, VX))
    S("v_lshrrev_b32 v%d, 4, v%d" % (T + 1, VL))
    S("v_lshlrev_b32 v%d, 4, v%d" % (VVEC, T + 1))
    S("s_bitcmp1_b32 s3, 0")
    S("s_cselect_b32 s%d, s%d, s%d" % (ST, SU, SG))
    S("s_cselect_b32 s%d, s%d, s%d" % (ST + 1, SU + 1, SG + 1))
    srd_fin(S, ST, WF_BYTES)
    S("s_lshr_b32 s30, s2, 6")
    S("s_lshl_b32 s30, s30, 5")
    S("s_and_b32 s31, s2, 31")
    S("s_add_u32 s30, s30, s31")
    S("s_lshl_b32 s30, s30, 1")
    S("s_lshr_b32 s31, s3, 1")
    S("s_add_u32 s30, s30, s31")
    S("s_lshl_b32 s30, s30, 11")
    S("s_add_u32 s31, s28, 1")
    S("s_bitcmp1_b32 s31, 1")
    S("s_cselect_b32 s30, 0x%x, s30" % OOB)
    S("v_lshrrev_b32 v%d, 2, v%d" % (VTA, VL))
    S("v_lshlrev_b32 v%d, 7, v%d" % (VTA, VTA))
    S("v_add_u32 v%d, s30, v%d" % (VTA, VTA))
    S("s_movk_i32 s30, %d" % MODP)
    S("v_mul_u32_u24 v%d, s30, v%d" % (VM, T + 1))
    S("v_lshl_add_u32 v%d, v%d, 4, v%d" % (VM, T, VM))
    S("s_lshl_b32 s30, s26, 8")
    S("s_lshl_b32 s31, s3, 12")
    S("s_add_u32 s30, s30, s31")
    S("s_add_u32 s%d, s30, %d" % (SMS, WS_MOD + 8192))
    S("v_lshlrev_b32 v%d, 4, v%d" % (VST, T))
    S("s_lshl_b32 s30, s3, 8")
    S("v_add_u32 v%d, s30, v%d" % (VST, VST))
    S("v_lshlrev_b32 v%d, 12, v%d" % (VS2, T + 1))
    S("v_lshl_add_u32 v%d, v%d, 3, v%d" % (VS2, T, VS2))
    S("v_cmp_gt_u32 s[34:35], 16, v%d" % VL)
    S("v_lshlrev_b32 v%d, 3, v%d" % (VS1, VL))
    S("v_mov_b32 v%d, 0x%x" % (T + 2, OOB))
    S("v_cndmask_b32_e64 v%d, v%d, v%d, s[34:35]" % (VS1, T + 2, VS1))
    S("s_cmp_eq_u32 s3, 2")
    S("s_cselect_b32 s%d, 1.0, 0" % SCB)
    S("v_and_b32 v%d, 14, v%d" % (T + 2, VL))
    S("v_lshlrev_b32 v%d, 2, v%d" % (T + 1, T + 1))
    S("v_cmp_le_u32 s[%d:%d], v%d, v%d" % (SMK, SMK + 1, T + 1, T + 2))
    S("v_add_u32 v%d, 2, v%d" % (T + 1, T + 1))
    S("v_cmp_le_u32 s[%d:%d], v%d, v%d" % (SMK + 2, SMK + 3, T + 1, T + 2))
    S("v_and_b32 v%d, 1, v%d" % (T + 2, VL))
    S("v_cmp_eq_u32 s[%d:%d], 1, v%d" % (SMK + 4, SMK + 5, T + 2))
    S("v_lshlrev_b32 v%d, 4, v%d" % (BP + 2, T + 2))
    S("s_cmp_eq_u32 s33, 0")
    S("s_cselect_b32 s33, 0x%x, 0" % f32bits(-1e30))
    S("v_mov_b32 v%d, s33" % T)
    for q_ in range(2):
        S("v_cndmask_b32_e64 v%d, v%d, 0, s[%d:%d]" % (BP + q_, T, SMK + 2 * q_, SMK + 2 * q_ + 1))
    S("s_add_u32 s23, s22, 60")
    S("s_add_u32 s36, s23, s%d" % SWO)
    S("s_addc_u32 s37, s%d, 0" % (SWO + 1))
    mark("setup", True)
    S("s_bitcmp1_b32 s2, 3")
    S("s_cbranch_scc1 %s" % lrole2)

    S("v_add_u32 v%d, 0x%x, v%d" % (VG, GPG, VDG))
    S("v_mov_b32 v7, 0xff")
    S("s_waitcnt lgkmcnt(0)")
    S("s_barrier")
    for i in range(8):
        S("ds_read_b128 %s, v%d offset:%d" % (vr(SIL + 4 * i, 4), VVEC, SILT + i * 64))
    S("s_waitcnt vmcnt(%d)" % nge)
    mark("gland", True)
    S("s_barrier")
    for i in range(8):
        for hf in range(2):
            S("ds_read_b64_tr_b16 %s, v%d offset:%d" % (vr(GW + 4 * i + 2 * hf, 2), VG, i * 4096 + hf * 2048))
    for i in range(8):
        S("s_waitcnt lgkmcnt(%d)" % (14 - 2 * i))
        S(mfma(vr(GD, 4), vr(GW + 4 * i, 4), vr(SIL + 4 * i, 4), "0" if i == 0 else None))
    for e in range(4):
        S("v_bfi_b32 v%d, v7, s%d, v%d" % (GD + e, TB0 + e, GD + e))
    S("buffer_store_dwordx4 %s, v6, %s, s66 offen sc1" % (vr(GD, 4), sq(SW)))
    mark("gpub", True)
    if not P["CT0"]:
        S.emit(code_touch(S, 8, JUNK))
    wq_touch("Gl")
    for k, g in enumerate(pre[:N0G]):
        if k == 24:
            wq_touch("Gm")
        S.emit(g)
    wq_touch("Gz")
    if P["N0"] > N0G:
        S("s_barrier")
        for g in pre[N0G:]:
            S.emit(g)
    if P["WALK"] & 8:
        walk(S, 0, "b")
    if P["WALK"] & 16:
        walk(S, 0)
    if P["WALK"] & 32:
        walk(S, 1)
    mark("gp2", True)
    S("s_branch %s" % join2)

    S.label(lrole2)
    nle = nge
    for g in pre[:P["N0L"]]:
        S.emit(g)
    S("s_lshl_b32 s33, s3, 11")
    S("v_lshlrev_b32 v%d, 1, v%d" % (VD, VD))
    S("v_add_u32 v%d, s33, v%d" % (VD, VD))
    S("v_add_u32 v3, s33, v%d" % VT16)
    S("v_and_b32 v%d, 15, v%d" % (T2, VL))
    S("v_add_u32 v%d, s%d, v%d" % (VMG, SM0, VT16))
    S("v_add_u32 v%d, 4096, v%d" % (VMG + 1, VMG))
    S("v_mul_u32_u24 v6, 48, v%d" % T2)
    S("s_lshl_b32 s33, s3, 3")
    S("v_add_u32 v7, s33, v6")
    if P["WALK"] & 8:
        walk(S, 0, "a")
    for q in range(8):
        S("s_waitcnt vmcnt(%d)" % (7 - q + P["N0L"] + nle))
        for i in range(4 * q, 4 * q + 4):
            S("v_lshlrev_b32 v%d, 16, v%d" % (XF + 2 * i, XD + i))
            S("v_and_b32 v%d, 0xffff0000, v%d" % (XF + 2 * i + 1, XD + i))
        for h in range(2):
            x0, x1 = vr(XF + 8 * q + 4 * h, 2), vr(XF + 8 * q + 4 * h + 2, 2)
            if q == 0:
                S("v_pk_add_f32 %s, %s, %s" % (vr(T2 + 2 * h, 2), x0, x1))
            else:
                S("v_pk_add_f32 %s, %s, %s" % (vr(T2, 2), vr(T2, 2), x0))
                S("v_pk_add_f32 %s, %s, %s" % (vr(T2 + 2, 2), vr(T2 + 2, 2), x1))
    mark("xland", True)
    il = dict(q=list(pre[P["N0L"]:P["N0L"] + P["N0M"]]), n=0, after=0)
    raw_ins = S.ins

    def ins_il(x, vtag=None, dtag=None):
        raw_ins(x, vtag, dtag)
        if x.startswith("v_"):
            il["n"] += 1
            if il["n"] % P["ILV"] == 0 and il["q"]:
                for y in il["q"].pop(0):
                    raw_ins(y)
                il["after"] += 1
    if P["ILV"]:
        S.ins = ins_il
    else:
        for g in il["q"]:
            S.emit(g)
        il["q"] = []
    S("v_pk_add_f32 %s, %s, %s" % (vr(T2, 2), vr(T2, 2), vr(T2 + 2, 2)))
    S("v_add_f32 v%d, v%d, v%d" % (T2, T2, T2 + 1))
    S.emit(cap(xsum, [T2], [T2 + 1], (16, 32)))
    S("v_mul_f32 v%d, 0x%x, v%d" % (MD, f32bits(1.0 / 256), T2))
    S("v_mov_b32 v%d, v%d" % (MD + 1, MD))
    for i in range(32):
        t = T2 + 2 * (i & 1)
        d = vr(MD + 4 + 2 * (i & 1), 2)
        S("v_pk_add_f32 %s, %s, %s neg_lo:[0,1] neg_hi:[0,1]" % (d, vr(XF + 2 * i, 2), vr(MD, 2)))
        if i < 2:
            S("v_pk_mul_f32 %s, %s, %s" % (vr(t, 2), d, d))
        else:
            S("v_pk_fma_f32 %s, %s, %s, %s" % (vr(t, 2), d, d, vr(t, 2)))
    S("v_pk_add_f32 %s, %s, %s" % (vr(T2, 2), vr(T2, 2), vr(T2 + 2, 2)))
    S("v_add_f32 v%d, v%d, v%d" % (MD + 1, T2, T2 + 1))
    S.emit(cap(xsum, [MD + 1], [T2 + 1], (16, 32)))
    S("ds_write_b64 v7, %s offset:%d" % (vr(MD, 2), X0))
    S("s_waitcnt lgkmcnt(0)")
    S("s_barrier")
    G = ML
    for q in range(2):
        S("ds_read_b128 %s, v6 offset:%d" % (vr(G + 4 * q, 4), X0 + 16 * q))
    S("s_waitcnt lgkmcnt(0)")
    S("v_pk_add_f32 %s, %s, %s" % (vr(T2, 2), vr(G, 2), vr(G + 2, 2)))
    S("v_pk_add_f32 %s, %s, %s" % (vr(T2 + 2, 2), vr(G + 4, 2), vr(G + 6, 2)))
    S("v_pk_add_f32 %s, %s, %s" % (vr(T2, 2), vr(T2, 2), vr(T2 + 2, 2)))
    S("v_mul_f32 v%d, 0x3e800000, v%d" % (MD, T2))
    for q in range(4):
        S("v_sub_f32 v%d, v%d, v%d" % (G + 2 * q, G + 2 * q, MD))
    S("v_mul_f32 v%d, v%d, v%d" % (T2 + 2, G, G))
    for q in range(1, 4):
        S("v_fmac_f32 v%d, v%d, v%d" % (T2 + 2, G + 2 * q, G + 2 * q))
    S("v_mul_f32 v%d, 0x%x, v%d" % (MD + 4, f32bits(1.0 / 1024), T2 + 1))
    S("v_fmac_f32 v%d, 0x3e800000, v%d" % (MD + 4, T2 + 2))
    modld = []
    for p_ in range(4):
        modld.append("s_mov_b32 s30, %d" % (WS_MOD + p_ * MODP))
        for v_ in range(2):
            modld.append("buffer_load_dwordx4 %s, v%d, %s, s30 offen sc1" % (vr(ML + (v_ * 4 + p_) * 4, 4), VMG + v_, sq(SW)))
    if P["MODE"] == 0:
        S.emit(modld)
    NLM = P["N0L"] + P["N0M"]
    il["after"] = 0
    S.emit(cap(ln_finish, MD))
    for i in range(32):
        S("v_pk_add_f32 %s, %s, %s neg_lo:[0,1] neg_hi:[0,1]" % (vr(XF + 2 * i, 2), vr(XF + 2 * i, 2), vr(MD, 2)))
    if P["MODE"] == 1:
        S.emit(modld)
    for i in range(32):
        S("v_pk_mul_f32 %s, %s, %s" % (vr(XF + 2 * i, 2), vr(XF + 2 * i, 2), vr(MD + 4, 2)))
    if P["MODE"] == 2:
        S.emit(modld)
    S.ins = raw_ins
    assert not il["q"], len(il["q"])
    mark("lnorm", True)
    lp, ok, chk = S.uid("mod"), S.uid("mok"), S.uid("mchk")
    S("s_mov_b32 s33, %d" % SPIN)
    S("s_waitcnt vmcnt(%d)" % (il["after"] if P["MODE"] == 0 else 0))
    S("s_branch %s" % chk)
    S.label(lp)
    S.emit(modld)
    S("s_waitcnt vmcnt(0)")
    S.label(chk)
    S.emit(tag_cmp([ML + 4 * q for q in range(8)], T2))
    S("s_cmp_eq_u64 %s, 0" % CMP)
    S("s_cbranch_scc1 %s" % ok)
    S("s_sub_u32 s33, s33, 1")
    S("s_cmp_lg_u32 s33, 0")
    S("s_cbranch_scc1 %s" % lp)
    S.label(ok)
    mark("lmod", True)
    for v_ in range(2):
        b_ = ML + v_ * 16
        for e in (0, 2):
            S("v_pk_add_f32 %s, %s, %s" % (vr(b_ + e, 2), vr(b_ + e, 2), vr(b_ + 4 + e, 2)))
            S("v_pk_add_f32 %s, %s, %s" % (vr(b_ + 8 + e, 2), vr(b_ + 8 + e, 2), vr(b_ + 12 + e, 2)))
    for v_ in range(2):
        b_ = ML + v_ * 16
        for e in (0, 2):
            S("v_pk_add_f32 %s, %s, %s" % (vr(b_ + e, 2), vr(b_ + e, 2), vr(b_ + 8 + e, 2)))
    for v_ in range(2):
        for e in (0, 2):
            S.emit(cap(round_bf16_pair, ML + v_ * 16 + e, ML + v_ * 16 + e + 1, ML + v_ * 16 + 4 + e))
    S("ds_write_b128 v3, %s" % vr(ML, 4))
    for e in range(4):
        S("v_add_f32 v%d, 1.0, v%d" % (ML + 16 + e, ML + 16 + e))
    for e in (0, 2):
        S.emit(cap(round_bf16_pair, ML + 16 + e, ML + 16 + e + 1, ML + 20 + e))
    S("ds_write_b128 v3, %s offset:1024" % vr(ML + 16, 4))
    TBF = [144, 160, 128]

    def tbl(q):
        for vv in range(2):
            for h in range(2):
                S("ds_read_b128 %s, v%d offset:%d" % (vr(TBF[q % 3] + 8 * vv + 4 * h, 4), VD, vv * 1024 + q * 128 + h * 16), dtag=("T", q))
    tbl(0)
    tbl(1)
    for q in range(8):
        if q + 2 < 8:
            tbl(q + 2)
        S.wait(d={("T", q)}, lg=15)
        tb_ = TBF[q % 3]
        for e in range(4):
            x = vr(XF + 8 * q + 2 * e, 2)
            S("v_pk_fma_f32 %s, %s, %s, %s" % (x, x, vr(tb_ + 8 + 2 * e, 2), vr(tb_ + 2 * e, 2)))
        for e in range(4):
            S("v_cvt_pk_bf16_f32 v%d, v%d, v%d" % (XD + 4 * q + e, XF + 8 * q + 2 * e, XF + 8 * q + 2 * e + 1))
        S("s_add_u32 s33, s%d, %d" % (R1, q * KBS))
        S("v_permlane16_swap_b32 v%d, v%d" % (XD + 4 * q, XD + 4 * q + 2))
        S("v_permlane16_swap_b32 v%d, v%d" % (XD + 4 * q + 1, XD + 4 * q + 3))
        S("buffer_store_dwordx4 %s, v%d, %s, s33 offen sc1" % (vr(XD + 4 * q, 4), VT16, sq(SW)))
    mark("lst", True)
    S("s_waitcnt vmcnt(4)")
    S.emit(flag_st(R0, 0))
    mark("lfl1", True)
    rest = pre[NLM:]
    for g in rest[:P["N0F"]]:
        S.emit(g)
    S("s_waitcnt vmcnt(%d)" % (1 + len(rest[:P["N0F"]])))
    S.emit(flag_st(R0, 1))
    for g in rest[P["N0F"]:]:
        S.emit(g)
    S.label(join2)
    S("s_mov_b64 vcc, 0")
    if P["WALK"] & 1:
        walk(S, 0)
    if P["WALK"] & 4:
        walk(S, 1)
    S("s_branch L_hot")
    S(".p2align 12")
    S.label("L_hot")
    if P["WALK"] & 25:
        S("; @range 0")
    mark("join", True)
    h1ld = ["buffer_load_dword v%d, v%d, %s, 0 offen sc1" % (VP, VFL, sq(SW))]
    spin_here([h1ld[0].replace("v%d," % VFL, "v%d," % VF1), "s_waitcnt vmcnt(0)"], flag_cmp(0), P["DL1"], P["BK1"])
    mark("h1a", True)
    S.events["h1a"] = 0
    S.pump(8, "A")
    S.barrier()
    S.reads()

    s_poll2 = S.add(Stream(check_items(h1ld, flag_cmp(1), 0, P["CH1"], "h1b", lat=P["CH1"] - 2)
                 + pollchk(SFOC, VFA, I3 + P["COA"], "chkOA", 0, {"flagOA"})
                 + pollchk(SFOC, VFA, I3 + P["COB"], "chkOB", 1, {"flagOB"}, lat=30)
                 + items(["v_and_b32 v%d, %d, v%d" % (VXO, (16 | max(2 * NV - 1, 0)) << FS, VFB), "s_sub_u32 s%d, s%d, 0x%x" % (SEXP, SF2C, FL_H2 - FL_O)])
                 + pollchk(SEXP, VXO, I3 + P["COB"] + 50, "kn2", 0, lat=44), "poll2", budget=lambda i: 8))
    PZ = HP
    st = items(["v_mov_b32 v%d, -1" % (PZ + e) for e in range(4)] + ["v_lshlrev_b32 v%d, 2, v%d" % (PZ + 4, VL)], at=400)
    if NV:
        st.append(Item(["s_sub_u32 s30, s%d, 0x%x" % (SOA, WS_O), "s_lshr_b32 s31, s30, 18", "s_lshl_b32 s31, s31, 17", "s_bfe_u32 s32, s30, 0x10011",
                        "s_lshl_b32 s32, s32, 10", "s_add_u32 s31, s31, s32", "s_add_u32 s31, s31, 0x%x" % WS_H2,
                        "s_cmp_lt_u32 s30, 0x%x" % (2 * NV << 17), "s_cselect_b32 s31, s31, 0x%x" % OOB,
                        "buffer_store_dwordx4 %s, v%d, %s, s31 offen sc1" % (vr(PZ, 4), VAQ, sq(SW))], vtag="SOA"))
    st.append(Item("buffer_store_dword v%d, v%d, %s, s%d offen sc1" % (PZ, PZ + 4, sq(SW), SEXP), vtag="SOA", sets="poison"))
    st = items(["v_mov_b32 v%d, 0" % (HK + e) for e in range(4)], at=60) + [
        Item("ds_write_b128 v%d, %s offset:%d" % (VT16, vr(HK, 4), X0 + q * 1024), dtag="Z") for q in range(2)] + items(
        ["v_mov_b32 v%d, v%d" % (ZS + 2 * e + 1, VTAG) for e in range(8)] + ["v_mov_b32 v%d, 0" % (ZR + e) for e in range(16)]) + st
    S.add(Stream(st, "poison", rate=lambda i: 2))

    def att(hd):
        QP, KP, VV = HF, HF + 8, HF + 20
        SC_, TT = hd * 48, hd * 48 + 16
        pk = lambda dst, src: ["v_cvt_pk_bf16_f32 v%d, v%d, v%d" % (dst, src, src + 1), "v_cvt_pk_bf16_f32 v%d, v%d, v%d" % (dst + 1, src + 2, src + 3)]
        M = lambda q: "s[%d:%d]" % (SMK + 2 * q, SMK + 2 * q + 1)
        D = ("X", hd)
        r = items(pk(KP + 8, acc2(hd, 1, 1, 0)) + pk(KP + 10, acc2(hd, 1, 1, 1)), at=end2[(hd, 1)], after={"poison"})
        r.append(Item("ds_write_b128 v%d, %s" % (VXW, vr(KP + 8, 4)), dtag=(D, 2)))
        dat = [KP + 8, KP + 9, KP + 10, KP + 11, VV + 4, VV + 5, VV + 10, VV + 11]
        only = lambda w, ins: ["s_cmp_eq_u32 s3, %d" % w, "s_cselect_b64 exec, -1, 0"] + ins + ["s_mov_b64 exec, -1"] if P["HXE"] else ins
        snd = lambda q: "buffer_store_dwordx4 %s, v%d, %s, 0 offen offset:%d sc1" % (vr(ZS + 4 * q, 4), VHS, sq(SW), q * 1024)
        r += items(["v_mov_b32 v%d, v%d" % (ZS + 2 * e, dat[e]) for e in range(4)]) + [Item(only(3, [snd(0), snd(1)]), ghost="snd", force=True)]
        r += items(pk(VV + 4, acc2(hd, 1, 2, 0)) + pk(VV + 10, acc2(hd, 1, 2, 1)), at=end2[(hd, 2)])
        r += items(["v_mov_b32 v%d, v%d" % (ZS + 2 * e, dat[e]) for e in range(4, 8)]) + [Item(only(3, [snd(2), snd(3)]), ghost="snd", force=True)]
        r[-1].pause = P["QUIETH"]
        r += [Item("ds_write_b64 v%d, %s offset:%d" % (VXW, vr(VV + db * 6 + 4, 2), 1024 + db * 8), dtag=(D, 2)) for db in range(2)]
        r += items(pk(KP + 4, acc2(hd, 0, 1, 0)) + pk(KP + 6, acc2(hd, 0, 1, 1)) + pk(VV + 2, acc2(hd, 0, 2, 0)) + pk(VV + 8, acc2(hd, 0, 2, 1)))
        r.append(Item("v_add_u32 v%d, 4096, v%d" % (VHS, VHS), needd={(D, 2), "Z"}))
        r.append(Item("ds_read_b128 %s, v%d" % (vr(KP, 4), VXR), dtag=(D, 3), bar=True))
        r += [Item("ds_read_b64 %s, v%d offset:%d" % (vr(VV + db * 6, 2), VXR, 1024 + db * 8), dtag=(D, 3)) for db in range(2)]
        ld = ["buffer_load_dwordx4 %s, v%d, %s, 0 offen offset:%d sc1" % (vr(ZR + 4 * q, 4), VHR, sq(SW), q * 1024) for q in range(4)]
        cm = ["v_xor_b32 v%d, v%d, v%d" % (HK, VHT, ZR + 1)]
        cm += ["v_bitop3_b32 v%d, v%d, v%d, v%d bitop3:0xbe" % (HK, ZR + 2 * e + 1, VHT, HK) for e in range(1, 8)]
        cm.append("v_cmp_ne_u32 s[0:1], 0, v%d" % HK)
        ck = check_items(ld, cm, end2[(hd, 0)] + P["HXP"], 0, "hx%d" % hd, lat=0, CMP="s[0:1]")
        r.append(Item(only(0, ld), at=ck[0].at, ghost="rcv", force=True))
        ck[4].needg = "rcv"
        r += items(pk(QP + 4, acc2(hd, 1, 0, 0)) + pk(QP + 6, acc2(hd, 1, 0, 1)) + pk(QP, acc2(hd, 0, 0, 0)) + pk(QP + 2, acc2(hd, 0, 0, 1)), at=end2[(hd, 0)])
        r.append(Item([], sets="pack%d" % hd))
        prv = [KP, KP + 1, KP + 2, KP + 3, VV, VV + 1, VV + 6, VV + 7]
        got = ck[4:] + items(["v_or_b32 v%d, v%d, v%d" % (prv[e], prv[e], ZR + 2 * e) for e in range(8)], needd={(D, 3)})
        got.append(Item("v_add_u32 v%d, 4096, v%d" % (VHR, VHR)))
        units = [1, 0]
        for ui, tb in enumerate(units):
            q = vr(QP + tb * 4, 4)
            r.append(Item(mfma(vr(SC_ + ui * 8 + 4, 4), vr(KP + (tb + 1) * 4, 4), q, "0")))
            if tb == 0:
                r += got
            r.append(Item(mfma(vr(SC_ + ui * 8, 4), vr(KP + tb * 4, 4), q, "0")))
        U = range(2)
        v = ["s_mov_b32 s33, 0x%x" % f32bits(32 ** -0.5 * 1.4426950408889634)]
        for ui in U:
            v += ["v_cndmask_b32_e64 v%d, v%d, v%d, %s" % (SC_ + ui * 8 + 2 * h, SC_ + ui * 8 + 2 * h, SC_ + ui * 8 + 2 * h + 1, M(2)) for h in range(4)]
        for ui in U:
            v += ["v_cndmask_b32_e64 v%d, v%d, v%d, %s" % (SC_ + ui * 8 + q_, SC_ + ui * 8 + 2 * q_, SC_ + ui * 8 + 4 + 2 * q_, M(q_)) for q_ in range(2)]
        r += items(v[1:])
        r.append(Item([v[0]] + ["v_mul_f32 v%d, s33, v%d" % (SC_ + q_, SC_ + q_) for q_ in range(2)]
                      + ["v_fma_f32 v%d, v%d, s33, v%d" % (SC_ + 8 + q_, SC_ + 8 + q_, BP + q_) for q_ in range(2)]))
        v = ["v_max_f32 v%d, v%d, v%d" % (TT + ui, SC_ + ui * 8, SC_ + ui * 8 + 1) for ui in U]
        v += cap(xred, [TT + i for i in U], [TT + 4 + i for i in U], (16, 32), "v_max_f32")
        v += ["v_sub_f32 v%d, v%d, v%d" % (SC_ + ui * 8 + q_, SC_ + ui * 8 + q_, TT + ui) for ui in U for q_ in range(2)]
        v += ["v_exp_f32 v%d, v%d" % (SC_ + ui * 8 + q_, SC_ + ui * 8 + q_) for ui in U for q_ in range(2)]
        v += ["v_add_f32 v%d, v%d, v%d" % (TT + ui, SC_ + ui * 8, SC_ + ui * 8 + 1) for ui in U]
        v += cap(xred, [TT + i for i in U], [TT + 4 + i for i in U], (16, 32), "v_add_f32")
        v += ["v_rcp_f32 v%d, v%d" % (TT + ui, TT + ui) for ui in U]
        v += ["v_mul_f32 v%d, v%d, v%d" % (SC_ + ui * 8 + q_, SC_ + ui * 8 + q_, TT + ui) for ui in U for q_ in range(2)]
        v += ["v_cvt_pk_bf16_f32 v%d, v%d, 0" % (SC_ + ui * 8 + q_, SC_ + ui * 8 + q_) for ui in U for q_ in range(2)]
        v += ["v_lshlrev_b32 v%d, v%d, v%d" % (SC_ + ui * 8 + q_, BP + 2, SC_ + ui * 8 + q_) for ui in U for q_ in range(2)]
        for ui in U:
            for q_ in range(2):
                v.append("v_cndmask_b32_e64 v%d, v%d, 0, %s" % (QP + ui * 4 + q_, SC_ + ui * 8 + q_, M(q_)))
                v.append("v_cndmask_b32_e64 v%d, 0, v%d, %s" % (QP + ui * 4 + 2 + q_, SC_ + ui * 8 + q_, M(q_)))
        for ui, tb in enumerate(units):
            v += [mfma(vr(SC_ + ui * 8 + db * 4, 4), vr(VV + db * 6 + tb * 2, 4), vr(QP + ui * 4, 4), "0") for db in range(2)]
        r += items(v)
        n = "AB"[hd]
        for ui, tb in enumerate(units):
            r += items(["v_cvt_pk_bf16_f32 v%d, v%d, v%d" % (KP + ui * 4 + i, SC_ + ui * 8 + 2 * i, SC_ + ui * 8 + 2 * i + 1) for i in range(4)])
            r.append(Item("buffer_store_dwordx4 %s, v%d, %s, s%d offen offset:%d sc1" % (vr(KP + ui * 4, 4), VAQ, sq(SW), SOA, tb * 1024),
                          vtag="SO" + n, sets="stO" + n if ui else None, pause=P["QUIET" + n] if ui else 0))
        r.append(Item("s_add_u32 s%d, s%d, %d" % (SOA, SOA, 16 * KBS)))
        return r

    s_att = S.add(Stream(att(0) + att(1), "att", rate=lambda i: P["ATR"]))
    st = [Item("ds_read_b128 %s, v%d offset:%d" % (vr(SIL2[i], 4), VVEC, SILT + i * 64), dtag="SIL", at=IP0 - 40, after={"stOA"}, sets="sil" if i == 7 else None) for i in range(8)]
    st += items(["v_mov_b32 v%d, 0xff" % VWM2] + ["v_bfi_b32 v%d, v%d, s%d, v%d" % (GD2 + e, VWM2, TB0 + e, GD2 + e) for e in range(4)], at=IP2 + 8)
    st.append(Item("buffer_store_dwordx4 %s, v%d, %s, 0 offen sc1" % (vr(GD2, 4), VGR, sq(SW))))
    st.append(Item("s_mov_b32 s%d, 0x8000" % S8K, after={"stOA"}))
    for tb in range(2):
        for kb in range(2):
            st.append(Item("buffer_load_dwordx4 %s, v%d, %s, %s offen offset:%d" % (
                vr(32 + (tb * 2 + kb) * 4, 4), VX, sq(SX), "s%d" % S8K if tb else "0", kb * 64), delay=4, vtag="X", after={"flagOA"}))
    S.add(Stream(st, "p2", rate=lambda i: 4))
    fl = []
    for k, n in enumerate(("OA", "OB")):
        f = flag_st(SFOP, k)
        fl += [Item([], after={"st" + n}), Item(f, delay=P["FD_" + n], needv={"S" + n}, sets="flag" + n)]
    for k, n in enumerate("ABCD"):
        f = flag_st(SFP, k)
        fl += [Item([], after={"st" + n}), Item(f, delay=P["FD_" + n], needv={"S" + n}, sets="flag" + n)]
    S.add(Stream(fl, "flag", budget=lambda i: 8))

    ROT = P["ROT"]

    def spf(n, at, step, last):
        r = []
        for k in range(n):
            if k and k % 8 == 0:
                r.append(Item(["s_add_u32 s36, s36, 0x%x" % (8 * (0x20000 - ROT)), "s_addc_u32 s37, s37, 0"]))
            r.append(Item("s_load_dwordx2 s[66:67], s[36:37], 0x%x" % ((k % 8) * (0x20000 - ROT)), at=at, delay=step))
        assert at + n * step <= last, (at + n * step, last)
        return r

    def spf_base(sb, half=False):
        if half:
            return [Item(["s_lshr_b32 s36, s22, 8", "s_lshl_b32 s36, s36, 7", "s_add_u32 s36, s36, 60",
                          "s_add_u32 s36, s36, s%d" % sb, "s_addc_u32 s37, s%d, 0" % (sb + 1)])]
        return [Item(["s_add_u32 s36, s23, s%d" % sb, "s_addc_u32 s37, s%d, 0" % (sb + 1)])]

    NGU = (14 - P["PFN"]) * 8
    st = []
    NWQ = P["NWQ"]
    if NWQ:
        st += [Item(["s_add_u32 s36, s23, 0x%x" % ((48 - NWQ) << 17), "s_add_u32 s36, s36, s%d" % SQ, "s_addc_u32 s37, s%d, 0" % (SQ + 1)])]
        st += spf(NWQ, 4, P["SPQ"], I3) + spf_base(SWO)
    st += spf(16, 4 if NWQ else 30, P["SPQ"], I3 - 100) + spf_base(ST, True)
    for k in range(NGU):
        if k and k % 16 == 0:
            st.append(Item(["s_add_u32 s36, s36, 0x%x" % (16 * (0x10000 - ROT)), "s_addc_u32 s37, s37, 0"]))
        st.append(Item("s_load_dwordx2 s[66:67], s[36:37], 0x%x" % ((k % 16) * (0x10000 - ROT)), delay=P["SPQ"]))
    assert 30 + (16 + NGU + NWQ) * P["SPQ"] <= I3 - 60, 30 + (16 + NGU + NWQ) * P["SPQ"] - I3
    st += spf_base(SD) + spf(56, I5 + 4, P["SP5"], I6)
    if P["PF6"]:
        st.append(Item(["s_lshr_b32 s36, s2, 3", "s_lshl_b32 s36, s36, 11", "s_lshr_b32 s30, s3, 1", "s_lshl_b32 s30, s30, 10", "s_add_u32 s36, s36, s30",
                        "s_and_b32 s30, s3, 1", "s_lshl_b32 s30, s30, 6", "s_add_u32 s36, s36, s30", "s_and_b32 s30, s2, 1",
                        "s_mul_i32 s30, s30, %d" % (1792 * 2048), "s_add_u32 s36, s36, s30", "s_add_u32 s36, s36, 384",
                        "s_add_u32 s36, s36, s%d" % SD, "s_addc_u32 s37, s%d, 0" % (SD + 1)]))
        for p in range(56):
            st.append(Item(["s_mov_b32 s%d, %d" % (SFOC, wd_row(p) * 2048), "s_load_dword s66, s[36:37], s%d" % SFOC], at=I6 + 16 * p - P["PF6"], delay=8))
    S.add(Stream(st, "spf", rate=lambda i: 2))

    if P["MARK"] & 2:
        S.add(Stream([Item([], after={"stOA"}, fn=lambda: mark("stOA")), Item([], after={"flagOA"}, fn=lambda: mark("flOA")),
                      Item([], at=I3 + P["COA"] - 4, fn=lambda: mark("bcOA")), Item([], after={"chkOA"}, fn=lambda: mark("ckOA")),
                      Item([], at=I3 + P["FD_OB"] - 3, fn=lambda: mark("bfOB")), Item([], after={"flagOB"}, fn=lambda: mark("flOB")),
                      Item([], at=I3 + P["COB"] - 4, fn=lambda: mark("bcOB")), Item([], after={"chkOB"}, fn=lambda: mark("ckOB"))],
                     "marks", budget=lambda i: 99))

    def p2go():
        assert "sil" in S.events
        S.wait(d={"SIL"})
    class Hooks(dict):
        def __setitem__(self, g, fn):
            old = self.get(g)
            dict.__setitem__(self, g, fn if old is None else (lambda: (old(), fn())))
    hooks = Hooks()
    hooks[IP0] = p2go
    if P["WALK"] & 64:
        hooks[I6 + P["R2AT"]] = lambda: S("; @range 2")
        hooks[I3 + P["W2AT"]] = lambda: walk(S, 2)
    if P["CT1"]:
        hooks[P["CT1"]] = lambda: S.emit(code_touch(S, 190, 219))
    if P["MARK"]:
        for g, nm in ((pos2[(0, 16 - TQ)] if TQ else I3 - 208, "q2"), (pos2[(1, 16 - TQ)] if TQ else I3 - 104, "q3"), (I3 + 128, "p3b"),
                      (I5 + 224, "p5s4"), (pos5[(32 - T5, 2)], "p5t"), (I6, "p6"), (I6 + 192, "p6s6"), (I6 + 384, "p6s12"), (I6 + 640, "p6s20"))[:3 if P["MARK"] & 2 else 9]:
            hooks[g] = (lambda nm=nm: mark(nm))
    if P["TR0"] is not None:
        def tr(k):
            if k:
                S("v_writelane_b32 v255, s70, %d" % (k - 1))
            S("s_memtime s[70:71]")
        for k in range(64):
            g = P["TR0"] + k * P["TRS"]
            if g < IE:
                hooks[g] = (lambda k=k: tr(k))
    for s in range(8, 12):
        def swp(s=s):
            tg = ("A", G6 + s)
            assert not any(g.tag == tg for g in S.aq) and not any(t == tg for o, t, p in S.pend)
            S.wait(v={tg})
            for kk in range(2):
                for e in range(2):
                    S("v_swap_b32 v%d, v%d" % (vsing(s, 2 * kk) + 2 + e, vsing(s, 2 * kk + 1) + e))
        g = pos6[(s, 1)] - 3
        while g in hooks:
            g -= 1
        hooks[g] = swp

    S.LGMIN = P["LGMIN"]
    S.run(I3, budget=lambda i: P["BUD2"] if i < end2[(0, 2)] else P["BUD2B"], vsp=lambda i: P["VSP2"], hooks=hooks, pair=lambda i: True)
    S.LGMIN = 0
    mark("qend")
    S.drain(s_poll2, "chkOA")
    S.drain(s_att, every=P["OEV"], nmax=P["OPRE"], only="A")
    mark("attB")

    RES, GV, SB, S2, XU, E = 32, 64, 96, 144, 160, 80
    mld = ["buffer_load_dwordx4 %s, v%d, %s, s%d offen sc1" % (vr(SB, 4), VM, sq(SW), SMS)]
    st = check_items(mld, [x.replace(CMP, "s[24:25]") for x in tag_cmp([SB], SB + 4)], I3 + P["MODAT"], I3 + P["MODAT"] + 40, "mod2", CMP="s[24:25]")
    v = cap(xsum, [SB + i for i in range(4)], [SB + 4 + i for i in range(4)], (16, 32))
    v += cap(round_bf16_pair, SB, SB + 1, SB + 4) + cap(round_bf16_pair, SB + 2, SB + 3, SB + 5)
    v += ["v_add_f32 v%d, s%d, v%d" % (SB + i, SCB, SB + i) for i in range(4)]
    v += cap(round_bf16_pair, SB, SB + 1, SB + 4) + cap(round_bf16_pair, SB + 2, SB + 3, SB + 5)
    if P["FOLD"]:
        v += ["v_mul_f32 v%d, s%d, v%d" % (SB + i, SNL, SB + i) for i in range(4)]
    st += items(v)
    st.append(Item("ds_write_b128 v%d, %s offset:%d" % (VST, vr(SB, 4), VEC), dtag="V"))
    st.append(Item([], delay=6, needd={"V"}))
    first = True
    for vv, dst in enumerate((GV, SB, S2)):
        for jj in range(4):
            st.append(Item("ds_read_b128 %s, v%d offset:%d" % (vr(dst + jj * 4, 4), VVEC, VEC + vv * 256 + jj * 64), dtag="V2", bar=first, delay=1, sets="vec" if (vv, jj) == (2, 3) else None))
            first = False
    s_mod = S.add(Stream(st, "mod", rate=lambda i: 6))
    st = []
    v = []
    for q in range(4):
        v += ["v_permlane16_swap_b32 v%d, v%d" % (RES + 4 * q, RES + 4 * q + 2), "v_permlane16_swap_b32 v%d, v%d" % (RES + 4 * q + 1, RES + 4 * q + 3)]
    for i in range(16):
        v += ["v_lshlrev_b32 v%d, 16, v%d" % (XU + 2 * i, RES + i), "v_and_b32 v%d, 0xffff0000, v%d" % (XU + 2 * i + 1, RES + i)]
    st += items(v, at=I3 + 50, needv={"X"})
    st.append(Item([], sets="xu"))
    s_x = S.add(Stream(st, "x", rate=lambda i: 4))
    ACC, G, H = ACC3, 112, 48

    def ln_sums(tb, pk):
        x, e, c = XU + tb * 16, E + tb * 8, ACC + tb * 16
        if pk:
            v = ["v_pk_fma_f32 %s, %s, %s, %s" % (vr(x + 2 * i, 2), vr(c + 2 * i, 2), vr(GV + 2 * i, 2), vr(x + 2 * i, 2)) for i in range(8)]
            v.append("v_pk_mul_f32 %s, %s, %s" % (vr(e + 2, 2), vr(x, 2), vr(x, 2)))
            for i in range(1, 8):
                v.append("v_pk_fma_f32 %s, %s, %s, %s" % (vr(e + 2, 2), vr(x + 2 * i, 2), vr(x + 2 * i, 2), vr(e + 2, 2)))
                v.append("v_pk_add_f32 %s, %s, %s" % (vr(e, 2), vr(e, 2) if i > 1 else vr(x, 2), vr(x + 2 * i, 2)))
        else:
            v = ["v_fmac_f32 v%d, v%d, v%d" % (x + i, c + i, GV + i) for i in range(16)]
            v += ["v_mul_f32 v%d, v%d, v%d" % (e + 2 + i, x + i, x + i) for i in range(2)]
            for i in range(2, 16):
                v.append("v_fmac_f32 v%d, v%d, v%d" % (e + 2 + (i & 1), x + i, x + i))
                v.append("v_add_f32 v%d, v%d, v%d" % (e + (i & 1), e + (i & 1) if i > 3 else x + (i & 1), x + i))
        v += ["v_add_f32 v%d, v%d, v%d" % (e, e, e + 1), "v_add_f32 v%d, v%d, v%d" % (e + 1, e + 2, e + 3)]
        v += cap(xsum, [e, e + 1], [e + 2, e + 3], (16, 32))
        v += ["v_and_b32 v%d, -2, v%d" % (e, e), "v_and_b32 v%d, 0x7fffffff, v%d" % (e + 1, e + 1)]
        return v + ["buffer_store_dwordx2 %s, v%d, %s, s%d offen offset:%d sc1" % (vr(e, 2), VS1, sq(SW), SSW, tb * 128)]

    def ln_pack(tb):
        x, r, c = XU + tb * 16, RES + tb * 8, ACC + tb * 16
        v = ["v_cvt_pk_bf16_f32 v%d, v%d, v%d" % (r + i, x + 2 * i, x + 2 * i + 1) for i in range(8)]
        for i in range(8):
            v += ["v_accvgpr_write_b32 a%d, v%d" % (AX1 + tb * 8 + i, r + i), "v_lshlrev_b32 v%d, 16, v%d" % (c + 2 * i, r + i),
                  "v_and_b32 v%d, 0xffff0000, v%d" % (c + 2 * i + 1, r + i)]
        return v

    def st_ld(tb):
        return ["buffer_load_dwordx2 %s, v%d, %s, s%d offen offset:%d sc1" % (vr(G + (tb * 4 + i) * 2, 2), VS2, sq(SW), SSR, i * 1024 + tb * 128)
                for i in range(4)]

    def st_cmp(tb):
        g, t = G + tb * 8, E + tb * 8 + 4
        return ["v_max3_u32 v%d, v%d, v%d, v%d" % (t, g, g + 1, g + 2), "v_max3_u32 v%d, v%d, v%d, v%d" % (t, t, g + 3, g + 4),
                "v_max3_u32 v%d, v%d, v%d, v%d" % (t, t, g + 5, g + 6), "v_max_u32 v%d, v%d, v%d" % (t, t, g + 7), "v_cmp_eq_u32 %s, -1, v%d" % (CMP, t)]

    def ln_apply(tb):
        g, e, m, c, h = G + tb * 8, E + tb * 8, XU + tb * 16, ACC + tb * 16, H + tb * 8
        v = ["v_pk_add_f32 %s, %s, %s" % (vr(e, 2), vr(g, 2), vr(g + 2, 2)), "v_pk_add_f32 %s, %s, %s" % (vr(e + 2, 2), vr(g + 4, 2), vr(g + 6, 2)),
             "v_pk_add_f32 %s, %s, %s" % (vr(e, 2), vr(e, 2), vr(e + 2, 2))]
        v += cap(xsum, [e, e + 1], [e + 2, e + 3], (16, 32))
        v += ["v_mul_f32 v%d, 0x%x, v%d" % (m, f32bits(1.0 / 1024), e), "v_mul_f32 v%d, 0x%x, v%d" % (m + 4, f32bits(1.0 / 1024), e + 1),
              "v_fma_f32 v%d, -v%d, v%d, v%d" % (m + 4, m, m, m + 4), "v_max_f32 v%d, 0, v%d" % (m + 4, m + 4)]
        v += cap(ln_finish, m)
        v += ["v_pk_add_f32 %s, %s, %s neg_lo:[0,1] neg_hi:[0,1]" % (vr(c + 2 * i, 2), vr(c + 2 * i, 2), vr(m, 2)) for i in range(8)]
        v += ["v_pk_mul_f32 %s, %s, %s" % (vr(c + 2 * i, 2), vr(c + 2 * i, 2), vr(m + 4, 2)) for i in range(8)]
        v += ["v_pk_fma_f32 %s, %s, %s, %s" % (vr(c + 2 * i, 2), vr(c + 2 * i, 2), vr(S2 + 2 * i, 2), vr(SB + 2 * i, 2)) for i in range(8)]
        v += ["v_cvt_pk_bf16_f32 v%d, v%d, v%d" % (h + i, c + 2 * i, c + 2 * i + 1) for i in range(8)]
        S.emit(v)
        for kb in range(2):
            S("buffer_store_dwordx4 %s, v%d, %s, s%d offen offset:%d sc1" % (vr(h + kb * 4, 4), VA3, sq(SW), SH2 + kb, tb * 1024), vtag="SH")

    def retry(tag, ld, cm):
        lp, ok, chk = S.uid("rl"), S.uid("rok"), S.uid("rchk")
        S("s_mov_b32 s33, %d" % SPIN)
        S.wait(v={tag})
        S("s_branch %s" % chk)
        a.label(lp)
        for x in ld + ["s_waitcnt vmcnt(0)"]:
            a(x)
        S.label(chk)
        S.emit(cm)
        S("s_cmp_eq_u64 %s, 0" % CMP)
        S("s_cbranch_scc1 %s" % ok)
        S("s_sub_u32 s33, s33, 1")
        S("s_cmp_lg_u32 s33, 0")
        S("s_cbranch_scc1 %s" % lp)
        S.label(ok)

    def val(tbs, quads, t):
        ld, cm, cp = [], [], []
        for s in range(NV):
            ld.append("s_mov_b32 s30, %d" % (WS_H2 + s * KBS))
            for k, tb in enumerate(tbs):
                b = quads[2 * s + k]
                ld.append("buffer_load_dwordx4 %s, v%d, %s, s30 offen offset:%d sc1" % (vr(b, 4), VA5, sq(SW), tb * 1024))
                cm += ["v_max3_u32 v%d, v%d, v%d, v%d" % (t, b, b + 1, b + 2) if not cm else "v_max3_u32 v%d, v%d, v%d, v%d" % (t, t, b, b + 1),
                       "v_max_u32 v%d, v%d, v%d" % (t, t, b + 3) if not cm else "v_max3_u32 v%d, v%d, v%d, v%d" % (t, t, b + 2, b + 3)]
                cp += ["v_accvgpr_write_b32 a%d, v%d" % (((G5 + s) % NA) * 16 + tb * 4 + e, b + e) for e in range(4)]
        return ld, cm + ["v_cmp_eq_u32 %s, -1, v%d" % (CMP, t)], cp

    st = items(ln_sums(0, False), at=IT0, after={"vec", "xu"}, needd={"V2"}) + items(ln_pack(0))
    s_t0 = S.add(Stream(st, "tb0", rate=lambda i: P["T0R"]))
    S.run(I5, budget=lambda i: P["BUD3"], vsp=lambda i: P["VSP3"], hooks=hooks, pair=lambda i: True)
    S.drain(s_t0)
    mark("p3end")
    if P["S0AT"] == 0:
        S.emit(st_ld(0), vtag="G0")
    S.emit(ln_sums(1, True))
    if P["S0AT"] == 1:
        S.emit(st_ld(0), vtag="G0")
    S.emit(ln_pack(1))
    if P["S0AT"] == 2:
        S.emit(st_ld(0), vtag="G0")
    retry("G0", st_ld(0), st_cmp(0))
    mark("stat0")
    ln_apply(0)
    S.lat, lat = 0, S.lat
    S.barrier()
    S.lat = lat
    S.reads()
    if P["WALK"] & 2:
        walk(S, 1)
    S("; @range %d" % (1 if P["WALK"] & 38 else -1))
    if P["DBG"]:
        S("s_add_u32 s30, s%d, %d" % (SH2, WS_X1 - WS_H2))
        S("s_add_u32 s31, s%d, %d" % (SH2B, WS_X1 - WS_H2))
        for tb in range(2):
            for kb in range(2):
                S("buffer_store_dwordx4 %s, v%d, %s, s%d offen offset:%d" % (vr(RES + (tb * 2 + kb) * 4, 4), VA3, sq(SW), 30 + kb, tb * 1024))
    ld, cm, cp = val((0, 2), [128, 132, 136, 140, 0, 4, 8, 12], E)
    S.emit(st_ld(1), vtag="G1")
    if P["EAT"] == 0:
        S.emit(ld, vtag="VE")
    retry("G1", st_ld(1), st_cmp(1))
    mark("stat1")
    if P["EAT"] == 1:
        S.emit(ld, vtag="VE")
    ln_apply(1)
    mark("h2st")
    if P["EAT"] == 2:
        S.emit(ld, vtag="VE")
    retry("VE", ld, cm)
    S.emit(cp)
    mark("h2a")

    ld, cm, cp = val((1, 3), [128 + 4 * q for q in range(8)], VP)
    st = [Item(flag_st(SF2P, 0), at=I5 + P["FH2"], needv={"SH"})]
    st += check_items(ld, cm, I5 + P["OAT"], I5 + P["OAT"] + 40, "valO", lat=36) + items(cp) + [Item([], sets="odd")]
    st += pollchk(SF2C, VFB, I5 + P["CH2"], "h2b", 0, lat=36)

    def odd_go():
        S.drain(s_poll, "odd")
    hooks[IO] = odd_go
    st += items(["v_lshrrev_b32 v%d, 4, v%d" % (VFB, VL), "v_lshl_add_u32 v%d, v%d, %d, v%d" % (VFB, VFB, 6 + FS, VFA),
                 "s_lshl_b32 s32, s3, %d" % (8 + FS), "s_add_u32 s32, s32, 0x%x" % FL_O], at=I5 + 300)
    st.append(Item(["s_cmp_eq_u32 s2, 0", "s_cselect_b32 s32, s32, s%d" % SFOP, "s_cselect_b32 s31, -1, 0"]))
    st += items(["v_and_b32 v%d, s31, v%d" % (VFB, VFB)])
    st += pollchk(32, VFB, I5 + 440, "seen", 0, lat=130)
    st.append(Item(["s_or_b32 s32, s2, s3", "s_cselect_b32 s32, 0x%x, 0x%x" % (OOB, FL_EPOCH)] if False else
                   ["s_or_b32 s32, s2, s3", "s_cselect_b32 s32, 0x%x, 0" % OOB, "s_add_u32 s32, s32, 0x%x" % FL_EPOCH]))
    st.append(Item("buffer_store_dword v%d, v%d, %s, s32 offen sc1" % (VTAG, VF0, sq(SW)), bar=True))
    st += items(["v_add_u32 v%d, s%d, v%d" % (VFA, SFC, VFA), "s_mov_b32 s%d, 0" % SFC])
    st += items(["v_accvgpr_write_b32 a%d, -1" % (252 + e) for e in range(4)])
    ct = code_touch(S, VP, VW3)
    st.append(Item(ct, at=I5 + 1000))
    for i in range(4):
        st.append(Item("buffer_store_dwordx4 a[252:255], v%d, %s, s%d offen offset:%d sc1" % (VT16, sq(SW), SIN, i * 1024),
                       at=I6 + P["PZAT"], delay=P["PZD"], vtag="SD"))
    for k, g_ in enumerate("ABCD"):
        if g_ == "D":
            st += items(["s_xor_b32 s32, s%d, 0x%x" % (SFP, 512 << FS), "v_mov_b32 v%d, s32" % VFB,
                         "v_cndmask_b32_e64 v%d, v%d, v%d, s[34:35]" % (VFA, VFB, VFA)])
        st += pollchk(SFC, VFA, I6 + P["C" + g_], "chk" + g_, k, {"flag" + g_})
    s_poll = S.add(Stream(st, "poll", budget=lambda i: 8))

    def glu(g, u, n, d=None):
        r = [] if P["FOLD"] else ["v_mul_f32 v%d, s%d, v%d" % (g + e, SNL, g + e) for e in range(n)]
        r += ["v_exp_f32 v%d, v%d" % (g + e, g + e) for e in range(n)]
        r += ["v_add_f32 v%d, 1.0, v%d" % (g + e, g + e) for e in range(n)]
        r += ["v_rcp_f32 v%d, v%d" % (g + e, g + e) for e in range(n)]
        r += ["v_mul_f32 v%d, v%d, v%d" % (g + e, g + e, u + e) for e in range(n)]
        r += ["v_cvt_pk_bf16_f32 v%d, v%d, v%d" % ((g if d is None else d) + e, g + 2 * e, g + 2 * e + 1) for e in range(n // 2)]
        return r

    doneA = end5[(1, 2, 1)]
    st = []
    for tb in range(4):
        g = acc5(tb, 0, 2, 0)
        st += items(glu(g, acc5(tb, 1, 2, 0), 8), at=doneA)
        st.append(Item("buffer_store_dwordx4 %s, v%d, %s, s%d offen offset:%d sc1" % (vr(g, 4), VA5, sq(SW), SHA, tb * 1024), vtag="SA",
                       sets="stA" if tb == 3 else None))
    for tb in range(4):
        g, g0 = acc5(tb, 0, 2, 2), acc5(tb & 2, 0, 2, 2)
        st += items(glu(g, acc5(tb, 1, 2, 2), 4, g0 + 2 * (tb & 1)), at=end5[(1, 2, 2)])
        if tb & 1:
            st.append(Item("buffer_store_dwordx4 %s, v%d, %s, s%d offen offset:%d sc1" % (vr(g0, 4), VA5, sq(SW), SHB, (tb & 2) * 1024),
                           vtag="SB", sets="stB" if tb == 3 else None))
    for pr in range(2):
        for tb in range(4):
            g = acc5(tb, 0, 1, 2 * pr)
            st += items(glu(g, acc5(tb, 1, 1, 2 * pr), 8), at=end5[(1, 1, 2 * pr + 1)])
            st.append(Item("buffer_store_dwordx4 %s, v%d, %s, s%d offen offset:%d sc1" % (vr(g, 4), VA5, sq(SW), SHC + pr, tb * 1024), vtag="S" + "CD"[pr],
                           sets="st" + "CD"[pr] if tb == 3 else None))

    def gb(i):
        for g_ in "ABCD":
            if "st" + g_ not in S.events:
                return P["GB_" + g_]
        return 0
    S.add(Stream(st, "glu", rate=gb))

    st = []
    for r in range(P["PFN"]):
        st.append(Item("s_mov_b32 s%d, %d" % (SOA, (14 - P["PFN"] + r) * 0x80000), at=I5 + P["PF0"] + r * P["PFSTEP"]))
        st.append(Item(touch(VW3, VTA, ST, "s%d" % SOA), delay=1))
    S.add(Stream(st, "pf"))

    PK, RES, X, GV, INB = 64, 80, 96, 128, 144
    sent = pos6[(27, 1)] + 16
    st = []
    for kb in range(2):
        for tb in range(2):
            q = tb * 2 + kb
            src = 32 + (tb * 4 + 2 * kb) * 4
            st += items(["v_cvt_pk_bf16_f32 v%d, v%d, v%d" % (PK + q * 4 + e, src + 2 * e, src + 2 * e + 1) for e in range(4)],
                        at=sent - 8 * (1 - kb), after={"chkD"})
            st.append(Item("buffer_store_dwordx4 %s, v%d, %s, s%d offen offset:%d sc1" % (vr(PK + q * 4, 4), VT16, sq(SW), SOUTB, q * 1024)))
    v = ["v_accvgpr_read_b32 v%d, a%d" % (RES + i, AX1 + i) for i in range(16)]
    for i in range(16):
        v += ["v_lshlrev_b32 v%d, 16, v%d" % (X + 2 * i, RES + i), "v_and_b32 v%d, 0xffff0000, v%d" % (X + 2 * i + 1, RES + i)]
    st += items(v)
    st += [Item("ds_read_b128 %s, v%d offset:%d" % (vr(GV + jj * 4, 4), VVEC, VEC + 768 + jj * 64), dtag="GV") for jj in range(4)]
    inld = ["buffer_load_dwordx4 %s, v%d, %s, s%d offen offset:%d sc1" % (vr(PK + i * 4, 4), VT16, sq(SW), SIN, i * 1024) for i in range(4)]
    cm = ["v_max3_u32 v%d, v%d, v%d, v%d" % (VP, PK, PK + 1, PK + 2)]
    cm += ["v_max3_u32 v%d, v%d, v%d, v%d" % (VP, VP, PK + i, PK + i + 1) for i in range(3, 15, 2)]
    cm += ["v_max_u32 v%d, v%d, v%d" % (VP, VP, PK + 15), "v_cmp_eq_u32 %s, -1, v%d" % (CMP, VP)]
    st += check_items(inld, cm, IE + P["INPOS"], IE + P["INPOS"] + 30, "inbox", lat=30)
    v = []
    for i in range(16):
        t = INB + (i & 3)
        v += ["v_lshlrev_b32 v%d, 16, v%d" % (t, PK + i), "v_and_b32 v%d, 0xffff0000, v%d" % (PK + i, PK + i),
              "v_fmac_f32 v%d, v%d, v%d" % (X + 2 * i, t, GV + (2 * i) % 16), "v_fmac_f32 v%d, v%d, v%d" % (X + 2 * i + 1, PK + i, GV + (2 * i + 1) % 16)]
    st += items(v, needd={"GV"})

    def fin(tb, kb, pk):
        r = RES + (tb * 2 + kb) * 4
        b = (tb * 4 + 2 * kb) * 4
        if pk:
            v = ["v_pk_fma_f32 %s, %s, %s, %s" % (vr(X + b + e, 2), vr(b + e, 2), vr(GV + 8 * kb + e, 2), vr(X + b + e, 2)) for e in range(0, 8, 2)]
        else:
            v = ["v_fmac_f32 v%d, v%d, v%d" % (X + b + e, b + e, GV + 8 * kb + e) for e in range(8)]
        v += ["v_cvt_pk_bf16_f32 v%d, v%d, v%d" % (r + e, X + b + 2 * e, X + b + 2 * e + 1) for e in range(4)]
        v += ["v_permlane16_swap_b32 v%d, v%d" % (r, r + 2), "v_permlane16_swap_b32 v%d, v%d" % (r + 1, r + 3)]
        return v + ["buffer_store_dwordx4 %s, v%d, %s, %s offen offset:%d%s" % (vr(r, 4), VX, sq(SO), "s%d" % S8K if tb else "0", kb * 64, P["OUTF"].replace("_", " "))]
    st += items(fin(0, 0, False) + fin(1, 0, False), at=IK2)
    s_fin = S.add(Stream(st, "fin", rate=lambda i: P["FINR"]))

    S.run(I6, vsp=lambda i: P["VSP5"] if i < I5 + (P["DEEP"] - 6) * 56 else P["VSP5D"], hooks=hooks, urgent=P["URG5"], pair=lambda i: i >= doneA or P["PAIR"] & 1)
    assert "stA" in S.events and "chkA" in S.events, S.events
    S.run(IE, vsp=lambda i: P["VSP6"], hooks=hooks, pair=lambda i: P["PAIR"] & 2)
    mark("p6end")
    S.drain(s_fin)
    for s_ in S.streams:
        assert not s_.items, s_.name
    S.emit(fin(0, 1, True) + fin(1, 1, True))
    a.label("L_hot_end")
    if P["MARK"] or P["TR0"] is not None:
        S("s_waitcnt vmcnt(0)")
        mark("end", True)
        srd(a, 64, SW, 0x1000000, WS_STAMP + 0x100000)
        a("s_lshl_b32 s68, s2, 10")
        a("s_lshl_b32 s69, s3, 8")
        a("s_add_u32 s68, s68, s69")
        a("v_lshlrev_b32 v32, 2, v%d" % VL)
        a("buffer_store_dword v255, v32, s[64:67], s68 offen")
    a("s_endpgm")
    for ls, lb, ld, cmp_, CMP_ in slow:
        lp = a.uid("spin")
        S.label(ls)
        S("s_mov_b32 s33, %d" % SPIN)
        S.label(lp)
        S.emit(ld)
        S("s_waitcnt vmcnt(0)")
        S.emit(cmp_)
        S("s_cmp_eq_u64 %s, 0" % CMP_)
        S("s_cbranch_scc1 %s" % lb)
        if P["BKX"]:
            S("s_sleep %d" % P["BKX"])
        S("s_sub_u32 s33, s33, 1")
        S("s_cmp_lg_u32 s33, 0")
        S("s_cbranch_scc1 %s" % lp)
        S("s_branch %s" % lb)
    a.label(end)
    a("s_endpgm")
    a.end_kernel(name, 256, 256, 102)
    a.launch(name, 256, 256, LDS_BYTES)
    return S, dict(I3=I3, I5=I5, I6=I6, IE=IE)


HEADER = gen2.HEADER.replace("gen2", "gen7")


def build(verbose=False, **over):
    import gen3
    old = dict(P)
    P.update(over)
    VMCOST[0] = P["VMC"]
    a = Asm()
    S, info = gen(a, NAME + "_kernel")
    a.label("L_code_end")
    a("s_endpgm")
    gen3.place_stubs(a)
    if verbose:
        print(info, "nops", S.nops, "events", S.events)
        print("\n".join(S.log))
        print(S.lead_report())
    P.clear()
    P.update(old)
    return a.text(HEADER).replace("@launch kernel=%s_kernel " % NAME, "@launch ")


if __name__ == "__main__":
    open("/code/%s.s" % NAME, "w").write(build(True))
```

```python
import re

TRANS = ("v_exp_f32", "v_rcp_f32", "v_rsq_f32", "v_sqrt_f32", "v_log_f32")


def regs(tok):
    tok = tok.strip()
    m = re.fullmatch(r"-?(?:abs\()?([vas])(\d+)\)?", tok)
    if m:
        return {(m.group(1), int(m.group(2)))}
    m = re.fullmatch(r"([vas])\[(\d+):(\d+)\]", tok)
    if m:
        return {(m.group(1), i) for i in range(int(m.group(2)), int(m.group(3)) + 1)}
    if tok == "vcc":
        return {("s", 106), ("s", 107)}
    if tok in ("exec", "exec_hi", "exec_lo"):
        return {("x", 0)}
    if tok == "m0":
        return {("m", 0)}
    return set()


_pc = {}


def parse(line):
    if line in _pc:
        return _pc[line]
    d = _parse(line)
    _pc[line] = d
    return d


def _parse(line):
    line = line.split(";")[0].strip()
    if not line or line.startswith(".") or line.endswith(":"):
        return None
    p = line.split(None, 1)
    op = p[0]
    ops = []
    if len(p) > 1:
        body = re.sub(r"(op_sel\w*|neg_\w+|quad_perm):\[[^\]]*\]", "", p[1])
        ops = [o.strip().split(" ")[0] for o in body.split(",")]
    d = dict(op=op, text=line, W=set(), R=set(), kind="o")
    R = lambda *idx: set().union(*[regs(ops[i]) for i in idx if i < len(ops)]) if idx else set()
    allr = set().union(*[regs(o) for o in ops]) if ops else set()
    rest = lambda k: set().union(*[regs(o) for o in ops[k:]]) if len(ops) > k else set()
    if op.startswith("v_mfma"):
        d.update(kind="mfma", W=R(0), A=R(1, 2), C=R(3), R=R(1, 2, 3))
    elif op.startswith("v_cmp"):
        d.update(kind="valu", W=R(0), R=R(1, 2))
    elif op.startswith("v_readfirstlane") or op.startswith("v_readlane"):
        d.update(kind="valu", W=R(0), R=R(1), rfl=True)
    elif op.startswith("v_permlane") or op.startswith("v_swap"):
        d.update(kind="valu", W=R(0, 1), R=R(0, 1), perm=op.startswith("v_permlane"))
    elif op.startswith("v_") and "_co_" in op:
        d.update(kind="valu", W=R(0, 1), R=rest(2))
    elif op.startswith("v_"):
        d.update(kind="valu", W=R(0), R=rest(1))
        if op.startswith("v_fmac"):
            d["R"] |= d["W"]
        if "dpp" in op:
            d["dpp"] = True
            d["R"] |= d["W"]
        if op in TRANS:
            d["trans"] = True
    elif op.startswith("buffer_load") or op.startswith("global_load"):
        if line.endswith("lds"):
            d.update(kind="vmem", R=allr | {("m", 0)}, dma=True)
        else:
            d.update(kind="vmem", W=R(0), R=rest(1))
    elif op.startswith("buffer_store") or op.startswith("buffer_atomic"):
        d.update(kind="vmem", R=allr, sdata=R(0) if ("x4" in op or "x3" in op) else set())
    elif op.startswith("ds_read") or op.startswith("ds_add_rtn"):
        d.update(kind="ds", W=R(0), R=rest(1))
    elif op.startswith("ds_"):
        d.update(kind="ds", R=allr)
    elif op.startswith("s_load") or op.startswith("s_mem"):
        d.update(kind="smem", W=R(0), R=rest(1))
    elif op.startswith("s_"):
        nw = op.startswith(("s_cmp", "s_bitcmp", "s_cbranch", "s_branch", "s_waitcnt", "s_nop", "s_barrier"))
        d.update(kind="salu", W=set() if nw else R(0), R=allr if nw else rest(1))
    d["ws"] = (int(ops[0]) + 1) if op == "s_nop" else 1
    return d


def isv(s):
    return {r for r in s if r[0] in "va"}


def iss(s):
    return {r for r in s if r[0] == "s"}


def pair_need(p, c):
    need = 0
    if p["kind"] == "valu":
        if c["kind"] == "mfma" and isv(p["W"]) & c["R"]:
            need = 2
        if c.get("perm") and isv(p["W"]) & c["R"]:
            need = max(need, 2)
        if p.get("perm") and c["kind"] in ("valu", "vmem", "ds") and p["W"] & c["R"]:
            need = max(need, 2)
        if c.get("dpp") and isv(p["W"]) & c["R"]:
            need = max(need, 2)
        if c.get("rfl") and isv(p["W"]) & c["R"]:
            need = max(need, 1)
        if p.get("trans") and c["kind"] == "valu" and not c.get("trans") and p["W"] & c["R"]:
            need = max(need, 1)
        if c["kind"] == "valu" and iss(p["W"]) & c["R"]:
            need = max(need, 2)
        if c["kind"] == "vmem" and iss(p["W"]) & c["R"]:
            need = max(need, 5)
        if c["kind"] in ("salu", "smem") and iss(p["W"]) & c["R"]:
            need = max(need, 2)
    if p["kind"] == "mfma":
        if c["kind"] == "mfma":
            if p["W"] & c["A"]:
                need = 8
            if p["W"] & c["C"] and p["W"] != c["C"]:
                need = max(need, 6)
            if p["W"] & c["W"] and p["W"] != c["C"]:
                need = max(need, 8)
        elif c["kind"] in ("valu", "vmem", "ds") and p["W"] & (c["R"] | c["W"]):
            need = 8
        if c["kind"] == "valu" and p["C"] & c["W"]:
            need = max(need, 3)
    if p["kind"] == "salu" and ("m", 0) in p["W"] and c.get("dma"):
        need = max(need, 1)
    if p.get("sdata") and p["sdata"] & c["W"]:
        need = max(need, 2)
    return need


VMCOST = [8]


def cost_of(ins):
    d = parse(ins)
    if d is None:
        return 0
    if d.get("trans"):
        return 8
    if d["kind"] == "vmem":
        return VMCOST[0]
    if d["kind"] == "mfma":
        return 16
    if d["op"].startswith("v_pk_"):
        return 8
    return 4 * d["ws"]


class Item:
    def __init__(self, ins, at=0, delay=0, after=(), sets=None, needv=(), needd=(), vtag=None, dtag=None, bar=False, pause=0, fn=None, ghost=None, force=False, needg=None):
        self.ins = [ins] if isinstance(ins, str) else list(ins)
        self.at, self.delay, self.after, self.sets = at, delay, set(after), sets
        self.needv, self.needd, self.vtag, self.dtag = set(needv), set(needd), vtag, dtag
        self.fn = fn
        self.ghost, self.force, self.needg = ghost, force, needg
        self.pause = pause
        self.bar = bar
        self.cost = sum(cost_of(i) for i in self.ins)


class Stream:
    def __init__(self, items, name="", budget=None, rate=None):
        self.items = list(items)
        self.name = name
        self.last = -10 ** 9
        self.lastbar = -1
        self.budget = budget
        self.rate = rate
        self.credit = 0.0


class Page:
    def __init__(self, key, src, at=0, after=(), glue=False):
        self.pause = 0
        self.glue = glue
        self.key, self.src = key, src
        self.at, self.after = at, set(after)
        self.addr = None
        self.issued = None
        self.visible = False
        self.freed = False
        self.reads = []
        self.nreads = 0
        self.want = self.need = 10 ** 9


class AGroup:
    def __init__(self, tag, ops, at=0, after=()):
        self.tag, self.ops, self.at, self.after = tag, ops, at, set(after)
        self.dl = 10 ** 9


class Sched:
    def __init__(self, a, nf, fragreg, dsbase, page0, npages, m0base):
        self.a = a
        self.hist = []
        self.vq, self.dq = [], []
        self.vdone = self.ddone = -1
        self.nf, self.fragreg, self.dsbase = nf, fragreg, dsbase
        self.free = [page0 + 4096 * i for i in range(npages)]
        self.m0base = m0base
        self.events = {}
        self.streams = []
        self.pend = []
        self.lastvm = -10 ** 9
        self.i = 0
        self.nbar = 0
        self.sreg = {}
        self.LG = 10
        self.LGMIN = 0
        self.BOTH = False
        self.nops = 0
        self.log = []
        self.leads = []
        self.gpos = {}
        self.vnext = -1e9
        self.vstep = 1.0

    def short(self, ins):
        c = parse(ins)
        if c is None:
            return 0
        dist, worst = 0, 0
        for p in reversed(self.hist[-12:]):
            worst = max(worst, pair_need(p, c) - dist)
            dist += p["ws"]
        return worst

    def ins(self, ins, vtag=None, dtag=None):
        for l in ins.split("\n"):
            l = l.strip()
            if not l:
                continue
            if l.endswith(":"):
                self.a.label(l[:-1])
                continue
            c = parse(l)
            if c is None:
                self.a(l)
                continue
            n = self.short(l)
            if n > 0:
                self.a("s_nop %d" % (n - 1))
                self.hist.append(parse("s_nop %d" % (n - 1)))
                self.nops += n
            self.a(l)
            self.hist.append(c)
            if c["kind"] == "vmem":
                self.vq.append(vtag)
                self.lastvm = self.i
            elif c["kind"] == "ds":
                self.dq.append(dtag)
            elif c["op"] == "s_waitcnt":
                m = re.search(r"vmcnt\((\d+)\)", l)
                if m:
                    self.vdone = max(self.vdone, len(self.vq) - 1 - int(m.group(1)))
                m = re.search(r"lgkmcnt\((\d+)\)", l)
                if m:
                    self.ddone = max(self.ddone, len(self.dq) - 1 - int(m.group(1)))

    def __call__(self, ins, vtag=None, dtag=None):
        self.ins(ins, vtag, dtag)

    def label(self, n):
        self.a.label(n)

    def uid(self, b):
        return self.a.uid(b)

    def emit(self, lst, vtag=None, dtag=None):
        for x in lst:
            self.ins(x, vtag, dtag)

    def _cnt(self, q, done, tags, cap):
        last = -1
        for k in range(len(q) - 1, done, -1):
            if q[k] in tags:
                last = k
                break
        if last < 0:
            return None
        return min(cap, len(q) - 1 - last)

    def wait(self, v=(), d=(), lg=None):
        nv = self._cnt(self.vq, self.vdone, set(v), 63) if v else None
        nd = self._cnt(self.dq, self.ddone, set(d), self.LG if lg is None else lg) if d else None
        if nv is None and nd is None:
            return 0
        self.ins("s_waitcnt" + (" vmcnt(%d)" % nv if nv is not None else "") + (" lgkmcnt(%d)" % nd if nd is not None else ""))
        return 4

    def setup(self, main, frags, pages, agroups, bars, margin=6, lat=60, cuts=()):
        self.main, self.frags = main, frags
        self.pages = {p.key: p for p in pages}
        self.pq = list(pages)
        self.aq = list(agroups)
        self.bars = sorted(bars)
        self.lat = lat
        self.cuts = sorted(cuts)
        order, fu, lu = [], {}, {}
        af = {}
        for i, (t, f, at) in enumerate(main):
            if f is not None:
                if f not in fu:
                    fu[f] = i
                    order.append(f)
                lu[f] = i
            for x in (at if isinstance(at, list) else [at]):
                if x is not None and x not in af:
                    af[x] = i
        self.forder, self.fu, self.lu = order, fu, lu
        self.fbuf = {f: k % self.nf for k, f in enumerate(order)}
        self.rq = []
        for k, f in enumerate(order):
            e = lu[order[k - self.nf]] + 1 if k >= self.nf else 0
            assert e <= fu[f], (f, e, fu[f])
            for r, rd in enumerate(frags[f]):
                self.rq.append((e, f, r))
                p = self.pages[rd[0]]
                p.nreads += 1
                p.want = min(p.want, e)
                p.need = min(p.need, max([e, fu[f] - margin] + [c for c in cuts if c <= fu[f]]))
        for p in pages:
            assert p.nreads, p.key
            b = sorted(x for x in self.bars + self.cuts if x <= p.want)
            p.dl = b[-1] if b else 0
        for g in agroups:
            g.dl = af[g.tag]
        for q in (pages, agroups):
            for k in range(len(q) - 2, -1, -1):
                q[k].dl = min(q[k].dl, q[k + 1].dl)
        self.margin = margin
        self.seenC = set()

    def add(self, st):
        self.streams.append(st)
        return st

    def barrier(self, nxt=None):
        i = self.i
        if nxt is None:
            later = sorted(x for x in self.bars + self.cuts if x > i)
            nxt = later[0] if later else 10 ** 9
        vis = []
        for p in self.pages.values():
            if p.visible:
                continue
            if p.need < nxt:
                if p.issued is None:
                    self.flush_until(p)
                vis.append(p)
            elif p.want < nxt and p.issued is not None and p.issued <= i - self.lat:
                vis.append(p)
        self.wait(v={("W", p.key) for p in vis})
        landed = set(self.vq[:self.vdone + 1])
        vis = [p for p in self.pages.values() if not p.visible and ("W", p.key) in landed]
        done = set(self.dq[:self.ddone + 1])
        self.ins("s_barrier")
        self.nbar += 1
        for p in vis:
            p.visible = True
        for p in self.pages.values():
            if p.visible and not p.freed and len(p.reads) == p.nreads and all(t in done for t in p.reads):
                p.freed = True
                self.free.append(p.addr)

    def ok_after(self, s):
        return all(e in self.events for e in s)

    def pick(self, force=False):
        c = []
        if self.pq:
            p = self.pq[0]
            if len(self.free) > p.glue and p.at <= self.i and self.ok_after(p.after):
                c.append((p.dl, 0, p))
        if self.aq:
            g = self.aq[0]
            if g.at <= self.i and self.ok_after(g.after):
                c.append((g.dl, 1, g))
        if not c:
            return False
        dl, kind, x = min(c, key=lambda t: (t[0], t[1]))
        if kind == 0:
            self.pend = []
            for _ in range(1 + x.glue):
                x = self.pq.pop(0)
                x.addr = self.free.pop(0)
                pre, ld, imm = x.src
                ops = [o for o in pre]
                ops.append("s_add_u32 m0, %s, %d" % (self.m0base, x.addr - imm))
                ops.append(ld)
                self.pend += [(o, ("W", x.key), x) for o in ops]
        else:
            self.aq.pop(0)
            self.pend = [(o, x.tag, None) for o in x.ops]
        self.pdl = dl
        return True

    def pend_step(self):
        o, tag, pg = self.pend.pop(0)
        m = re.fullmatch(r"s_mov_b32 (s\d+), (\S+)", o) or (pg is not None and re.fullmatch(r"s_add_u32 (s\d+), (s\d+, \S+)", o))
        if not m and re.match(r"s_\w+ s\d+,", o):
            self.sreg.pop(o.split()[1].rstrip(","), None)
        if m:
            if self.sreg.get(m.group(1)) == m.group(2):
                return 0
            self.sreg[m.group(1)] = m.group(2)
        self.ins(o, vtag=tag)
        if parse(o)["kind"] == "vmem":
            self.leads.append((self.i, "W" if pg is not None else "A", self.pdl - self.i))
            self.vnext = min(max(self.vnext, self.i - 1.0), self.i + 1.0) + self.vstep
            if pg is not None:
                pg.issued = self.i
                self.vnext += pg.pause
        return cost_of(o)

    def flush_until(self, p):
        n = 0
        while p.issued is None:
            if not self.pend:
                assert self.pick(), ("page cannot be issued", p.key, self.i, len(self.free))
            self.pend_step()
            n += 1
        self.log.append("gap %d: forced issue up to page %s (%d ops)" % (self.i, p.key, n))

    def take_pages(self, n):
        r = []
        for _ in range(n):
            x = self.pq.pop(0)
            x.addr = self.free.pop(0)
            pre, ld, imm = x.src
            r.append(list(pre) + ["s_add_u32 m0, %s, %d" % (self.m0base, x.addr - imm), ld])
            x.issued = -10 ** 6
            self.vq.append(("W", x.key))
        return r

    def pump(self, n, only=None):
        k = 0
        while k < n:
            if not self.pend:
                sv = None
                if only == "W":
                    sv, self.aq = self.aq, []
                if only == "A":
                    sv, self.pq = self.pq, []
                ok = self.pick()
                if only == "W":
                    self.aq = sv
                if only == "A":
                    self.pq = sv
                if not ok:
                    break
            isvm = parse(self.pend[0][0])["kind"] == "vmem"
            self.pend_step()
            k += isvm
        self.vnext = self.i
        return k

    def read_ready(self):
        if not self.rq:
            return False
        e, f, r = self.rq[0]
        return e <= self.i and self.pages[self.frags[f][r][0]].visible

    def do_read(self):
        e, f, r = self.rq.pop(0)
        pk, kind, off, tmpl, half = self.frags[f][r]
        p = self.pages[pk]
        base, o = self.dsbase(kind, p.addr + off)
        tag = ("F", f, r)
        self.ins(tmpl.format(d=self.fragreg(self.fbuf[f], half), b=base, o=o), dtag=tag)
        p.reads.append(tag)

    def reads(self, n=99):
        k = 0
        while k < n and self.read_ready():
            self.do_read()
            k += 1
        return k

    def item_ready(self, st):
        if not st.items:
            return False
        it = st.items[0]
        if it.at > self.i or st.last + it.delay > self.i or not self.ok_after(it.after):
            return False
        if it.bar and self.nbar <= st.lastbar:
            return False
        if it.needd and self.LGMIN:
            n = self._cnt(self.dq, self.ddone, it.needd, 99)
            if n is not None and n < self.LGMIN:
                return False
        return all(self.short(x) == 0 for x in it.ins[:2])

    def do_item(self, st):
        it = st.items.pop(0)
        c = self.wait(v=it.needv, d=it.needd)
        if it.needg:
            self.ins("s_waitcnt vmcnt(%d)" % min(63, len(self.vq) - self.gpos[it.needg]))
        n0 = len(self.vq)
        self.emit(it.ins, vtag=it.vtag, dtag=it.dtag)
        if it.ghost:
            del self.vq[n0:]
            self.gpos[it.ghost] = n0
        if it.fn:
            it.fn()
        st.last = self.i
        st.lastbar = self.nbar
        if it.pause:
            self.vnext = max(self.vnext, self.i + it.pause)
        if it.sets:
            self.events[it.sets] = self.i
        return c + it.cost

    def drain(self, st, upto=None, every=0, nmax=0, only=None):
        n = 0
        while st.items and not (upto and upto in self.events):
            it = st.items[0]
            assert self.ok_after(it.after), (st.name, it.after)
            if it.bar and self.nbar <= st.lastbar:
                self.barrier()
            self.do_item(st)
            n += 1
            if every and n % every == 0 and nmax > 0:
                vn = self.vnext
                nmax -= self.pump(1, only)
                self.vnext = max(vn, self.vnext)
        if n:
            self.log.append("gap %d: drained %d items of %s" % (self.i, n, st.name))

    def run(self, end, budget=lambda i: 8, vsp=lambda i: 5, urgent=24, hooks={}, pair=lambda i: False):
        while self.i < end:
            i = self.i
            if i in hooks:
                hooks[i]()
            B = budget(i)
            if i in self.bars:
                self.barrier()
                B -= 8
            tmpl, f, at = self.main[i]
            if not self.pend:
                self.pick()
            vm_now = False
            if self.pend:
                isvm = parse(self.pend[0][0])["kind"] == "vmem"
                self.vstep = vsp(i)
                due = i - self.lastvm >= 2 and (self.pdl - i < urgent or i >= self.vnext)
                if isvm and due and B >= 8:
                    vm_now = True
            late = self.read_ready() and self.fu[self.rq[0][1]] - i <= self.margin
            both = vm_now and late and self.BOTH
            if vm_now and (not late or both):
                B -= self.pend_step()
            if not vm_now or late:
                n = 0
                while self.read_ready() and ((B >= 4 or both) and n < 2 or self.fu[self.rq[0][1]] - i <= 2):
                    if n == 1 and not pair(i) and i - self.rq[0][0] < 2 and self.fu[self.rq[0][1]] - i > self.margin:
                        break
                    self.do_read()
                    B -= 4
                    n += 1
            while self.pend and B >= 4 and parse(self.pend[0][0])["kind"] != "vmem":
                B -= self.pend_step()
            for st in self.streams:
                lim = B if st.budget is None else B + st.budget(i)
                if st.rate and st.items and st.items[0].at <= i and self.ok_after(st.items[0].after):
                    st.credit = min(st.credit + st.rate(i), max(24, 2 * st.rate(i)))
                while self.item_ready(st) and (st.items[0].force or lim >= st.items[0].cost or (lim >= 8 and st.items[0].cost > 8)
                                               or (st.items[0].cost and st.credit + max(lim, 0) >= 2 * st.items[0].cost)):
                    c = self.do_item(st)
                    lim -= c
                    B -= c
                    st.credit = max(st.credit - c, -32)
            ats = [x for x in (at if isinstance(at, list) else [at]) if x is not None]
            for x in ats:
                while any(g.tag == x for g in self.aq) or any(t == x for o, t, p in self.pend):
                    if not self.pend:
                        assert self.pick(), ("operand cannot be issued", x, i)
                    self.pend_step()
                    self.log.append("gap %d: late operand %s" % (i, x))
            if f is not None:
                while any(r[1] == f for r in self.rq[:4]):
                    assert self.read_ready(), ("fragment not readable", f, i)
                    self.do_read()
                self.wait(v=ats, d={("F", f, r) for r in range(len(self.frags[f]))})
                t = tmpl.format(W=self.fragreg(self.fbuf[f], None))
            else:
                self.wait(v=ats)
                t = tmpl
            self.ins(t)
            self.i += 1


    def lead_report(self, step=64):
        r = []
        for k in range(0, self.i, step):
            w = [l for i, t, l in self.leads if k <= i < k + step and t == "W"]
            x = [l for i, t, l in self.leads if k <= i < k + step and t == "A"]
            r.append("%d:%dW%s/%dA%s" % (k, len(w), ">%d" % min(w) if w else "", len(x), ">%d" % min(x) if x else ""))
        return " ".join(r)
```

```python
import sys, os
sys.path.insert(0, os.path.dirname(os.path.abspath(__file__)))
import gen7
out = []
for spec in sys.argv[1:]:
    name, _, kv = spec.partition(":")
    o = {}
    for x in [x for x in kv.split(",") if x]:
        k, v = x.split("=")
        try:
            v = int(v)
        except ValueError:
            try:
                v = float(v)
            except ValueError:
                pass
        o[k] = v
    fn = os.path.join(os.path.dirname(os.path.abspath(__file__)), "v_%s.s" % name)
    open(fn, "w").write(gen7.build(bool(os.environ.get("V")), **o))
    out.append(fn)
print(" ".join(out))
```
